```python
import torch

def _softmax(x, axis=-1):
    return torch.softmax(x, dim=axis)
def _gelu(x):
    return torch.nn.functional.gelu(x, approximate="tanh")
def _silu(x):
    return torch.nn.functional.silu(x)
def _sigmoid(x):
    return torch.sigmoid(x)
def _layernorm(x, axis=-1, eps=1e-5):
    m = x.mean(dim=axis, keepdim=True)
    v = x.var(dim=axis, keepdim=True, unbiased=False)
    return (x - m) / torch.sqrt(v + eps)
def _scatter_add(tgt, idx, src, axis=0):
    return tgt.clone().index_add_(axis, idx, src)
def _segment_sum(src, seg, n):
    out = torch.zeros((n,) + src.shape[1:], dtype=src.dtype)
    return out.index_add_(0, seg, src)
def _pad(x, pw):
    flat = tuple(v for pair in reversed(pw) for v in pair)
    return torch.nn.functional.pad(x, flat)

kernel_name = 'standalone__paged_block_table_kv_radixattention__decode'

def setup_inputs():

    _w = (lambda a: (lambda t: t.to(torch.bfloat16) if t.is_floating_point() else t)(torch.as_tensor(a)))
    B, H, Hkv, Dh = 2, 32, 8, 128
    Lk = 32768
    bs = 16
    nb = max(2, Lk // bs)
    P = max(1, nb // 2)
    n_phys = P + B * (nb - P)
    shared = torch.arange(P, dtype=torch.int64)
    priv = P + torch.arange(B * (nb - P), dtype=torch.int64).reshape(B, nb - P)
    bt = torch.cat([torch.tile(shared[None, :], (B, 1)), priv], dim=1)
    ctx = nb * bs - (torch.arange(1, B + 1, dtype=torch.int64) * 2654435761) % max(1, (nb * bs - P * bs) // 2)
    return {
        "q": _w((lambda *s: torch.randn(*s, dtype=torch.bfloat16) * 0.8)(B, H, Dh)),
        "k_cache": _w((lambda *s: torch.randn(*s, dtype=torch.bfloat16) * 0.8)(n_phys, bs, Hkv, Dh)),
        "v_cache": _w((lambda *s: torch.randn(*s, dtype=torch.bfloat16) * 0.05)(n_phys, bs, Hkv, Dh)),
        "block_table": _w(bt.to(torch.int64)),
        "ctx_lens": _w(torch.as_tensor(ctx).to(torch.int64)),
    }

def reference(q, k_cache, v_cache, block_table, ctx_lens):
    B, H, Dh = q.shape
    n_phys, bs, Hkv, _ = k_cache.shape
    nb = block_table.shape[1]
    Lk = nb * bs
    rep = H // Hkv
    k = k_cache[block_table].reshape(B, Lk, Hkv, Dh)
    v = v_cache[block_table].reshape(B, Lk, Hkv, Dh)
    k = (lambda x, n, axis: torch.repeat_interleave(x, n, dim=axis))(k, rep, axis=2)
    v = (lambda x, n, axis: torch.repeat_interleave(x, n, dim=axis))(v, rep, axis=2)
    scores = torch.einsum("bhd,bkhd->bhk", q, k) * (Dh ** -0.5)
    pos = torch.arange(Lk)
    valid = pos[None, :] < ctx_lens[:, None]
    scores = torch.where(valid[:, None, :], scores, -1e9)
    p = _softmax(scores, axis=-1)
    return torch.einsum("bhk,bkhd->bhd", p, v)
```

```python
import sys, math, struct

NAME = "standalone__paged_block_table_kv_radixattention__decode"

HEADER = """; Kernarg layout for this problem (64 bytes, ptrs only, base s[0:1]):
"""

def f2u(x):
    return struct.unpack("<I", struct.pack("<f", x))[0]

KVBYTES = 3072 * 32768
CSCALE = (128 ** -0.5) * math.log2(math.e)
ML_OFF = 0x100000
STAMP_OFF = 0x400000
WS_REC = 0x800000
POLL_MAX = 200000


class Gen:
    def __init__(self, W=4, NF=6, R=2, XM=0, stamps=0, nocompute=0, spec=1, skipmax=1):
        self.W, self.NF, self.R, self.XM = W, NF, R, XM
        self.stamps, self.nocompute, self.spec, self.skipmax = stamps, nocompute, spec, skipmax
        assert NF <= 8 * (R - 1)
        self.NW = 32 * W
        self.HL = 2048 // self.NW
        assert 2 * self.HL <= 64
        n0 = (26191 + 15) // 16
        self.S = (-(n0 % self.NW) + 1024) % self.NW
        self.lines = []
        self.nv = 0
        self.uid = 0

    def e(self, s):
        self.lines.append("    " + s)

    def lab(self, s):
        self.lines.append(s + ":")

    def valloc(self, n=1, align=1):
        self.nv = (self.nv + align - 1) // align * align
        r = self.nv
        self.nv += n
        return r

    def stamp(self, idx):
        if not self.stamps:
            return
        e = self.e
        e("s_memrealtime s[90:91]")
        e("s_waitcnt lgkmcnt(0)")
        e(f"v_mov_b32 v{self.vSt[idx]}, s90")

    def flush_stamps(self):
        if not self.stamps:
            return
        e = self.e
        e("s_mov_b64 exec, 1")
        e("s_lshl_b32 s90, s2, 3")
        e("s_add_u32 s90, s90, s3")
        e("s_lshl_b32 s90, s90, 5")
        e(f"s_add_u32 s90, s90, {STAMP_OFF}")
        e(f"v_mov_b32 v{self.vT0}, 0")
        for i in range(8):
            e(f"buffer_store_dword v{self.vSt[i]}, v{self.vT0}, s[44:47], s90 offen offset:{4*i}")
        e("s_mov_b64 exec, -1")

    def build(self):
        W, NF, R = self.W, self.NF, self.R
        NW, HL = self.NW, self.HL
        e, lab = self.e, self.lab
        ring = R * 8192
        lds = W * ring
        self.nv = 1
        vLane = self.valloc()
        vT0 = self.valloc(); vT1 = self.valloc(); vT2 = self.valloc(); vT3 = self.valloc()
        self.vT0 = vT0
        vM = self.valloc(); vL = self.valloc(); vDesc = self.valloc()
        vShift = self.valloc(); v4g = self.valloc(); vNeg = self.valloc()
        vA = self.valloc(); vNm = self.valloc()
        vS = self.valloc(4, 4)
        vP = self.valloc(2, 2)
        vOffK = self.valloc(4); vOffV = self.valloc(4)
        vLK = self.valloc(4); vLV = self.valloc(8)
        vQ = self.valloc(16, 4)
        vKf = self.valloc(16, 4)
        vVf = self.valloc(16, 4)
        vO = self.valloc(32, 4)
        self.vSt = [self.valloc() for _ in range(8)] if self.stamps else None
        sKVH, sC, sWI = 4, 5, 6
        sCs = 7
        SK, SV, SQ, SB, SWS, SO, SD = 24, 28, 32, 36, 44, 48, 52
        sCtx0, sCtx1 = 40, 41
        sAct = 56
        sN = 58
        sI = 59
        sD = [60, 61, 62, 63]
        sOff = 64
        sBase = 65
        sMk = [66, 68, 70, 72]
        sH = 74
        sT = 76; sT2 = 77
        sPred = 78

        def srd(d, p, size):
            e(f"s_mov_b32 s{d}, s{p}")
            e(f"s_mov_b32 s{d+1}, s{p+1}")
            e(f"s_mov_b32 s{d+2}, {size}")
            e(f"s_mov_b32 s{d+3}, 0x00020000")

        e("s_cmp_ge_u32 s2, 256")
        e("s_cbranch_scc1 L_exit")
        e("s_load_dwordx16 s[8:23], s[0:1], 0")
        if self.stamps:
            for i in range(8):
                e(f"v_mov_b32 v{self.vSt[i]}, 0")
        e(f"v_lshrrev_b32 v{vT0}, 6, v0")
        e(f"v_and_b32 v{vLane}, 63, v0")
        e(f"v_readfirstlane_b32 s3, v{vT0}")
        if self.XM == 0:
            e(f"s_and_b32 s{sKVH}, s2, 7")
        else:
            e(f"s_lshr_b32 s{sT}, s2, 3")
            e(f"s_add_u32 s{sT}, s{sT}, s2")
            e(f"s_and_b32 s{sKVH}, s{sT}, 7")
        e(f"s_lshr_b32 s{sC}, s2, 3")
        e(f"s_mov_b32 s{sCs}, {hex(f2u(CSCALE))}")
        e(f"s_cmp_eq_u32 s3, {W}")
        e("s_cbranch_scc1 L_helper")
        e(f"s_lshl_b32 s{sWI}, s3, 5")
        e(f"s_add_u32 s{sWI}, s{sWI}, s{sC}")
        e(f"s_mul_i32 s{sBase}, s3, {ring}")
        e(f"s_lshl_b32 s{sT}, s{sKVH}, 8")
        e(f"v_lshrrev_b32 v{vT0}, 4, v{vLane}")
        e(f"v_and_b32 v{vT1}, 15, v{vLane}")
        for i in range(4):
            e(f"v_add_u32 v{vT2}, {4*i}, v{vT0}")
            e(f"v_xor_b32 v{vT3}, v{vT2}, v{vT1}")
            e(f"v_lshlrev_b32 v{vT3}, 4, v{vT3}")
            e(f"v_lshl_add_u32 v{vT3}, v{vT2}, 11, v{vT3}")
            e(f"v_add_u32 v{vT3}, s{sT}, v{vT3}")
            e(f"v_subrev_u32 v{vOffK+i}, {1024*i}, v{vT3}")
            e(f"v_and_b32 v{vT3}, 7, v{vT2}")
            e(f"v_lshlrev_b32 v{vT3}, 1, v{vT3}")
            e(f"v_xor_b32 v{vT3}, v{vT3}, v{vT1}")
            e(f"v_lshlrev_b32 v{vT3}, 4, v{vT3}")
            e(f"v_lshl_add_u32 v{vT3}, v{vT2}, 11, v{vT3}")
            e(f"v_add_u32 v{vT3}, s{sT}, v{vT3}")
            e(f"v_subrev_u32 v{vOffV+i}, {1024*i}, v{vT3}")
        e(f"s_add_u32 s{sT2}, s{sWI}, {self.S}")
        e(f"s_and_b32 s{sT2}, s{sT2}, {NW-1}")
        e(f"v_mov_b32 v{vT2}, s{sWI}")
        e(f"v_mov_b32 v{vT3}, s{sT2}")
        e(f"v_cmp_le_u32 s[{sH}:{sH+1}], {HL}, v{vLane}")
        e(f"v_and_b32 v{vDesc}, {HL-1}, v{vLane}")
        e(f"v_mul_u32_u24 v{vDesc}, {NW}, v{vDesc}")
        e(f"v_cndmask_b32 v{vT2}, v{vT2}, v{vT3}, s[{sH}:{sH+1}]")
        e(f"v_add_u32 v{vDesc}, v{vDesc}, v{vT2}")
        if 2 * HL < 64:
            e(f"v_cmp_le_u32 vcc, {2*HL}, v{vLane}")
            e(f"v_mov_b32 v{vT3}, 4096")
            e("s_nop 0")
            e(f"v_cndmask_b32 v{vDesc}, v{vDesc}, v{vT3}, vcc")
        e(f"v_lshlrev_b32 v{vA}, 2, v{vDesc}")
        e(f"v_bfe_u32 v{vT2}, v{vLane}, 2, 1")
        e(f"v_mul_u32_u24 v{vShift}, 5, v{vT2}")
        e(f"v_lshlrev_b32 v{vT2}, 13, v{vT2}")
        e(f"v_and_b32 v{vT3}, 3, v{vLane}")
        e(f"v_lshl_add_u32 v{vT2}, v{vT3}, 8, v{vT2}")
        e(f"v_lshl_add_u32 v{vT2}, v{vT0}, 4, v{vT2}")
        e(f"s_lshl_b32 s{sT}, s{sKVH}, 10")
        e(f"v_add_u32 v{vNm}, s{sT}, v{vT2}")
        e(f"s_mov_b32 s{sT2}, 8192")
        e("s_waitcnt lgkmcnt(0)")
        e(f"s_load_dwordx2 s[{sCtx0}:{sCtx1}], s[16:17], 0")
        srd(SB, 14, 16384)
        srd(SK, 10, KVBYTES)
        srd(SV, 12, KVBYTES)
        srd(SQ, 8, 16384)
        def issue(slot, i, soff):
            if i == 0 or i == 4 or self.force_m0:
                off = slot * 8192 + (4096 if i >= 4 else 0)
                e(f"s_add_u32 m0, s{sBase}, {off}")
                e("s_nop 0")
                self.force_m0 = False
            if i < 4:
                e(f"buffer_load_dwordx4 v{vOffK+i}, s[{SK}:{SK+3}], s{soff} offen offset:{1024*i} nt lds")
            else:
                e(f"buffer_load_dwordx4 v{vOffV+i-4}, s[{SV}:{SV+3}], s{soff} offen offset:{1024*(i-4)} nt lds")
        self.force_m0 = False
        e(f"buffer_load_dword v{vT2}, v{vA}, s[{SB}:{SB+3}], 0 offen")
        e(f"buffer_load_dword v{vT3}, v{vA}, s[{SB}:{SB+3}], s{sT2} offen")
        for c in range(4):
            e(f"buffer_load_dwordx4 v[{vQ+4*c}:{vQ+4*c+3}], v{vNm}, s[{SQ}:{SQ+3}], 0 offen offset:{64*c}")
        npu = (NF + 7) // 8
        if self.spec:
            for k in range(npu):
                e(f"s_add_u32 s{sPred+k}, s{sWI}, {NW*k}")
                e(f"s_lshl_b32 s{sPred+k}, s{sPred+k}, 15")
            for p in range(NF):
                issue(p // 8, p % 8, sPred + p // 8)
        srd(SWS, 22, WS_REC)
        e(f"v_xor_b32 v{vA}, v{vT0}, v{vT1}")
        for c in range(4):
            e(f"v_xor_b32 v{vNm}, {4*c}, v{vA}")
            e(f"v_lshlrev_b32 v{vNm}, 4, v{vNm}")
            e(f"v_lshl_add_u32 v{vNm}, v{vT1}, 8, v{vNm}")
            e(f"v_add_u32 v{vLK+c}, s{sBase}, v{vNm}")
        e(f"v_lshlrev_b32 v{v4g}, 2, v{vT0}")
        e(f"v_lshrrev_b32 v{vA}, 2, v{vLane}")
        e(f"v_and_b32 v{vNm}, 3, v{vLane}")
        e(f"v_lshlrev_b32 v{vNm}, 3, v{vNm}")
        e(f"v_lshl_add_u32 v{vNm}, v{vA}, 8, v{vNm}")
        e(f"v_add_u32 v{vNm}, s{sBase}, v{vNm}")
        e(f"v_add_u32 v{vNm}, 4096, v{vNm}")
        e(f"v_and_b32 v{vA}, 7, v{vA}")
        for j in range(8):
            e(f"v_xor_b32 v{vLV+j}, {j}, v{vA}")
            e(f"v_lshl_add_u32 v{vLV+j}, v{vLV+j}, 5, v{vNm}")
        e(f"v_mov_b32 v{vNeg}, {hex(f2u(-2e30))}")
        e(f"v_mov_b32 v{vM}, {hex(f2u(-1e30))}")
        e(f"v_mov_b32 v{vL}, 0")
        for k in range(32):
            e(f"v_mov_b32 v{vO+k}, 0")
        self.stamp(0)
        e("s_waitcnt lgkmcnt(0)")
        e(f"s_cmp_gt_i32 s{sCtx0}, 0")
        e(f"s_cselect_b32 s{sMk[0]}, 0, 0x0f0f0f0f")
        e(f"s_cselect_b32 s{sCtx0}, s{sCtx0}, 32768")
        e(f"s_cmp_gt_i32 s{sCtx1}, 0")
        e(f"s_cselect_b32 s{sMk[0]+1}, 0, 0xf0f0f0f0")
        e(f"s_cselect_b32 s{sCtx1}, s{sCtx1}, 32768")
        e(f"s_or_b32 s{sMk[0]}, s{sMk[0]}, s{sMk[0]+1}")
        e(f"s_mov_b32 s{sMk[0]+1}, s{sMk[0]}")
        e(f"s_min_i32 s{sCtx0}, s{sCtx0}, 32768")
        e(f"s_min_i32 s{sCtx1}, s{sCtx1}, 32768")
        e(f"v_lshlrev_b32 v{vDesc}, 4, v{vDesc}")
        e(f"v_sub_u32 v{vA}, s{sCtx0}, v{vDesc}")
        e(f"v_sub_u32 v{vNm}, s{sCtx1}, v{vDesc}")
        e(f"v_med3_i32 v{vA}, v{vA}, 0, 16")
        e(f"v_med3_i32 v{vNm}, v{vNm}, 0, 16")
        e(f"v_cmp_lt_u32 s[{sMk[1]}:{sMk[1]+1}], 0, v{vA}")
        e(f"s_waitcnt vmcnt({(NF if self.spec else 0) + 4})")
        e(f"v_cmp_eq_u32 vcc, v{vT2}, v{vT3}")
        e(f"v_cndmask_b32 v{vDesc}, v{vT2}, v{vT3}, s[{sH}:{sH+1}]")
        e(f"v_cndmask_b32 v{vA}, v{vA}, 0, s[{sH}:{sH+1}]")
        e(f"s_and_b64 vcc, vcc, s[{sMk[1]}:{sMk[1]+1}]")
        e(f"s_xor_b64 vcc, vcc, s[{sH}:{sH+1}]")
        e(f"v_cndmask_b32 v{vNm}, 0, v{vNm}, vcc")
        e(f"v_lshl_or_b32 v{vA}, v{vNm}, 5, v{vA}")
        e(f"v_cmp_ne_u32 s[{sAct}:{sAct+1}], 0, v{vA}")
        e(f"v_lshl_or_b32 v{vDesc}, v{vDesc}, 15, v{vA}")
        e("s_nop 1")
        e(f"s_bcnt1_i32_b64 s{sN}, s[{sAct}:{sAct+1}]")

        def fetch(dst):
            e(f"s_ff1_i32_b64 s{sI}, s[{sAct}:{sAct+1}]")
            e(f"s_bitset0_b64 s[{sAct}:{sAct+1}], s{sI}")
            e(f"v_readlane_b32 s{dst}, v{vDesc}, s{sI}")
            e(f"s_cmp_lt_i32 s{sI}, 0")
            e(f"s_cselect_b32 s{SK+2}, 0, s{SK+2}")
            e(f"s_cselect_b32 s{SV+2}, 0, s{SV+2}")
            e(f"s_cselect_b32 s{dst}, 0, s{dst}")
            e(f"s_and_b32 s{sOff}, s{dst}, 0xffff8000")

        if self.spec:
            e(f"s_mov_b64 s[{sMk[2]}:{sMk[2]+1}], s[{sAct}:{sAct+1}]")
            e(f"s_mov_b32 s{sT}, 0")
            for k in range(npu):
                fetch(sD[k])
                e(f"s_cmp_lg_u32 s{sOff}, s{sPred+k}")
                e(f"s_cselect_b32 s{sT}, 1, s{sT}")
                e(f"s_cmp_eq_u32 s{SK+2}, 0")
                e(f"s_cselect_b32 s{sT}, 1, s{sT}")
            e(f"s_cmp_eq_u32 s{sT}, 0")
            e("s_cbranch_scc1 L_spec_ok")
            e("s_waitcnt vmcnt(0)")
            e(f"s_mov_b64 s[{sAct}:{sAct+1}], s[{sMk[2]}:{sMk[2]+1}]")
            e(f"s_mov_b32 s{SK+2}, {KVBYTES}")
            e(f"s_mov_b32 s{SV+2}, {KVBYTES}")
        for p in range(NF):
            if p % 8 == 0:
                fetch(sD[p // 8])
            issue(p // 8, p % 8, sOff)
        if self.spec:
            lab("L_spec_ok")
        e(f"s_waitcnt vmcnt({NF})")
        e(f"s_cmp_eq_u32 s{sMk[0]}, 0")
        e("s_cbranch_scc1 L_q_ok")
        for k in range(16):
            e(f"v_cndmask_b32 v{vQ+k}, v{vQ+k}, 0, s[{sMk[0]}:{sMk[0]+1}]")
        lab("L_q_ok")
        self.stamp(1)
        e(f"s_cmp_eq_u32 s{sN}, 0")
        e("s_cbranch_scc1 L_epi")

        def wait_issue(slot, i):
            e(f"s_waitcnt vmcnt({NF-1})")
            p = i + NF
            k, ii = p // 8, p % 8
            if ii == 0:
                fetch(sD[k])
            issue((slot + k) % R, ii, sOff)

        lab("L_loop")
        for slot in range(R):
            so = slot * 8192
            self.force_m0 = True
            if not self.nocompute:
                e(f"v_bfe_u32 v{vT0}, s{sD[0]}, v{vShift}, 5")
                e(f"v_sub_u32 v{vT0}, v{vT0}, v{v4g}")
                for r in range(4):
                    e(f"v_cmp_lt_i32 s[{sMk[r]}:{sMk[r]+1}], {r}, v{vT0}")
                e("s_nop 0")
                for r in range(4):
                    e(f"v_cndmask_b32 v{vS+r}, v{vNeg}, 0, s[{sMk[r]}:{sMk[r]+1}]")
            for i in range(4):
                wait_issue(slot, i)
            if not self.nocompute:
                for c in range(4):
                    e(f"ds_read_b128 v[{vKf+4*c}:{vKf+4*c+3}], v{vLK+c} offset:{so}")
                for c in range(4):
                    e(f"s_waitcnt lgkmcnt({3-c})")
                    e(f"v_mfma_f32_16x16x32_bf16 v[{vS}:{vS+3}], v[{vKf+4*c}:{vKf+4*c+3}], v[{vQ+4*c}:{vQ+4*c+3}], v[{vS}:{vS+3}]")
                e("s_nop 7")
                e(f"v_max3_f32 v{vT0}, v{vS}, v{vS+1}, v{vS+2}")
                e(f"v_max3_f32 v{vT0}, v{vT0}, v{vS+3}, v{vM}")
                sk = f"L_skip{slot}"
                if self.skipmax:
                    e(f"v_cmp_gt_f32 vcc, v{vT0}, v{vM}")
                    e(f"s_cbranch_vccz {sk}")
                e(f"v_mov_b32 v{vT1}, v{vT0}")
                e("s_nop 1")
                e(f"v_permlane32_swap_b32 v{vT0}, v{vT1}")
                e("s_nop 0")
                e(f"v_max_f32 v{vT0}, v{vT0}, v{vT1}")
                e(f"v_mov_b32 v{vT1}, v{vT0}")
                e("s_nop 1")
                e(f"v_permlane16_swap_b32 v{vT0}, v{vT1}")
                e("s_nop 0")
                e(f"v_max_f32 v{vT0}, v{vT0}, v{vT1}")
                e(f"v_sub_f32 v{vA}, v{vM}, v{vT0}")
                e(f"v_mul_f32 v{vA}, s{sCs}, v{vA}")
                e(f"v_exp_f32 v{vA}, v{vA}")
                e(f"v_mov_b32 v{vM}, v{vT0}")
                e(f"v_mul_f32 v{vL}, v{vL}, v{vA}")
                for k in range(32):
                    e(f"v_mul_f32 v{vO+k}, v{vO+k}, v{vA}")
                lab(sk)
                e(f"v_mul_f32 v{vNm}, s{sCs}, v{vM}")
                for r in range(4):
                    e(f"v_fma_f32 v{vS+r}, v{vS+r}, s{sCs}, -v{vNm}")
                for r in range(4):
                    e(f"v_exp_f32 v{vS+r}, v{vS+r}")
                e("s_nop 0")
                e(f"v_cvt_pk_bf16_f32 v{vP}, v{vS}, v{vS+1}")
                e(f"v_cvt_pk_bf16_f32 v{vP+1}, v{vS+2}, v{vS+3}")
                e(f"v_add_f32 v{vT0}, v{vS}, v{vS+1}")
                e(f"v_add_f32 v{vT1}, v{vS+2}, v{vS+3}")
                e(f"v_add_f32 v{vL}, v{vL}, v{vT0}")
                e(f"v_add_f32 v{vL}, v{vL}, v{vT1}")
            for i in range(4, 8):
                wait_issue(slot, i)
            if not self.nocompute:
                for j in range(8):
                    e(f"ds_read_b64_tr_b16 v[{vVf+2*j}:{vVf+2*j+1}], v{vLV+j} offset:{so}")
                for j in range(8):
                    e(f"s_waitcnt lgkmcnt({7-j})")
                    e(f"v_mfma_f32_16x16x16_bf16 v[{vO+4*j}:{vO+4*j+3}], v[{vVf+2*j}:{vVf+2*j+1}], v[{vP}:{vP+1}], v[{vO+4*j}:{vO+4*j+3}]")
            kmax = (7 + NF) // 8
            for k in range(kmax):
                e(f"s_mov_b32 s{sD[k]}, s{sD[k+1]}")
            e(f"s_sub_u32 s{sN}, s{sN}, 1")
            e(f"s_cmp_eq_u32 s{sN}, 0")
            if slot < R - 1:
                e("s_cbranch_scc1 L_epi")
            else:
                e("s_cbranch_scc0 L_loop")
        lab("L_epi")
        self.stamp(2)
        e("s_waitcnt vmcnt(0)")
        e(f"v_and_b32 v{vT0}, 15, v{vLane}")
        e(f"v_mul_u32_u24 v{vT1}, 528, v{vT0}")
        e(f"v_lshl_add_u32 v{vT1}, v{v4g}, 2, v{vT1}")
        e(f"v_add_u32 v{vT1}, s{sBase}, v{vT1}")
        e(f"v_lshlrev_b32 v{vT2}, 2, v{vT0}")
        e(f"v_add_u32 v{vT2}, s{sBase}, v{vT2}")
        e(f"v_lshl_add_u32 v{vT3}, v{vT0}, 4, v{v4g}")
        e(f"v_add_u32 v{vT3}, s{sBase}, v{vT3}")
        e(f"v_mul_f32 v{vM}, s{sCs}, v{vM}")
        e("s_mov_b32 exec_lo, 0x00ff00ff")
        e("s_mov_b32 exec_hi, 0x00ff00ff")
        e("s_nop 4")
        for j in range(8):
            e(f"ds_write_b128 v{vT1}, v[{vO+4*j}:{vO+4*j+3}] offset:{64*j}")
        e(f"ds_write_b32 v{vT2}, v{vM} offset:4224")
        e(f"ds_write_b32 v{vT3}, v{vL} offset:4288")
        e("s_mov_b64 exec, -1")
        npass = 256 // (64 * W)
        e(f"v_lshrrev_b32 v{vT0}, 5, v0")
        e(f"v_and_b32 v{vT1}, 31, v0")
        e(f"v_mul_u32_u24 v{vT2}, 528, v{vT0}")
        e(f"v_lshl_add_u32 v{vT2}, v{vT1}, 4, v{vT2}")
        e(f"v_lshlrev_b32 v{vT3}, 2, v{vT0}")
        e(f"v_lshlrev_b32 v{vA}, 4, v{vT0}")
        e(f"v_lshlrev_b32 v{vNm}, 4, v0")
        e(f"v_lshlrev_b32 v{vDesc}, 3, v{vT0}")
        e(f"v_cmp_eq_u32 s[{sMk[0]}:{sMk[0]+1}], 0, v{vT1}")
        e(f"s_lshl_b32 s{sT}, s{sKVH}, 5")
        e(f"s_add_u32 s{sT}, s{sT}, s{sC}")
        e(f"s_lshl_b32 s{sT2}, s{sT}, 7")
        e(f"s_add_u32 s{sT2}, s{sT2}, {ML_OFF}")
        e(f"s_lshl_b32 s{sT}, s{sT}, 12")
        e(f"s_mov_b32 s{sI}, 0xfffffffe")
        e("s_waitcnt lgkmcnt(0)")
        e("s_barrier")
        qs = 2 * W
        for ps in range(npass):
            rO = vO; rL = vO + 4 * W; rM = vKf
            for w in range(W):
                e(f"ds_read_b32 v{rM+w}, v{vT3} offset:{w*ring + 4224 + ps*qs*4}")
            for w in range(W):
                e(f"ds_read_b128 v[{rL+4*w}:{rL+4*w+3}], v{vA} offset:{w*ring + 4288 + ps*qs*16}")
            for w in range(W):
                e(f"ds_read_b128 v[{rO+4*w}:{rO+4*w+3}], v{vT2} offset:{w*ring + ps*qs*528}")
            e(f"s_waitcnt lgkmcnt({2*W})")
            mm = vVf
            e(f"v_max_f32 v{mm}, v{rM}, v{rM+1}")
            for w in range(2, W):
                e(f"v_max_f32 v{mm}, v{mm}, v{rM+w}")
            for w in range(W):
                e(f"v_sub_f32 v{rM+w}, v{rM+w}, v{mm}")
            for w in range(W):
                e(f"v_exp_f32 v{rM+w}, v{rM+w}")
            e(f"s_waitcnt lgkmcnt({W})")
            for w in range(W):
                e(f"v_add_f32 v{rL+4*w}, v{rL+4*w}, v{rL+4*w+1}")
                e(f"v_add_f32 v{rL+4*w+2}, v{rL+4*w+2}, v{rL+4*w+3}")
                e(f"v_add_f32 v{rL+4*w}, v{rL+4*w}, v{rL+4*w+2}")
            e(f"v_mul_f32 v{mm+1}, v{rL}, v{rM}")
            for w in range(1, W):
                e(f"v_fmac_f32 v{mm+1}, v{rL+4*w}, v{rM+w}")
            e("s_waitcnt lgkmcnt(0)")
            res = vVf + 4
            for k in range(4):
                e(f"v_mul_f32 v{res+k}, v{rO+k}, v{rM}")
            for w in range(1, W):
                for k in range(4):
                    e(f"v_fmac_f32 v{res+k}, v{rO+4*w+k}, v{rM+w}")
            for k in range(4):
                e(f"v_min_u32 v{res+k}, s{sI}, v{res+k}")
            e(f"v_min_u32 v{mm}, s{sI}, v{mm}")
            e(f"v_min_u32 v{mm+1}, s{sI}, v{mm+1}")
            e(f"buffer_store_dwordx4 v[{res}:{res+3}], v{vNm}, s[{SWS}:{SWS+3}], s{sT} offen offset:{ps*64*W*16} sc1")
            e(f"s_mov_b64 exec, s[{sMk[0]}:{sMk[0]+1}]")
            e(f"buffer_store_dwordx2 v[{mm}:{mm+1}], v{vDesc}, s[{SWS}:{SWS+3}], s{sT2} offen offset:{ps*qs*8} sc1")
            e("s_mov_b64 exec, -1")
            e("s_nop 1")
        self.stamp(3)
        if self.stamps:
            e("s_waitcnt vmcnt(0)")
            self.stamp(4)
        self.flush_stamps()
        e("s_endpgm")

        lab("L_helper")
        hv = vO
        e("s_waitcnt lgkmcnt(0)")
        srd(SWS, 22, WS_REC)
        srd(SD, 20, 256)
        srd(SO, 18, 16384)
        self.stamp(0)
        e(f"s_lshl_b32 s{sT}, s{sKVH}, 5")
        e(f"s_add_u32 s{sT}, s{sT}, s{sC}")
        e(f"s_lshl_b32 s{sT2}, s{sT}, 7")
        e(f"s_add_u32 s{sT2}, s{sT2}, {ML_OFF}")
        e(f"s_lshl_b32 s{sT}, s{sT}, 12")
        for k in range(4):
            e(f"v_mov_b32 v{hv+k}, -1")
        e(f"v_lshlrev_b32 v{vT0}, 4, v{vLane}")
        for i in range(4):
            e(f"buffer_store_dwordx4 v[{hv}:{hv+3}], v{vT0}, s[{SWS}:{SWS+3}], s{sT} offen offset:{1024*i} sc1")
        e("s_mov_b64 exec, 0xff")
        e(f"buffer_store_dwordx4 v[{hv}:{hv+3}], v{vT0}, s[{SWS}:{SWS+3}], s{sT2} offen sc1")
        e("s_mov_b64 exec, -1")
        e(f"s_lshl_b32 s{sI}, s{sKVH}, 2")
        e(f"v_mov_b32 v{vT1}, s{sI}")
        e(f"v_mov_b32 v{vT2}, 1")
        e("s_waitcnt vmcnt(0)")
        e("s_mov_b64 exec, 1")
        e(f"buffer_atomic_add v{vT2}, v{vT1}, s[{SD}:{SD+3}], 0 offen sc1")
        e("s_mov_b64 exec, -1")
        e(f"v_lshrrev_b32 v{vT0}, 3, v{vLane}")
        e(f"v_and_b32 v{vT2}, 7, v{vLane}")
        e(f"v_lshlrev_b32 v{vA}, 12, v{vT0}")
        e(f"v_lshl_add_u32 v{vA}, v{vT2}, 4, v{vA}")
        e(f"v_lshlrev_b32 v{vNm}, 7, v{vT0}")
        e(f"s_lshl_b32 s{sT}, s{sKVH}, 17")
        e(f"s_lshl_b32 s{sT2}, s{sC}, 7")
        e(f"s_add_u32 s{sT}, s{sT}, s{sT2}")
        for i in range(4):
            e(f"s_add_u32 s{sD[i]}, s{sT}, {i*8*4096}")
        e(f"s_lshl_b32 s{sT}, s{sKVH}, 12")
        e(f"s_lshr_b32 s{sT2}, s{sC}, 2")
        e(f"s_lshl_b32 s{sOff}, s{sT2}, 3")
        e(f"s_add_u32 s{sT}, s{sT}, s{sOff}")
        e(f"s_add_u32 s{sT}, s{sT}, {ML_OFF}")
        e(f"s_lshr_b32 s{sOff}, s{sT2}, 2")
        e(f"s_lshl_b32 s{sOff}, s{sOff}, 13")
        e(f"s_and_b32 s{sT2}, s{sT2}, 3")
        e(f"s_lshl_b32 s{sT2}, s{sT2}, 8")
        e(f"s_add_u32 s{sOff}, s{sOff}, s{sT2}")
        e(f"s_lshl_b32 s{sT2}, s{sKVH}, 10")
        e(f"s_add_u32 s{sOff}, s{sOff}, s{sT2}")
        e(f"s_and_b32 s{sT2}, s{sC}, 3")
        e(f"s_lshl_b32 s{sT2}, s{sT2}, 6")
        e(f"s_add_u32 s{sOff}, s{sOff}, s{sT2}")
        e(f"v_lshlrev_b32 v{vDesc}, 3, v{vT2}")
        e(f"s_mov_b32 s{sN}, {POLL_MAX}")
        lab("L_wait_clear")
        e(f"buffer_load_dword v{vT3}, v{vT1}, s[{SD}:{SD+3}], 0 offen sc1")
        e("s_waitcnt vmcnt(0)")
        e(f"v_readfirstlane_b32 s{sI}, v{vT3}")
        e(f"s_cmp_ge_u32 s{sI}, 32")
        e("s_cbranch_scc1 L_cleared")
        e("s_sleep 16")
        e(f"s_sub_u32 s{sN}, s{sN}, 1")
        e(f"s_cmp_lg_u32 s{sN}, 0")
        e("s_cbranch_scc1 L_wait_clear")
        lab("L_cleared")
        self.stamp(1)
        e("s_barrier")
        self.stamp(2)
        rO = hv; rML = hv + 16
        e(f"s_mov_b32 s{sN}, {POLL_MAX}")
        lab("L_poll")
        for i in range(4):
            e(f"buffer_load_dwordx2 v[{rML+2*i}:{rML+2*i+1}], v{vNm}, s[{SWS}:{SWS+3}], s{sT} offen offset:{1024*i} sc1")
        for i in range(4):
            e(f"buffer_load_dwordx4 v[{rO+4*i}:{rO+4*i+3}], v{vA}, s[{SWS}:{SWS+3}], s{sD[i]} offen sc1")
        e("s_waitcnt vmcnt(0)")
        e(f"v_max3_u32 v{vT0}, v{rO}, v{rO+1}, v{rO+2}")
        for k in range(3, 23, 2):
            e(f"v_max3_u32 v{vT0}, v{vT0}, v{rO+k}, v{rO+k+1}")
        e(f"v_max_u32 v{vT0}, v{vT0}, v{rO+23}")
        e(f"v_cmp_eq_u32 vcc, -1, v{vT0}")
        e("s_cbranch_vccz L_ready")
        e("s_sleep 1")
        e(f"s_sub_u32 s{sN}, s{sN}, 1")
        e(f"s_cmp_lg_u32 s{sN}, 0")
        e("s_cbranch_scc1 L_poll")
        lab("L_ready")
        self.stamp(3)

        def xreduce(r, tmp, op):
            e("s_nop 1")
            e(f"{op}_dpp v{r}, v{r}, v{r} row_ror:8 row_mask:0xf bank_mask:0xf")
            e(f"v_mov_b32 v{tmp}, v{r}")
            e("s_nop 1")
            e(f"v_permlane16_swap_b32 v{r}, v{tmp}")
            e("s_nop 0")
            e(f"{op} v{r}, v{r}, v{tmp}")
            e(f"v_mov_b32 v{tmp}, v{r}")
            e("s_nop 1")
            e(f"v_permlane32_swap_b32 v{r}, v{tmp}")
            e("s_nop 0")
            e(f"{op} v{r}, v{r}, v{tmp}")
        e(f"v_max3_f32 v{vT0}, v{rML}, v{rML+2}, v{rML+4}")
        e(f"v_max_f32 v{vT0}, v{vT0}, v{rML+6}")
        xreduce(vT0, vT1, "v_max_f32")
        for i in range(4):
            e(f"v_sub_f32 v{rML+2*i}, v{rML+2*i}, v{vT0}")
        for i in range(4):
            e(f"v_exp_f32 v{rML+2*i}, v{rML+2*i}")
        e("s_nop 0")
        acc = vKf
        for k in range(4):
            e(f"v_mul_f32 v{acc+k}, v{rO+k}, v{rML}")
        e(f"v_mul_f32 v{acc+4}, v{rML+1}, v{rML}")
        for i in range(1, 4):
            for k in range(4):
                e(f"v_fmac_f32 v{acc+k}, v{rO+4*i+k}, v{rML+2*i}")
            e(f"v_fmac_f32 v{acc+4}, v{rML+2*i+1}, v{rML+2*i}")
        tm = vKf + 8
        e("s_nop 1")
        for k in range(5):
            e(f"v_add_f32_dpp v{acc+k}, v{acc+k}, v{acc+k} row_ror:8 row_mask:0xf bank_mask:0xf")
        for sw in ("v_permlane16_swap_b32", "v_permlane32_swap_b32"):
            for k in range(5):
                e(f"v_mov_b32 v{tm+k}, v{acc+k}")
            e("s_nop 1")
            for k in range(5):
                e(f"{sw} v{acc+k}, v{tm+k}")
            e("s_nop 0")
            for k in range(5):
                e(f"v_add_f32 v{acc+k}, v{acc+k}, v{tm+k}")
        e(f"v_rcp_f32 v{acc+4}, v{acc+4}")
        e("s_nop 0")
        for k in range(4):
            e(f"v_mul_f32 v{acc+k}, v{acc+k}, v{acc+4}")
        e(f"v_cvt_pk_bf16_f32 v{tm}, v{acc}, v{acc+1}")
        e(f"v_cvt_pk_bf16_f32 v{tm+1}, v{acc+2}, v{acc+3}")
        e("s_mov_b64 exec, 0xff")
        e(f"buffer_store_dwordx2 v[{tm}:{tm+1}], v{vDesc}, s[{SO}:{SO+3}], s{sOff} offen")
        e("s_mov_b64 exec, -1")
        if self.stamps:
            e("s_waitcnt vmcnt(0)")
            self.stamp(4)
        self.flush_stamps()
        lab("L_exit")
        e("s_endpgm")

        nvg = (self.nv + 7) // 8 * 8
        out = HEADER
        out += f"; @launch grid=(256,1,1) block=({64*(W+1)},1,1) lds={lds}\n"
        out += '.amdgcn_target "amdgcn-amd-amdhsa--gfx950"\n.text\n'
        out += f".globl {NAME}_kernel\n.p2align 8\n.type {NAME}_kernel,@function\n{NAME}_kernel:\n"
        out += "\n".join(self.lines) + "\n"
        out += f""".section .rodata,"a"
.p2align 6
.amdhsa_kernel {NAME}_kernel
  .amdhsa_next_free_vgpr {nvg}
  .amdhsa_next_free_sgpr 96
  .amdhsa_accum_offset {nvg}
  .amdhsa_group_segment_fixed_size 0
  .amdhsa_kernarg_size 64
  .amdhsa_user_sgpr_count 2
  .amdhsa_user_sgpr_kernarg_segment_ptr 1
  .amdhsa_system_sgpr_workgroup_id_x 1
.end_amdhsa_kernel
"""
        return out


if __name__ == "__main__":
    path = sys.argv[1]
    kw = {}
    for a in sys.argv[2:]:
        k, v = a.split("=")
        kw[k] = int(v)
    open(path, "w").write(Gen(**kw).build())
```

```python
import sys, math, struct

NAME = "standalone__paged_block_table_kv_radixattention__decode"

HEADER = """; Kernarg layout for this problem (64 bytes, ptrs only, base s[0:1]):
"""

def f2u(x):
    return struct.unpack("<I", struct.pack("<f", x))[0]

KVBYTES = 3072 * 32768
CSCALE = (128 ** -0.5) * math.log2(math.e)
ML_OFF = 0x100000
STAMP_OFF = 0x400000
WS_REC = 0x800000
POLL_MAX = 200000


class Gen:
    def __init__(self, W=4, NF=6, R=2, XM=0, stamps=0, nocompute=0, spec=1, skipmax=1, nt=1, nohelp=0, slp=16):
        self.W, self.NF, self.R, self.XM = W, NF, R, XM
        self.stamps, self.nocompute, self.spec, self.skipmax = stamps, nocompute, spec, skipmax
        self.nt, self.nohelp, self.slp = nt, nohelp, slp
        assert NF <= 8 * (R - 1)
        self.NW = 32 * W
        self.HL = 2048 // self.NW
        assert 2 * self.HL <= 64
        n0 = (26191 + 15) // 16
        self.S = (-(n0 % self.NW) + 1024) % self.NW
        self.lines = []
        self.nv = 0
        self.uid = 0

    def e(self, s):
        self.lines.append("    " + s)

    def lab(self, s):
        self.lines.append(s + ":")

    def valloc(self, n=1, align=1):
        self.nv = (self.nv + align - 1) // align * align
        r = self.nv
        self.nv += n
        return r

    def stamp(self, idx):
        if not self.stamps:
            return
        e = self.e
        e("s_memrealtime s[90:91]")
        e("s_waitcnt lgkmcnt(0)")
        e(f"v_mov_b32 v{self.vSt[idx]}, s90")

    def flush_stamps(self):
        if not self.stamps:
            return
        e = self.e
        e("s_mov_b64 exec, 1")
        e("s_lshl_b32 s90, s2, 3")
        e("s_add_u32 s90, s90, s3")
        e("s_lshl_b32 s90, s90, 5")
        e(f"s_add_u32 s90, s90, {STAMP_OFF}")
        e(f"v_mov_b32 v{self.vT0}, 0")
        for i in range(8):
            e(f"buffer_store_dword v{self.vSt[i]}, v{self.vT0}, s[44:47], s90 offen offset:{4*i}")
        e("s_mov_b64 exec, -1")

    def build(self):
        W, NF, R = self.W, self.NF, self.R
        NW, HL = self.NW, self.HL
        e, lab = self.e, self.lab
        ring = R * 8192
        NT = {0: '', 1: 'nt', 2: 'sc1', 3: 'sc1 nt', 4: 'sc0 sc1', 5: 'sc0 sc1 nt', 6: 'sc0 nt'}[self.nt]
        lds = W * ring
        self.nv = 1
        vLane = self.valloc()
        vT0 = self.valloc(); vT1 = self.valloc(); vT2 = self.valloc(); vT3 = self.valloc()
        self.vT0 = vT0
        vM = self.valloc(); vL = self.valloc(); vDesc = self.valloc()
        vShift = self.valloc(); v4g = self.valloc(); vNeg = self.valloc()
        vA = self.valloc(); vNm = self.valloc()
        vS = self.valloc(4, 4)
        vP = self.valloc(2, 2)
        vOffK = self.valloc(4); vOffV = self.valloc(4)
        vLK = self.valloc(4); vLV = self.valloc(8)
        vQ = self.valloc(16, 4)
        vKf = self.valloc(16, 4)
        vVf = self.valloc(16, 4)
        vO = self.valloc(32, 4)
        self.vSt = [self.valloc() for _ in range(8)] if self.stamps else None
        sKVH, sC, sWI = 4, 5, 6
        sCs = 7
        SK, SV, SQ, SB, SWS, SO, SD = 24, 28, 32, 36, 44, 48, 52
        sCtx0, sCtx1 = 40, 41
        sAct = 56
        sN = 58
        sI = 59
        sD = [60, 61, 62, 63]
        sOff = 64
        sBase = 65
        sMk = [66, 68, 70, 72]
        sH = 74
        sT = 76; sT2 = 77
        sPred = 78

        def srd(d, p, size):
            e(f"s_mov_b32 s{d}, s{p}")
            e(f"s_mov_b32 s{d+1}, s{p+1}")
            e(f"s_mov_b32 s{d+2}, {size}")
            e(f"s_mov_b32 s{d+3}, 0x00020000")

        e("s_cmp_ge_u32 s2, 256")
        e("s_cbranch_scc1 L_exit")
        if self.stamps:
            for i in range(8):
                e(f"v_mov_b32 v{self.vSt[i]}, 0")
            self.stamp(7)
        e("s_load_dwordx16 s[8:23], s[0:1], 0")
        e(f"v_lshrrev_b32 v{vT0}, 6, v0")
        e(f"v_and_b32 v{vLane}, 63, v0")
        e(f"v_readfirstlane_b32 s3, v{vT0}")
        if self.XM == 0:
            e(f"s_and_b32 s{sKVH}, s2, 7")
        else:
            e(f"s_lshr_b32 s{sT}, s2, 3")
            e(f"s_add_u32 s{sT}, s{sT}, s2")
            e(f"s_and_b32 s{sKVH}, s{sT}, 7")
        e(f"s_lshr_b32 s{sC}, s2, 3")
        e(f"s_mov_b32 s{sCs}, {hex(f2u(CSCALE))}")
        e(f"s_cmp_eq_u32 s3, {W}")
        e("s_cbranch_scc1 L_helper")
        e(f"s_lshl_b32 s{sWI}, s3, 5")
        e(f"s_add_u32 s{sWI}, s{sWI}, s{sC}")
        e(f"s_mul_i32 s{sBase}, s3, {ring}")
        e(f"s_lshl_b32 s{sT}, s{sKVH}, 8")
        e(f"v_lshrrev_b32 v{vT0}, 4, v{vLane}")
        e(f"v_and_b32 v{vT1}, 15, v{vLane}")
        for i in range(4):
            e(f"v_add_u32 v{vT2}, {4*i}, v{vT0}")
            e(f"v_xor_b32 v{vT3}, v{vT2}, v{vT1}")
            e(f"v_lshlrev_b32 v{vT3}, 4, v{vT3}")
            e(f"v_lshl_add_u32 v{vT3}, v{vT2}, 11, v{vT3}")
            e(f"v_add_u32 v{vT3}, s{sT}, v{vT3}")
            e(f"v_subrev_u32 v{vOffK+i}, {1024*i}, v{vT3}")
            e(f"v_and_b32 v{vT3}, 7, v{vT2}")
            e(f"v_lshlrev_b32 v{vT3}, 1, v{vT3}")
            e(f"v_xor_b32 v{vT3}, v{vT3}, v{vT1}")
            e(f"v_lshlrev_b32 v{vT3}, 4, v{vT3}")
            e(f"v_lshl_add_u32 v{vT3}, v{vT2}, 11, v{vT3}")
            e(f"v_add_u32 v{vT3}, s{sT}, v{vT3}")
            e(f"v_subrev_u32 v{vOffV+i}, {1024*i}, v{vT3}")
        e(f"s_add_u32 s{sT2}, s{sWI}, {self.S}")
        e(f"s_and_b32 s{sT2}, s{sT2}, {NW-1}")
        e(f"v_mov_b32 v{vT2}, s{sWI}")
        e(f"v_mov_b32 v{vT3}, s{sT2}")
        e(f"v_cmp_le_u32 s[{sH}:{sH+1}], {HL}, v{vLane}")
        e(f"v_and_b32 v{vDesc}, {HL-1}, v{vLane}")
        e(f"v_mul_u32_u24 v{vDesc}, {NW}, v{vDesc}")
        e(f"v_cndmask_b32 v{vT2}, v{vT2}, v{vT3}, s[{sH}:{sH+1}]")
        e(f"v_add_u32 v{vDesc}, v{vDesc}, v{vT2}")
        if 2 * HL < 64:
            e(f"v_cmp_le_u32 vcc, {2*HL}, v{vLane}")
            e(f"v_mov_b32 v{vT3}, 4096")
            e("s_nop 0")
            e(f"v_cndmask_b32 v{vDesc}, v{vDesc}, v{vT3}, vcc")
        e(f"v_lshlrev_b32 v{vA}, 2, v{vDesc}")
        e(f"v_bfe_u32 v{vT2}, v{vLane}, 2, 1")
        e(f"v_mul_u32_u24 v{vShift}, 5, v{vT2}")
        e(f"v_lshlrev_b32 v{vT2}, 13, v{vT2}")
        e(f"v_and_b32 v{vT3}, 3, v{vLane}")
        e(f"v_lshl_add_u32 v{vT2}, v{vT3}, 8, v{vT2}")
        e(f"v_lshl_add_u32 v{vT2}, v{vT0}, 4, v{vT2}")
        e(f"s_lshl_b32 s{sT}, s{sKVH}, 10")
        e(f"v_add_u32 v{vNm}, s{sT}, v{vT2}")
        e(f"s_mov_b32 s{sT2}, 8192")
        e("s_waitcnt lgkmcnt(0)")
        e(f"s_load_dwordx2 s[{sCtx0}:{sCtx1}], s[16:17], 0")
        srd(SB, 14, 16384)
        srd(SK, 10, KVBYTES)
        srd(SV, 12, KVBYTES)
        srd(SQ, 8, 16384)
        def issue(slot, i, soff):
            if i == 0 or i == 4 or self.force_m0:
                off = slot * 8192 + (4096 if i >= 4 else 0)
                e(f"s_add_u32 m0, s{sBase}, {off}")
                e("s_nop 0")
                self.force_m0 = False
            if i < 4:
                e(f"buffer_load_dwordx4 v{vOffK+i}, s[{SK}:{SK+3}], s{soff} offen offset:{1024*i} {NT} lds")
            else:
                e(f"buffer_load_dwordx4 v{vOffV+i-4}, s[{SV}:{SV+3}], s{soff} offen offset:{1024*(i-4)} {NT} lds")
        self.force_m0 = False
        e(f"buffer_load_dword v{vT2}, v{vA}, s[{SB}:{SB+3}], 0 offen")
        e(f"buffer_load_dword v{vT3}, v{vA}, s[{SB}:{SB+3}], s{sT2} offen")
        for c in range(4):
            e(f"buffer_load_dwordx4 v[{vQ+4*c}:{vQ+4*c+3}], v{vNm}, s[{SQ}:{SQ+3}], 0 offen offset:{64*c}")
        npu = (NF + 7) // 8
        if self.spec:
            for k in range(npu):
                e(f"s_add_u32 s{sPred+k}, s{sWI}, {NW*k}")
                e(f"s_lshl_b32 s{sPred+k}, s{sPred+k}, 15")
            for p in range(NF):
                issue(p // 8, p % 8, sPred + p // 8)
        srd(SWS, 22, WS_REC)
        e(f"v_xor_b32 v{vA}, v{vT0}, v{vT1}")
        for c in range(4):
            e(f"v_xor_b32 v{vNm}, {4*c}, v{vA}")
            e(f"v_lshlrev_b32 v{vNm}, 4, v{vNm}")
            e(f"v_lshl_add_u32 v{vNm}, v{vT1}, 8, v{vNm}")
            e(f"v_add_u32 v{vLK+c}, s{sBase}, v{vNm}")
        e(f"v_lshlrev_b32 v{v4g}, 2, v{vT0}")
        e(f"v_lshrrev_b32 v{vA}, 2, v{vLane}")
        e(f"v_and_b32 v{vNm}, 3, v{vLane}")
        e(f"v_lshlrev_b32 v{vNm}, 3, v{vNm}")
        e(f"v_lshl_add_u32 v{vNm}, v{vA}, 8, v{vNm}")
        e(f"v_add_u32 v{vNm}, s{sBase}, v{vNm}")
        e(f"v_add_u32 v{vNm}, 4096, v{vNm}")
        e(f"v_and_b32 v{vA}, 7, v{vA}")
        for j in range(8):
            e(f"v_xor_b32 v{vLV+j}, {j}, v{vA}")
            e(f"v_lshl_add_u32 v{vLV+j}, v{vLV+j}, 5, v{vNm}")
        e(f"v_mov_b32 v{vNeg}, {hex(f2u(-2e30))}")
        e(f"v_mov_b32 v{vM}, {hex(f2u(-1e30))}")
        e(f"v_mov_b32 v{vL}, 0")
        for k in range(32):
            e(f"v_mov_b32 v{vO+k}, 0")
        self.stamp(0)
        e("s_waitcnt lgkmcnt(0)")
        e(f"s_cmp_gt_i32 s{sCtx0}, 0")
        e(f"s_cselect_b32 s{sMk[0]}, 0, 0x0f0f0f0f")
        e(f"s_cselect_b32 s{sCtx0}, s{sCtx0}, 32768")
        e(f"s_cmp_gt_i32 s{sCtx1}, 0")
        e(f"s_cselect_b32 s{sMk[0]+1}, 0, 0xf0f0f0f0")
        e(f"s_cselect_b32 s{sCtx1}, s{sCtx1}, 32768")
        e(f"s_or_b32 s{sMk[0]}, s{sMk[0]}, s{sMk[0]+1}")
        e(f"s_mov_b32 s{sMk[0]+1}, s{sMk[0]}")
        e(f"s_min_i32 s{sCtx0}, s{sCtx0}, 32768")
        e(f"s_min_i32 s{sCtx1}, s{sCtx1}, 32768")
        e(f"v_lshlrev_b32 v{vDesc}, 4, v{vDesc}")
        e(f"v_sub_u32 v{vA}, s{sCtx0}, v{vDesc}")
        e(f"v_sub_u32 v{vNm}, s{sCtx1}, v{vDesc}")
        e(f"v_med3_i32 v{vA}, v{vA}, 0, 16")
        e(f"v_med3_i32 v{vNm}, v{vNm}, 0, 16")
        e(f"v_cmp_lt_u32 s[{sMk[1]}:{sMk[1]+1}], 0, v{vA}")
        e(f"s_waitcnt vmcnt({(NF if self.spec else 0) + 4})")
        e(f"v_cmp_eq_u32 vcc, v{vT2}, v{vT3}")
        e(f"v_cndmask_b32 v{vDesc}, v{vT2}, v{vT3}, s[{sH}:{sH+1}]")
        e(f"v_cndmask_b32 v{vA}, v{vA}, 0, s[{sH}:{sH+1}]")
        e(f"s_and_b64 vcc, vcc, s[{sMk[1]}:{sMk[1]+1}]")
        e(f"s_xor_b64 vcc, vcc, s[{sH}:{sH+1}]")
        e(f"v_cndmask_b32 v{vNm}, 0, v{vNm}, vcc")
        e(f"v_lshl_or_b32 v{vA}, v{vNm}, 5, v{vA}")
        e(f"v_cmp_ne_u32 s[{sAct}:{sAct+1}], 0, v{vA}")
        e(f"v_lshl_or_b32 v{vDesc}, v{vDesc}, 15, v{vA}")
        e("s_nop 1")
        e(f"s_bcnt1_i32_b64 s{sN}, s[{sAct}:{sAct+1}]")

        def fetch(dst):
            e(f"s_ff1_i32_b64 s{sI}, s[{sAct}:{sAct+1}]")
            e(f"s_bitset0_b64 s[{sAct}:{sAct+1}], s{sI}")
            e(f"v_readlane_b32 s{dst}, v{vDesc}, s{sI}")
            e(f"s_cmp_lt_i32 s{sI}, 0")
            e(f"s_cselect_b32 s{SK+2}, 0, s{SK+2}")
            e(f"s_cselect_b32 s{SV+2}, 0, s{SV+2}")
            e(f"s_cselect_b32 s{dst}, 0, s{dst}")
            e(f"s_and_b32 s{sOff}, s{dst}, 0xffff8000")

        if self.spec:
            e(f"s_mov_b64 s[{sMk[2]}:{sMk[2]+1}], s[{sAct}:{sAct+1}]")
            e(f"s_mov_b32 s{sT}, 0")
            for k in range(npu):
                fetch(sD[k])
                e(f"s_cmp_lg_u32 s{sOff}, s{sPred+k}")
                e(f"s_cselect_b32 s{sT}, 1, s{sT}")
                e(f"s_cmp_eq_u32 s{SK+2}, 0")
                e(f"s_cselect_b32 s{sT}, 1, s{sT}")
            e(f"s_cmp_eq_u32 s{sT}, 0")
            e("s_cbranch_scc1 L_spec_ok")
            e("s_waitcnt vmcnt(0)")
            e(f"s_mov_b64 s[{sAct}:{sAct+1}], s[{sMk[2]}:{sMk[2]+1}]")
            e(f"s_mov_b32 s{SK+2}, {KVBYTES}")
            e(f"s_mov_b32 s{SV+2}, {KVBYTES}")
        for p in range(NF):
            if p % 8 == 0:
                fetch(sD[p // 8])
            issue(p // 8, p % 8, sOff)
        if self.spec:
            lab("L_spec_ok")
        e(f"s_waitcnt vmcnt({NF})")
        e(f"s_cmp_eq_u32 s{sMk[0]}, 0")
        e("s_cbranch_scc1 L_q_ok")
        for k in range(16):
            e(f"v_cndmask_b32 v{vQ+k}, v{vQ+k}, 0, s[{sMk[0]}:{sMk[0]+1}]")
        lab("L_q_ok")
        self.stamp(1)
        e(f"s_cmp_eq_u32 s{sN}, 0")
        e("s_cbranch_scc1 L_epi")

        def wait_issue(slot, i):
            e(f"s_waitcnt vmcnt({NF-1})")
            p = i + NF
            k, ii = p // 8, p % 8
            if ii == 0:
                fetch(sD[k])
            issue((slot + k) % R, ii, sOff)

        lab("L_loop")
        for slot in range(R):
            so = slot * 8192
            self.force_m0 = True
            if not self.nocompute:
                e(f"v_bfe_u32 v{vT0}, s{sD[0]}, v{vShift}, 5")
                e(f"v_sub_u32 v{vT0}, v{vT0}, v{v4g}")
                for r in range(4):
                    e(f"v_cmp_lt_i32 s[{sMk[r]}:{sMk[r]+1}], {r}, v{vT0}")
                e("s_nop 0")
                for r in range(4):
                    e(f"v_cndmask_b32 v{vS+r}, v{vNeg}, 0, s[{sMk[r]}:{sMk[r]+1}]")
            for i in range(4):
                wait_issue(slot, i)
            if not self.nocompute:
                for c in range(4):
                    e(f"ds_read_b128 v[{vKf+4*c}:{vKf+4*c+3}], v{vLK+c} offset:{so}")
                for c in range(4):
                    e(f"s_waitcnt lgkmcnt({3-c})")
                    e(f"v_mfma_f32_16x16x32_bf16 v[{vS}:{vS+3}], v[{vKf+4*c}:{vKf+4*c+3}], v[{vQ+4*c}:{vQ+4*c+3}], v[{vS}:{vS+3}]")
                e("s_nop 7")
                e(f"v_max3_f32 v{vT0}, v{vS}, v{vS+1}, v{vS+2}")
                e(f"v_max3_f32 v{vT0}, v{vT0}, v{vS+3}, v{vM}")
                sk = f"L_skip{slot}"
                if self.skipmax:
                    e(f"v_cmp_gt_f32 vcc, v{vT0}, v{vM}")
                    e(f"s_cbranch_vccz {sk}")
                e(f"v_mov_b32 v{vT1}, v{vT0}")
                e("s_nop 1")
                e(f"v_permlane32_swap_b32 v{vT0}, v{vT1}")
                e("s_nop 0")
                e(f"v_max_f32 v{vT0}, v{vT0}, v{vT1}")
                e(f"v_mov_b32 v{vT1}, v{vT0}")
                e("s_nop 1")
                e(f"v_permlane16_swap_b32 v{vT0}, v{vT1}")
                e("s_nop 0")
                e(f"v_max_f32 v{vT0}, v{vT0}, v{vT1}")
                e(f"v_sub_f32 v{vA}, v{vM}, v{vT0}")
                e(f"v_mul_f32 v{vA}, s{sCs}, v{vA}")
                e(f"v_exp_f32 v{vA}, v{vA}")
                e(f"v_mov_b32 v{vM}, v{vT0}")
                e(f"v_mul_f32 v{vL}, v{vL}, v{vA}")
                for k in range(32):
                    e(f"v_mul_f32 v{vO+k}, v{vO+k}, v{vA}")
                lab(sk)
                e(f"v_mul_f32 v{vNm}, s{sCs}, v{vM}")
                for r in range(4):
                    e(f"v_fma_f32 v{vS+r}, v{vS+r}, s{sCs}, -v{vNm}")
                for r in range(4):
                    e(f"v_exp_f32 v{vS+r}, v{vS+r}")
                e("s_nop 0")
                e(f"v_cvt_pk_bf16_f32 v{vP}, v{vS}, v{vS+1}")
                e(f"v_cvt_pk_bf16_f32 v{vP+1}, v{vS+2}, v{vS+3}")
                e(f"v_add_f32 v{vT0}, v{vS}, v{vS+1}")
                e(f"v_add_f32 v{vT1}, v{vS+2}, v{vS+3}")
                e(f"v_add_f32 v{vL}, v{vL}, v{vT0}")
                e(f"v_add_f32 v{vL}, v{vL}, v{vT1}")
            for i in range(4, 8):
                wait_issue(slot, i)
            if not self.nocompute:
                for j in range(8):
                    e(f"ds_read_b64_tr_b16 v[{vVf+2*j}:{vVf+2*j+1}], v{vLV+j} offset:{so}")
                for j in range(8):
                    e(f"s_waitcnt lgkmcnt({7-j})")
                    e(f"v_mfma_f32_16x16x16_bf16 v[{vO+4*j}:{vO+4*j+3}], v[{vVf+2*j}:{vVf+2*j+1}], v[{vP}:{vP+1}], v[{vO+4*j}:{vO+4*j+3}]")
            kmax = (7 + NF) // 8
            for k in range(kmax):
                e(f"s_mov_b32 s{sD[k]}, s{sD[k+1]}")
            e(f"s_sub_u32 s{sN}, s{sN}, 1")
            e(f"s_cmp_eq_u32 s{sN}, 0")
            if slot < R - 1:
                e("s_cbranch_scc1 L_epi")
            else:
                e("s_cbranch_scc0 L_loop")
        lab("L_epi")
        self.stamp(2)
        e("s_waitcnt vmcnt(0)")
        e(f"v_and_b32 v{vT0}, 15, v{vLane}")
        e(f"v_mul_u32_u24 v{vT1}, 528, v{vT0}")
        e(f"v_lshl_add_u32 v{vT1}, v{v4g}, 2, v{vT1}")
        e(f"v_add_u32 v{vT1}, s{sBase}, v{vT1}")
        e(f"v_lshlrev_b32 v{vT2}, 2, v{vT0}")
        e(f"v_add_u32 v{vT2}, s{sBase}, v{vT2}")
        e(f"v_lshl_add_u32 v{vT3}, v{vT0}, 4, v{v4g}")
        e(f"v_add_u32 v{vT3}, s{sBase}, v{vT3}")
        e(f"v_mul_f32 v{vM}, s{sCs}, v{vM}")
        e("s_mov_b32 exec_lo, 0x00ff00ff")
        e("s_mov_b32 exec_hi, 0x00ff00ff")
        e("s_nop 4")
        for j in range(8):
            e(f"ds_write_b128 v{vT1}, v[{vO+4*j}:{vO+4*j+3}] offset:{64*j}")
        e(f"ds_write_b32 v{vT2}, v{vM} offset:4224")
        e(f"ds_write_b32 v{vT3}, v{vL} offset:4288")
        e("s_mov_b64 exec, -1")
        npass = 256 // (64 * W)
        e(f"v_lshrrev_b32 v{vT0}, 5, v0")
        e(f"v_and_b32 v{vT1}, 31, v0")
        e(f"v_mul_u32_u24 v{vT2}, 528, v{vT0}")
        e(f"v_lshl_add_u32 v{vT2}, v{vT1}, 4, v{vT2}")
        e(f"v_lshlrev_b32 v{vT3}, 2, v{vT0}")
        e(f"v_lshlrev_b32 v{vA}, 4, v{vT0}")
        e(f"v_lshlrev_b32 v{vNm}, 4, v0")
        e(f"v_lshlrev_b32 v{vDesc}, 3, v{vT0}")
        e(f"v_cmp_eq_u32 s[{sMk[0]}:{sMk[0]+1}], 0, v{vT1}")
        e(f"s_lshl_b32 s{sT}, s{sKVH}, 5")
        e(f"s_add_u32 s{sT}, s{sT}, s{sC}")
        e(f"s_lshl_b32 s{sT2}, s{sT}, 7")
        e(f"s_add_u32 s{sT2}, s{sT2}, {ML_OFF}")
        e(f"s_lshl_b32 s{sT}, s{sT}, 12")
        e(f"s_mov_b32 s{sI}, 0xfffffffe")
        e("s_waitcnt lgkmcnt(0)")
        e("s_barrier")
        qs = 2 * W
        for ps in range(npass):
            rO = vO; rL = vO + 4 * W; rM = vKf
            for w in range(W):
                e(f"ds_read_b32 v{rM+w}, v{vT3} offset:{w*ring + 4224 + ps*qs*4}")
            for w in range(W):
                e(f"ds_read_b128 v[{rL+4*w}:{rL+4*w+3}], v{vA} offset:{w*ring + 4288 + ps*qs*16}")
            for w in range(W):
                e(f"ds_read_b128 v[{rO+4*w}:{rO+4*w+3}], v{vT2} offset:{w*ring + ps*qs*528}")
            e(f"s_waitcnt lgkmcnt({2*W})")
            mm = vVf
            e(f"v_max_f32 v{mm}, v{rM}, v{rM+1}")
            for w in range(2, W):
                e(f"v_max_f32 v{mm}, v{mm}, v{rM+w}")
            for w in range(W):
                e(f"v_sub_f32 v{rM+w}, v{rM+w}, v{mm}")
            for w in range(W):
                e(f"v_exp_f32 v{rM+w}, v{rM+w}")
            e(f"s_waitcnt lgkmcnt({W})")
            for w in range(W):
                e(f"v_add_f32 v{rL+4*w}, v{rL+4*w}, v{rL+4*w+1}")
                e(f"v_add_f32 v{rL+4*w+2}, v{rL+4*w+2}, v{rL+4*w+3}")
                e(f"v_add_f32 v{rL+4*w}, v{rL+4*w}, v{rL+4*w+2}")
            e(f"v_mul_f32 v{mm+1}, v{rL}, v{rM}")
            for w in range(1, W):
                e(f"v_fmac_f32 v{mm+1}, v{rL+4*w}, v{rM+w}")
            e("s_waitcnt lgkmcnt(0)")
            res = vVf + 4
            for k in range(4):
                e(f"v_mul_f32 v{res+k}, v{rO+k}, v{rM}")
            for w in range(1, W):
                for k in range(4):
                    e(f"v_fmac_f32 v{res+k}, v{rO+4*w+k}, v{rM+w}")
            for k in range(4):
                e(f"v_min_u32 v{res+k}, s{sI}, v{res+k}")
            e(f"v_min_u32 v{mm}, s{sI}, v{mm}")
            e(f"v_min_u32 v{mm+1}, s{sI}, v{mm+1}")
            e(f"buffer_store_dwordx4 v[{res}:{res+3}], v{vNm}, s[{SWS}:{SWS+3}], s{sT} offen offset:{ps*64*W*16} sc1")
            e(f"s_mov_b64 exec, s[{sMk[0]}:{sMk[0]+1}]")
            e(f"buffer_store_dwordx2 v[{mm}:{mm+1}], v{vDesc}, s[{SWS}:{SWS+3}], s{sT2} offen offset:{ps*qs*8} sc1")
            e("s_mov_b64 exec, -1")
            e("s_nop 1")
        self.stamp(3)
        if self.stamps:
            e("s_waitcnt vmcnt(0)")
            self.stamp(4)
        self.flush_stamps()
        e("s_endpgm")

        lab("L_helper")
        hv = vO
        e("s_waitcnt lgkmcnt(0)")
        srd(SWS, 22, WS_REC)
        srd(SD, 20, 256)
        srd(SO, 18, 16384)
        self.stamp(0)
        e(f"s_lshl_b32 s{sT}, s{sKVH}, 5")
        e(f"s_add_u32 s{sT}, s{sT}, s{sC}")
        e(f"s_lshl_b32 s{sT2}, s{sT}, 7")
        e(f"s_add_u32 s{sT2}, s{sT2}, {ML_OFF}")
        e(f"s_lshl_b32 s{sT}, s{sT}, 12")
        if self.nohelp:
            e("s_barrier")
            self.flush_stamps()
            e("s_endpgm")
        for k in range(4):
            e(f"v_mov_b32 v{hv+k}, -1")
        e(f"v_lshlrev_b32 v{vT0}, 4, v{vLane}")
        for i in range(4):
            e(f"buffer_store_dwordx4 v[{hv}:{hv+3}], v{vT0}, s[{SWS}:{SWS+3}], s{sT} offen offset:{1024*i} sc1")
        e("s_mov_b64 exec, 0xff")
        e(f"buffer_store_dwordx4 v[{hv}:{hv+3}], v{vT0}, s[{SWS}:{SWS+3}], s{sT2} offen sc1")
        e("s_mov_b64 exec, -1")
        e(f"s_lshl_b32 s{sI}, s{sKVH}, 2")
        e(f"v_mov_b32 v{vT1}, s{sI}")
        e(f"v_mov_b32 v{vT2}, 1")
        e("s_waitcnt vmcnt(0)")
        e("s_mov_b64 exec, 1")
        e(f"buffer_atomic_add v{vT2}, v{vT1}, s[{SD}:{SD+3}], 0 offen sc1")
        e("s_mov_b64 exec, -1")
        e(f"v_lshrrev_b32 v{vT0}, 3, v{vLane}")
        e(f"v_and_b32 v{vT2}, 7, v{vLane}")
        e(f"v_lshlrev_b32 v{vA}, 12, v{vT0}")
        e(f"v_lshl_add_u32 v{vA}, v{vT2}, 4, v{vA}")
        e(f"v_lshlrev_b32 v{vNm}, 7, v{vT0}")
        e(f"s_lshl_b32 s{sT}, s{sKVH}, 17")
        e(f"s_lshl_b32 s{sT2}, s{sC}, 7")
        e(f"s_add_u32 s{sT}, s{sT}, s{sT2}")
        for i in range(4):
            e(f"s_add_u32 s{sD[i]}, s{sT}, {i*8*4096}")
        e(f"s_lshl_b32 s{sT}, s{sKVH}, 12")
        e(f"s_lshr_b32 s{sT2}, s{sC}, 2")
        e(f"s_lshl_b32 s{sOff}, s{sT2}, 3")
        e(f"s_add_u32 s{sT}, s{sT}, s{sOff}")
        e(f"s_add_u32 s{sT}, s{sT}, {ML_OFF}")
        e(f"s_lshr_b32 s{sOff}, s{sT2}, 2")
        e(f"s_lshl_b32 s{sOff}, s{sOff}, 13")
        e(f"s_and_b32 s{sT2}, s{sT2}, 3")
        e(f"s_lshl_b32 s{sT2}, s{sT2}, 8")
        e(f"s_add_u32 s{sOff}, s{sOff}, s{sT2}")
        e(f"s_lshl_b32 s{sT2}, s{sKVH}, 10")
        e(f"s_add_u32 s{sOff}, s{sOff}, s{sT2}")
        e(f"s_and_b32 s{sT2}, s{sC}, 3")
        e(f"s_lshl_b32 s{sT2}, s{sT2}, 6")
        e(f"s_add_u32 s{sOff}, s{sOff}, s{sT2}")
        e(f"v_lshlrev_b32 v{vDesc}, 3, v{vT2}")
        e(f"s_mov_b32 s{sN}, {POLL_MAX}")
        lab("L_wait_clear")
        e(f"buffer_load_dword v{vT3}, v{vT1}, s[{SD}:{SD+3}], 0 offen sc1")
        e("s_waitcnt vmcnt(0)")
        e(f"v_readfirstlane_b32 s{sI}, v{vT3}")
        e(f"s_cmp_ge_u32 s{sI}, 32")
        e("s_cbranch_scc1 L_cleared")
        e(f"s_sleep {self.slp}")
        e(f"s_sub_u32 s{sN}, s{sN}, 1")
        e(f"s_cmp_lg_u32 s{sN}, 0")
        e("s_cbranch_scc1 L_wait_clear")
        lab("L_cleared")
        self.stamp(1)
        e("s_barrier")
        self.stamp(2)
        rO = hv; rML = hv + 16
        e(f"s_mov_b32 s{sN}, {POLL_MAX}")
        lab("L_poll")
        for i in range(4):
            e(f"buffer_load_dwordx2 v[{rML+2*i}:{rML+2*i+1}], v{vNm}, s[{SWS}:{SWS+3}], s{sT} offen offset:{1024*i} sc1")
        for i in range(4):
            e(f"buffer_load_dwordx4 v[{rO+4*i}:{rO+4*i+3}], v{vA}, s[{SWS}:{SWS+3}], s{sD[i]} offen sc1")
        e("s_waitcnt vmcnt(0)")
        e(f"v_max3_u32 v{vT0}, v{rO}, v{rO+1}, v{rO+2}")
        for k in range(3, 23, 2):
            e(f"v_max3_u32 v{vT0}, v{vT0}, v{rO+k}, v{rO+k+1}")
        e(f"v_max_u32 v{vT0}, v{vT0}, v{rO+23}")
        e(f"v_cmp_eq_u32 vcc, -1, v{vT0}")
        e("s_cbranch_vccz L_ready")
        e("s_sleep 1")
        e(f"s_sub_u32 s{sN}, s{sN}, 1")
        e(f"s_cmp_lg_u32 s{sN}, 0")
        e("s_cbranch_scc1 L_poll")
        lab("L_ready")
        self.stamp(3)

        def xreduce(r, tmp, op):
            e("s_nop 1")
            e(f"{op}_dpp v{r}, v{r}, v{r} row_ror:8 row_mask:0xf bank_mask:0xf")
            e(f"v_mov_b32 v{tmp}, v{r}")
            e("s_nop 1")
            e(f"v_permlane16_swap_b32 v{r}, v{tmp}")
            e("s_nop 0")
            e(f"{op} v{r}, v{r}, v{tmp}")
            e(f"v_mov_b32 v{tmp}, v{r}")
            e("s_nop 1")
            e(f"v_permlane32_swap_b32 v{r}, v{tmp}")
            e("s_nop 0")
            e(f"{op} v{r}, v{r}, v{tmp}")
        e(f"v_max3_f32 v{vT0}, v{rML}, v{rML+2}, v{rML+4}")
        e(f"v_max_f32 v{vT0}, v{vT0}, v{rML+6}")
        xreduce(vT0, vT1, "v_max_f32")
        for i in range(4):
            e(f"v_sub_f32 v{rML+2*i}, v{rML+2*i}, v{vT0}")
        for i in range(4):
            e(f"v_exp_f32 v{rML+2*i}, v{rML+2*i}")
        e("s_nop 0")
        acc = vKf
        for k in range(4):
            e(f"v_mul_f32 v{acc+k}, v{rO+k}, v{rML}")
        e(f"v_mul_f32 v{acc+4}, v{rML+1}, v{rML}")
        for i in range(1, 4):
            for k in range(4):
                e(f"v_fmac_f32 v{acc+k}, v{rO+4*i+k}, v{rML+2*i}")
            e(f"v_fmac_f32 v{acc+4}, v{rML+2*i+1}, v{rML+2*i}")
        tm = vKf + 8
        e("s_nop 1")
        for k in range(5):
            e(f"v_add_f32_dpp v{acc+k}, v{acc+k}, v{acc+k} row_ror:8 row_mask:0xf bank_mask:0xf")
        for sw in ("v_permlane16_swap_b32", "v_permlane32_swap_b32"):
            for k in range(5):
                e(f"v_mov_b32 v{tm+k}, v{acc+k}")
            e("s_nop 1")
            for k in range(5):
                e(f"{sw} v{acc+k}, v{tm+k}")
            e("s_nop 0")
            for k in range(5):
                e(f"v_add_f32 v{acc+k}, v{acc+k}, v{tm+k}")
        e(f"v_rcp_f32 v{acc+4}, v{acc+4}")
        e("s_nop 0")
        for k in range(4):
            e(f"v_mul_f32 v{acc+k}, v{acc+k}, v{acc+4}")
        e(f"v_cvt_pk_bf16_f32 v{tm}, v{acc}, v{acc+1}")
        e(f"v_cvt_pk_bf16_f32 v{tm+1}, v{acc+2}, v{acc+3}")
        e("s_mov_b64 exec, 0xff")
        e(f"buffer_store_dwordx2 v[{tm}:{tm+1}], v{vDesc}, s[{SO}:{SO+3}], s{sOff} offen")
        e("s_mov_b64 exec, -1")
        if self.stamps:
            e("s_waitcnt vmcnt(0)")
            self.stamp(4)
        self.flush_stamps()
        lab("L_exit")
        e("s_endpgm")

        nvg = (self.nv + 7) // 8 * 8
        out = HEADER
        out += f"; @launch grid=(256,1,1) block=({64*(W+1)},1,1) lds={lds}\n"
        out += '.amdgcn_target "amdgcn-amd-amdhsa--gfx950"\n.text\n'
        out += f".globl {NAME}_kernel\n.p2align 8\n.type {NAME}_kernel,@function\n{NAME}_kernel:\n"
        out += "\n".join(self.lines) + "\n"
        out += f""".section .rodata,"a"
.p2align 6
.amdhsa_kernel {NAME}_kernel
  .amdhsa_next_free_vgpr {nvg}
  .amdhsa_next_free_sgpr 96
  .amdhsa_accum_offset {nvg}
  .amdhsa_group_segment_fixed_size 0
  .amdhsa_kernarg_size 64
  .amdhsa_user_sgpr_count 2
  .amdhsa_user_sgpr_kernarg_segment_ptr 1
  .amdhsa_system_sgpr_workgroup_id_x 1
.end_amdhsa_kernel
"""
        return out


if __name__ == "__main__":
    path = sys.argv[1]
    kw = {}
    for a in sys.argv[2:]:
        k, v = a.split("=")
        kw[k] = int(v)
    open(path, "w").write(Gen(**kw).build())
```

```python
import sys, math, struct

NAME = "standalone__paged_block_table_kv_radixattention__decode"

HEADER = """; Kernarg layout for this problem (64 bytes, ptrs only, base s[0:1]):
"""

def f2u(x):
    return struct.unpack("<I", struct.pack("<f", x))[0]

KVBYTES = 3072 * 32768
CSCALE = (128 ** -0.5) * math.log2(math.e)
ML_OFF = 0x100000
STAMP_OFF = 0x400000
WS_REC = 0x800000
POLL_MAX = 200000


class Gen:
    def __init__(self, W=4, NF=6, R=2, XM=0, stamps=0, nocompute=0, spec=1, skipmax=1, nt=1, nohelp=0, slp=16):
        self.W, self.NF, self.R, self.XM = W, NF, R, XM
        self.stamps, self.nocompute, self.spec, self.skipmax = stamps, nocompute, spec, skipmax
        self.nt, self.nohelp, self.slp = nt, nohelp, slp
        assert NF <= 8 * (R - 1)
        self.NW = 32 * W
        self.HL = 2048 // self.NW
        assert 2 * self.HL <= 64
        n0 = (26191 + 15) // 16
        self.S = (-(n0 % self.NW) + 1024) % self.NW
        self.lines = []
        self.nv = 0
        self.uid = 0

    def e(self, s):
        self.lines.append("    " + s)

    def lab(self, s):
        self.lines.append(s + ":")

    def valloc(self, n=1, align=1):
        self.nv = (self.nv + align - 1) // align * align
        r = self.nv
        self.nv += n
        return r

    def stamp(self, idx):
        if not self.stamps:
            return
        e = self.e
        e("s_memrealtime s[90:91]")
        e("s_waitcnt lgkmcnt(0)")
        e(f"v_mov_b32 v{self.vSt[idx]}, s90")

    def flush_stamps(self):
        if not self.stamps:
            return
        e = self.e
        e("s_mov_b64 exec, 1")
        e("s_lshl_b32 s90, s2, 3")
        e("s_add_u32 s90, s90, s3")
        e("s_lshl_b32 s90, s90, 5")
        e(f"s_add_u32 s90, s90, {STAMP_OFF}")
        e(f"v_mov_b32 v{self.vT0}, 0")
        if self.stamps == 2:
            e("s_mov_b32 s52, s20")
            e("s_mov_b32 s53, s21")
            e("s_mov_b32 s54, 256")
            e("s_mov_b32 s55, 0x00020000")
            e(f"v_not_b32 v{self.vSt[6]}, v{self.vSt[7]}")
            for k, i in enumerate([6, 7, 0, 1, 2, 3, 4]):
                e(f"buffer_atomic_umax v{self.vSt[i]}, v{self.vT0}, s[52:55], 0 offen offset:{32 + 4*k} sc1")
        else:
          for i in range(8):
            e(f"buffer_store_dword v{self.vSt[i]}, v{self.vT0}, s[44:47], s90 offen offset:{4*i}")
        e("s_mov_b64 exec, -1")

    def build(self):
        W, NF, R = self.W, self.NF, self.R
        NW, HL = self.NW, self.HL
        e, lab = self.e, self.lab
        ring = R * 8192
        NT = {0: '', 1: 'nt', 2: 'sc1', 3: 'sc1 nt', 4: 'sc0 sc1', 5: 'sc0 sc1 nt', 6: 'sc0 nt'}[self.nt]
        lds = W * ring
        self.nv = 1
        vLane = self.valloc()
        vT0 = self.valloc(); vT1 = self.valloc(); vT2 = self.valloc(); vT3 = self.valloc()
        self.vT0 = vT0
        vM = self.valloc(); vL = self.valloc(); vDesc = self.valloc()
        vShift = self.valloc(); v4g = self.valloc(); vNeg = self.valloc()
        vA = self.valloc(); vNm = self.valloc()
        vS = self.valloc(4, 4)
        vP = self.valloc(2, 2)
        vOffK = self.valloc(4); vOffV = self.valloc(4)
        vLK = self.valloc(4); vLV = self.valloc(8)
        vQ = self.valloc(16, 4)
        vKf = self.valloc(16, 4)
        vVf = self.valloc(16, 4)
        vO = self.valloc(32, 4)
        self.vSt = [self.valloc() for _ in range(8)] if self.stamps else None
        sKVH, sC, sWI = 4, 5, 6
        sCs = 7
        SK, SV, SQ, SB, SWS, SO, SD = 24, 28, 32, 36, 44, 48, 52
        sCtx0, sCtx1 = 40, 41
        sAct = 56
        sN = 58
        sI = 59
        sD = [60, 61, 62, 63]
        sOff = 64
        sBase = 65
        sMk = [66, 68, 70, 72]
        sH = 74
        sT = 76; sT2 = 77
        sPred = 78

        def srd(d, p, size):
            e(f"s_mov_b32 s{d}, s{p}")
            e(f"s_mov_b32 s{d+1}, s{p+1}")
            e(f"s_mov_b32 s{d+2}, {size}")
            e(f"s_mov_b32 s{d+3}, 0x00020000")

        e("s_cmp_ge_u32 s2, 256")
        e("s_cbranch_scc1 L_exit")
        if self.stamps:
            for i in range(8):
                e(f"v_mov_b32 v{self.vSt[i]}, 0")
            self.stamp(7)
        e("s_load_dwordx16 s[8:23], s[0:1], 0")
        e(f"v_lshrrev_b32 v{vT0}, 6, v0")
        e(f"v_and_b32 v{vLane}, 63, v0")
        e(f"v_readfirstlane_b32 s3, v{vT0}")
        if self.XM == 0:
            e(f"s_and_b32 s{sKVH}, s2, 7")
        else:
            e(f"s_lshr_b32 s{sT}, s2, 3")
            e(f"s_add_u32 s{sT}, s{sT}, s2")
            e(f"s_and_b32 s{sKVH}, s{sT}, 7")
        e(f"s_lshr_b32 s{sC}, s2, 3")
        e(f"s_mov_b32 s{sCs}, {hex(f2u(CSCALE))}")
        e(f"s_cmp_eq_u32 s3, {W}")
        e("s_cbranch_scc1 L_helper")
        e(f"s_lshl_b32 s{sWI}, s3, 5")
        e(f"s_add_u32 s{sWI}, s{sWI}, s{sC}")
        e(f"s_mul_i32 s{sBase}, s3, {ring}")
        e(f"s_lshl_b32 s{sT}, s{sKVH}, 8")
        e(f"v_lshrrev_b32 v{vT0}, 4, v{vLane}")
        e(f"v_and_b32 v{vT1}, 15, v{vLane}")
        for i in range(4):
            e(f"v_add_u32 v{vT2}, {4*i}, v{vT0}")
            e(f"v_xor_b32 v{vT3}, v{vT2}, v{vT1}")
            e(f"v_lshlrev_b32 v{vT3}, 4, v{vT3}")
            e(f"v_lshl_add_u32 v{vT3}, v{vT2}, 11, v{vT3}")
            e(f"v_add_u32 v{vT3}, s{sT}, v{vT3}")
            e(f"v_subrev_u32 v{vOffK+i}, {1024*i}, v{vT3}")
            e(f"v_and_b32 v{vT3}, 7, v{vT2}")
            e(f"v_lshlrev_b32 v{vT3}, 1, v{vT3}")
            e(f"v_xor_b32 v{vT3}, v{vT3}, v{vT1}")
            e(f"v_lshlrev_b32 v{vT3}, 4, v{vT3}")
            e(f"v_lshl_add_u32 v{vT3}, v{vT2}, 11, v{vT3}")
            e(f"v_add_u32 v{vT3}, s{sT}, v{vT3}")
            e(f"v_subrev_u32 v{vOffV+i}, {1024*i}, v{vT3}")
        e(f"s_add_u32 s{sT2}, s{sWI}, {self.S}")
        e(f"s_and_b32 s{sT2}, s{sT2}, {NW-1}")
        e(f"v_mov_b32 v{vT2}, s{sWI}")
        e(f"v_mov_b32 v{vT3}, s{sT2}")
        e(f"v_cmp_le_u32 s[{sH}:{sH+1}], {HL}, v{vLane}")
        e(f"v_and_b32 v{vDesc}, {HL-1}, v{vLane}")
        e(f"v_mul_u32_u24 v{vDesc}, {NW}, v{vDesc}")
        e(f"v_cndmask_b32 v{vT2}, v{vT2}, v{vT3}, s[{sH}:{sH+1}]")
        e(f"v_add_u32 v{vDesc}, v{vDesc}, v{vT2}")
        if 2 * HL < 64:
            e(f"v_cmp_le_u32 vcc, {2*HL}, v{vLane}")
            e(f"v_mov_b32 v{vT3}, 4096")
            e("s_nop 0")
            e(f"v_cndmask_b32 v{vDesc}, v{vDesc}, v{vT3}, vcc")
        e(f"v_lshlrev_b32 v{vA}, 2, v{vDesc}")
        e(f"v_bfe_u32 v{vT2}, v{vLane}, 2, 1")
        e(f"v_mul_u32_u24 v{vShift}, 5, v{vT2}")
        e(f"v_lshlrev_b32 v{vT2}, 13, v{vT2}")
        e(f"v_and_b32 v{vT3}, 3, v{vLane}")
        e(f"v_lshl_add_u32 v{vT2}, v{vT3}, 8, v{vT2}")
        e(f"v_lshl_add_u32 v{vT2}, v{vT0}, 4, v{vT2}")
        e(f"s_lshl_b32 s{sT}, s{sKVH}, 10")
        e(f"v_add_u32 v{vNm}, s{sT}, v{vT2}")
        e(f"s_mov_b32 s{sT2}, 8192")
        e("s_waitcnt lgkmcnt(0)")
        e(f"s_load_dwordx2 s[{sCtx0}:{sCtx1}], s[16:17], 0")
        srd(SB, 14, 16384)
        srd(SK, 10, KVBYTES)
        srd(SV, 12, KVBYTES)
        srd(SQ, 8, 16384)
        def issue(slot, i, soff):
            if i == 0 or i == 4 or self.force_m0:
                off = slot * 8192 + (4096 if i >= 4 else 0)
                e(f"s_add_u32 m0, s{sBase}, {off}")
                e("s_nop 0")
                self.force_m0 = False
            if i < 4:
                e(f"buffer_load_dwordx4 v{vOffK+i}, s[{SK}:{SK+3}], s{soff} offen offset:{1024*i} {NT} lds")
            else:
                e(f"buffer_load_dwordx4 v{vOffV+i-4}, s[{SV}:{SV+3}], s{soff} offen offset:{1024*(i-4)} {NT} lds")
        self.force_m0 = False
        e(f"buffer_load_dword v{vT2}, v{vA}, s[{SB}:{SB+3}], 0 offen")
        e(f"buffer_load_dword v{vT3}, v{vA}, s[{SB}:{SB+3}], s{sT2} offen")
        for c in range(4):
            e(f"buffer_load_dwordx4 v[{vQ+4*c}:{vQ+4*c+3}], v{vNm}, s[{SQ}:{SQ+3}], 0 offen offset:{64*c}")
        npu = (NF + 7) // 8
        if self.spec:
            for k in range(npu):
                e(f"s_add_u32 s{sPred+k}, s{sWI}, {NW*k}")
                e(f"s_lshl_b32 s{sPred+k}, s{sPred+k}, 15")
            for p in range(NF):
                issue(p // 8, p % 8, sPred + p // 8)
        srd(SWS, 22, WS_REC)
        e(f"v_xor_b32 v{vA}, v{vT0}, v{vT1}")
        for c in range(4):
            e(f"v_xor_b32 v{vNm}, {4*c}, v{vA}")
            e(f"v_lshlrev_b32 v{vNm}, 4, v{vNm}")
            e(f"v_lshl_add_u32 v{vNm}, v{vT1}, 8, v{vNm}")
            e(f"v_add_u32 v{vLK+c}, s{sBase}, v{vNm}")
        e(f"v_lshlrev_b32 v{v4g}, 2, v{vT0}")
        e(f"v_lshrrev_b32 v{vA}, 2, v{vLane}")
        e(f"v_and_b32 v{vNm}, 3, v{vLane}")
        e(f"v_lshlrev_b32 v{vNm}, 3, v{vNm}")
        e(f"v_lshl_add_u32 v{vNm}, v{vA}, 8, v{vNm}")
        e(f"v_add_u32 v{vNm}, s{sBase}, v{vNm}")
        e(f"v_add_u32 v{vNm}, 4096, v{vNm}")
        e(f"v_and_b32 v{vA}, 7, v{vA}")
        for j in range(8):
            e(f"v_xor_b32 v{vLV+j}, {j}, v{vA}")
            e(f"v_lshl_add_u32 v{vLV+j}, v{vLV+j}, 5, v{vNm}")
        e(f"v_mov_b32 v{vNeg}, {hex(f2u(-2e30))}")
        e(f"v_mov_b32 v{vM}, {hex(f2u(-1e30))}")
        e(f"v_mov_b32 v{vL}, 0")
        for k in range(32):
            e(f"v_mov_b32 v{vO+k}, 0")
        self.stamp(0)
        e("s_waitcnt lgkmcnt(0)")
        e(f"s_cmp_gt_i32 s{sCtx0}, 0")
        e(f"s_cselect_b32 s{sMk[0]}, 0, 0x0f0f0f0f")
        e(f"s_cselect_b32 s{sCtx0}, s{sCtx0}, 32768")
        e(f"s_cmp_gt_i32 s{sCtx1}, 0")
        e(f"s_cselect_b32 s{sMk[0]+1}, 0, 0xf0f0f0f0")
        e(f"s_cselect_b32 s{sCtx1}, s{sCtx1}, 32768")
        e(f"s_or_b32 s{sMk[0]}, s{sMk[0]}, s{sMk[0]+1}")
        e(f"s_mov_b32 s{sMk[0]+1}, s{sMk[0]}")
        e(f"s_min_i32 s{sCtx0}, s{sCtx0}, 32768")
        e(f"s_min_i32 s{sCtx1}, s{sCtx1}, 32768")
        e(f"v_lshlrev_b32 v{vDesc}, 4, v{vDesc}")
        e(f"v_sub_u32 v{vA}, s{sCtx0}, v{vDesc}")
        e(f"v_sub_u32 v{vNm}, s{sCtx1}, v{vDesc}")
        e(f"v_med3_i32 v{vA}, v{vA}, 0, 16")
        e(f"v_med3_i32 v{vNm}, v{vNm}, 0, 16")
        e(f"v_cmp_lt_u32 s[{sMk[1]}:{sMk[1]+1}], 0, v{vA}")
        e(f"s_waitcnt vmcnt({(NF if self.spec else 0) + 4})")
        e(f"v_cmp_eq_u32 vcc, v{vT2}, v{vT3}")
        e(f"v_cndmask_b32 v{vDesc}, v{vT2}, v{vT3}, s[{sH}:{sH+1}]")
        e(f"v_cndmask_b32 v{vA}, v{vA}, 0, s[{sH}:{sH+1}]")
        e(f"s_and_b64 vcc, vcc, s[{sMk[1]}:{sMk[1]+1}]")
        e(f"s_xor_b64 vcc, vcc, s[{sH}:{sH+1}]")
        e(f"v_cndmask_b32 v{vNm}, 0, v{vNm}, vcc")
        e(f"v_lshl_or_b32 v{vA}, v{vNm}, 5, v{vA}")
        e(f"v_cmp_ne_u32 s[{sAct}:{sAct+1}], 0, v{vA}")
        e(f"v_lshl_or_b32 v{vDesc}, v{vDesc}, 15, v{vA}")
        e("s_nop 1")
        e(f"s_bcnt1_i32_b64 s{sN}, s[{sAct}:{sAct+1}]")

        def fetch(dst):
            e(f"s_ff1_i32_b64 s{sI}, s[{sAct}:{sAct+1}]")
            e(f"s_bitset0_b64 s[{sAct}:{sAct+1}], s{sI}")
            e(f"v_readlane_b32 s{dst}, v{vDesc}, s{sI}")
            e(f"s_cmp_lt_i32 s{sI}, 0")
            e(f"s_cselect_b32 s{SK+2}, 0, s{SK+2}")
            e(f"s_cselect_b32 s{SV+2}, 0, s{SV+2}")
            e(f"s_cselect_b32 s{dst}, 0, s{dst}")
            e(f"s_and_b32 s{sOff}, s{dst}, 0xffff8000")

        if self.spec:
            e(f"s_mov_b64 s[{sMk[2]}:{sMk[2]+1}], s[{sAct}:{sAct+1}]")
            e(f"s_mov_b32 s{sT}, 0")
            for k in range(npu):
                fetch(sD[k])
                e(f"s_cmp_lg_u32 s{sOff}, s{sPred+k}")
                e(f"s_cselect_b32 s{sT}, 1, s{sT}")
                e(f"s_cmp_eq_u32 s{SK+2}, 0")
                e(f"s_cselect_b32 s{sT}, 1, s{sT}")
            e(f"s_cmp_eq_u32 s{sT}, 0")
            e("s_cbranch_scc1 L_spec_ok")
            e("s_waitcnt vmcnt(0)")
            e(f"s_mov_b64 s[{sAct}:{sAct+1}], s[{sMk[2]}:{sMk[2]+1}]")
            e(f"s_mov_b32 s{SK+2}, {KVBYTES}")
            e(f"s_mov_b32 s{SV+2}, {KVBYTES}")
        for p in range(NF):
            if p % 8 == 0:
                fetch(sD[p // 8])
            issue(p // 8, p % 8, sOff)
        if self.spec:
            lab("L_spec_ok")
        e(f"s_waitcnt vmcnt({NF})")
        e(f"s_cmp_eq_u32 s{sMk[0]}, 0")
        e("s_cbranch_scc1 L_q_ok")
        for k in range(16):
            e(f"v_cndmask_b32 v{vQ+k}, v{vQ+k}, 0, s[{sMk[0]}:{sMk[0]+1}]")
        lab("L_q_ok")
        self.stamp(1)
        e(f"s_cmp_eq_u32 s{sN}, 0")
        e("s_cbranch_scc1 L_epi")

        def wait_issue(slot, i):
            e(f"s_waitcnt vmcnt({NF-1})")
            p = i + NF
            k, ii = p // 8, p % 8
            if ii == 0:
                fetch(sD[k])
            issue((slot + k) % R, ii, sOff)

        lab("L_loop")
        for slot in range(R):
            so = slot * 8192
            self.force_m0 = True
            if not self.nocompute:
                e(f"v_bfe_u32 v{vT0}, s{sD[0]}, v{vShift}, 5")
                e(f"v_sub_u32 v{vT0}, v{vT0}, v{v4g}")
                for r in range(4):
                    e(f"v_cmp_lt_i32 s[{sMk[r]}:{sMk[r]+1}], {r}, v{vT0}")
                e("s_nop 0")
                for r in range(4):
                    e(f"v_cndmask_b32 v{vS+r}, v{vNeg}, 0, s[{sMk[r]}:{sMk[r]+1}]")
            for i in range(4):
                wait_issue(slot, i)
            if not self.nocompute:
                for c in range(4):
                    e(f"ds_read_b128 v[{vKf+4*c}:{vKf+4*c+3}], v{vLK+c} offset:{so}")
                for c in range(4):
                    e(f"s_waitcnt lgkmcnt({3-c})")
                    e(f"v_mfma_f32_16x16x32_bf16 v[{vS}:{vS+3}], v[{vKf+4*c}:{vKf+4*c+3}], v[{vQ+4*c}:{vQ+4*c+3}], v[{vS}:{vS+3}]")
                e("s_nop 7")
                e(f"v_max3_f32 v{vT0}, v{vS}, v{vS+1}, v{vS+2}")
                e(f"v_max3_f32 v{vT0}, v{vT0}, v{vS+3}, v{vM}")
                sk = f"L_skip{slot}"
                if self.skipmax:
                    e(f"v_cmp_gt_f32 vcc, v{vT0}, v{vM}")
                    e(f"s_cbranch_vccz {sk}")
                e(f"v_mov_b32 v{vT1}, v{vT0}")
                e("s_nop 1")
                e(f"v_permlane32_swap_b32 v{vT0}, v{vT1}")
                e("s_nop 0")
                e(f"v_max_f32 v{vT0}, v{vT0}, v{vT1}")
                e(f"v_mov_b32 v{vT1}, v{vT0}")
                e("s_nop 1")
                e(f"v_permlane16_swap_b32 v{vT0}, v{vT1}")
                e("s_nop 0")
                e(f"v_max_f32 v{vT0}, v{vT0}, v{vT1}")
                e(f"v_sub_f32 v{vA}, v{vM}, v{vT0}")
                e(f"v_mul_f32 v{vA}, s{sCs}, v{vA}")
                e(f"v_exp_f32 v{vA}, v{vA}")
                e(f"v_mov_b32 v{vM}, v{vT0}")
                e(f"v_mul_f32 v{vL}, v{vL}, v{vA}")
                for k in range(32):
                    e(f"v_mul_f32 v{vO+k}, v{vO+k}, v{vA}")
                lab(sk)
                e(f"v_mul_f32 v{vNm}, s{sCs}, v{vM}")
                for r in range(4):
                    e(f"v_fma_f32 v{vS+r}, v{vS+r}, s{sCs}, -v{vNm}")
                for r in range(4):
                    e(f"v_exp_f32 v{vS+r}, v{vS+r}")
                e("s_nop 0")
                e(f"v_cvt_pk_bf16_f32 v{vP}, v{vS}, v{vS+1}")
                e(f"v_cvt_pk_bf16_f32 v{vP+1}, v{vS+2}, v{vS+3}")
                e(f"v_add_f32 v{vT0}, v{vS}, v{vS+1}")
                e(f"v_add_f32 v{vT1}, v{vS+2}, v{vS+3}")
                e(f"v_add_f32 v{vL}, v{vL}, v{vT0}")
                e(f"v_add_f32 v{vL}, v{vL}, v{vT1}")
            for i in range(4, 8):
                wait_issue(slot, i)
            if not self.nocompute:
                for j in range(8):
                    e(f"ds_read_b64_tr_b16 v[{vVf+2*j}:{vVf+2*j+1}], v{vLV+j} offset:{so}")
                for j in range(8):
                    e(f"s_waitcnt lgkmcnt({7-j})")
                    e(f"v_mfma_f32_16x16x16_bf16 v[{vO+4*j}:{vO+4*j+3}], v[{vVf+2*j}:{vVf+2*j+1}], v[{vP}:{vP+1}], v[{vO+4*j}:{vO+4*j+3}]")
            kmax = (7 + NF) // 8
            for k in range(kmax):
                e(f"s_mov_b32 s{sD[k]}, s{sD[k+1]}")
            e(f"s_sub_u32 s{sN}, s{sN}, 1")
            e(f"s_cmp_eq_u32 s{sN}, 0")
            if slot < R - 1:
                e("s_cbranch_scc1 L_epi")
            else:
                e("s_cbranch_scc0 L_loop")
        lab("L_epi")
        self.stamp(2)
        e("s_waitcnt vmcnt(0)")
        e(f"v_and_b32 v{vT0}, 15, v{vLane}")
        e(f"v_mul_u32_u24 v{vT1}, 528, v{vT0}")
        e(f"v_lshl_add_u32 v{vT1}, v{v4g}, 2, v{vT1}")
        e(f"v_add_u32 v{vT1}, s{sBase}, v{vT1}")
        e(f"v_lshlrev_b32 v{vT2}, 2, v{vT0}")
        e(f"v_add_u32 v{vT2}, s{sBase}, v{vT2}")
        e(f"v_lshl_add_u32 v{vT3}, v{vT0}, 4, v{v4g}")
        e(f"v_add_u32 v{vT3}, s{sBase}, v{vT3}")
        e(f"v_mul_f32 v{vM}, s{sCs}, v{vM}")
        e("s_mov_b32 exec_lo, 0x00ff00ff")
        e("s_mov_b32 exec_hi, 0x00ff00ff")
        e("s_nop 4")
        for j in range(8):
            e(f"ds_write_b128 v{vT1}, v[{vO+4*j}:{vO+4*j+3}] offset:{64*j}")
        e(f"ds_write_b32 v{vT2}, v{vM} offset:4224")
        e(f"ds_write_b32 v{vT3}, v{vL} offset:4288")
        e("s_mov_b64 exec, -1")
        npass = 256 // (64 * W)
        e(f"v_lshrrev_b32 v{vT0}, 5, v0")
        e(f"v_and_b32 v{vT1}, 31, v0")
        e(f"v_mul_u32_u24 v{vT2}, 528, v{vT0}")
        e(f"v_lshl_add_u32 v{vT2}, v{vT1}, 4, v{vT2}")
        e(f"v_lshlrev_b32 v{vT3}, 2, v{vT0}")
        e(f"v_lshlrev_b32 v{vA}, 4, v{vT0}")
        e(f"v_lshlrev_b32 v{vNm}, 4, v0")
        e(f"v_lshlrev_b32 v{vDesc}, 3, v{vT0}")
        e(f"v_cmp_eq_u32 s[{sMk[0]}:{sMk[0]+1}], 0, v{vT1}")
        e(f"s_lshl_b32 s{sT}, s{sKVH}, 5")
        e(f"s_add_u32 s{sT}, s{sT}, s{sC}")
        e(f"s_lshl_b32 s{sT2}, s{sT}, 7")
        e(f"s_add_u32 s{sT2}, s{sT2}, {ML_OFF}")
        e(f"s_lshl_b32 s{sT}, s{sT}, 12")
        e(f"s_mov_b32 s{sI}, 0xfffffffe")
        e("s_waitcnt lgkmcnt(0)")
        e("s_barrier")
        qs = 2 * W
        for ps in range(npass):
            rO = vO; rL = vO + 4 * W; rM = vKf
            for w in range(W):
                e(f"ds_read_b32 v{rM+w}, v{vT3} offset:{w*ring + 4224 + ps*qs*4}")
            for w in range(W):
                e(f"ds_read_b128 v[{rL+4*w}:{rL+4*w+3}], v{vA} offset:{w*ring + 4288 + ps*qs*16}")
            for w in range(W):
                e(f"ds_read_b128 v[{rO+4*w}:{rO+4*w+3}], v{vT2} offset:{w*ring + ps*qs*528}")
            e(f"s_waitcnt lgkmcnt({2*W})")
            mm = vVf
            e(f"v_max_f32 v{mm}, v{rM}, v{rM+1}")
            for w in range(2, W):
                e(f"v_max_f32 v{mm}, v{mm}, v{rM+w}")
            for w in range(W):
                e(f"v_sub_f32 v{rM+w}, v{rM+w}, v{mm}")
            for w in range(W):
                e(f"v_exp_f32 v{rM+w}, v{rM+w}")
            e(f"s_waitcnt lgkmcnt({W})")
            for w in range(W):
                e(f"v_add_f32 v{rL+4*w}, v{rL+4*w}, v{rL+4*w+1}")
                e(f"v_add_f32 v{rL+4*w+2}, v{rL+4*w+2}, v{rL+4*w+3}")
                e(f"v_add_f32 v{rL+4*w}, v{rL+4*w}, v{rL+4*w+2}")
            e(f"v_mul_f32 v{mm+1}, v{rL}, v{rM}")
            for w in range(1, W):
                e(f"v_fmac_f32 v{mm+1}, v{rL+4*w}, v{rM+w}")
            e("s_waitcnt lgkmcnt(0)")
            res = vVf + 4
            for k in range(4):
                e(f"v_mul_f32 v{res+k}, v{rO+k}, v{rM}")
            for w in range(1, W):
                for k in range(4):
                    e(f"v_fmac_f32 v{res+k}, v{rO+4*w+k}, v{rM+w}")
            for k in range(4):
                e(f"v_min_u32 v{res+k}, s{sI}, v{res+k}")
            e(f"v_min_u32 v{mm}, s{sI}, v{mm}")
            e(f"v_min_u32 v{mm+1}, s{sI}, v{mm+1}")
            e(f"buffer_store_dwordx4 v[{res}:{res+3}], v{vNm}, s[{SWS}:{SWS+3}], s{sT} offen offset:{ps*64*W*16} sc1")
            e(f"s_mov_b64 exec, s[{sMk[0]}:{sMk[0]+1}]")
            e(f"buffer_store_dwordx2 v[{mm}:{mm+1}], v{vDesc}, s[{SWS}:{SWS+3}], s{sT2} offen offset:{ps*qs*8} sc1")
            e("s_mov_b64 exec, -1")
            e("s_nop 1")
        self.stamp(3)
        if self.stamps:
            e("s_waitcnt vmcnt(0)")
            self.stamp(4)
        self.flush_stamps()
        e("s_endpgm")

        lab("L_helper")
        hv = vO
        e("s_waitcnt lgkmcnt(0)")
        srd(SWS, 22, WS_REC)
        srd(SD, 20, 256)
        srd(SO, 18, 16384)
        self.stamp(0)
        e(f"s_lshl_b32 s{sT}, s{sKVH}, 5")
        e(f"s_add_u32 s{sT}, s{sT}, s{sC}")
        e(f"s_lshl_b32 s{sT2}, s{sT}, 7")
        e(f"s_add_u32 s{sT2}, s{sT2}, {ML_OFF}")
        e(f"s_lshl_b32 s{sT}, s{sT}, 12")
        if self.nohelp:
            e("s_barrier")
            self.flush_stamps()
            e("s_endpgm")
        for k in range(4):
            e(f"v_mov_b32 v{hv+k}, -1")
        e(f"v_lshlrev_b32 v{vT0}, 4, v{vLane}")
        for i in range(4):
            e(f"buffer_store_dwordx4 v[{hv}:{hv+3}], v{vT0}, s[{SWS}:{SWS+3}], s{sT} offen offset:{1024*i} sc1")
        e("s_mov_b64 exec, 0xff")
        e(f"buffer_store_dwordx4 v[{hv}:{hv+3}], v{vT0}, s[{SWS}:{SWS+3}], s{sT2} offen sc1")
        e("s_mov_b64 exec, -1")
        e(f"s_lshl_b32 s{sI}, s{sKVH}, 2")
        e(f"v_mov_b32 v{vT1}, s{sI}")
        e(f"v_mov_b32 v{vT2}, 1")
        e("s_waitcnt vmcnt(0)")
        e("s_mov_b64 exec, 1")
        e(f"buffer_atomic_add v{vT2}, v{vT1}, s[{SD}:{SD+3}], 0 offen sc1")
        e("s_mov_b64 exec, -1")
        e(f"v_lshrrev_b32 v{vT0}, 3, v{vLane}")
        e(f"v_and_b32 v{vT2}, 7, v{vLane}")
        e(f"v_lshlrev_b32 v{vA}, 12, v{vT0}")
        e(f"v_lshl_add_u32 v{vA}, v{vT2}, 4, v{vA}")
        e(f"v_lshlrev_b32 v{vNm}, 7, v{vT0}")
        e(f"s_lshl_b32 s{sT}, s{sKVH}, 17")
        e(f"s_lshl_b32 s{sT2}, s{sC}, 7")
        e(f"s_add_u32 s{sT}, s{sT}, s{sT2}")
        for i in range(4):
            e(f"s_add_u32 s{sD[i]}, s{sT}, {i*8*4096}")
        e(f"s_lshl_b32 s{sT}, s{sKVH}, 12")
        e(f"s_lshr_b32 s{sT2}, s{sC}, 2")
        e(f"s_lshl_b32 s{sOff}, s{sT2}, 3")
        e(f"s_add_u32 s{sT}, s{sT}, s{sOff}")
        e(f"s_add_u32 s{sT}, s{sT}, {ML_OFF}")
        e(f"s_lshr_b32 s{sOff}, s{sT2}, 2")
        e(f"s_lshl_b32 s{sOff}, s{sOff}, 13")
        e(f"s_and_b32 s{sT2}, s{sT2}, 3")
        e(f"s_lshl_b32 s{sT2}, s{sT2}, 8")
        e(f"s_add_u32 s{sOff}, s{sOff}, s{sT2}")
        e(f"s_lshl_b32 s{sT2}, s{sKVH}, 10")
        e(f"s_add_u32 s{sOff}, s{sOff}, s{sT2}")
        e(f"s_and_b32 s{sT2}, s{sC}, 3")
        e(f"s_lshl_b32 s{sT2}, s{sT2}, 6")
        e(f"s_add_u32 s{sOff}, s{sOff}, s{sT2}")
        e(f"v_lshlrev_b32 v{vDesc}, 3, v{vT2}")
        e(f"s_mov_b32 s{sN}, {POLL_MAX}")
        lab("L_wait_clear")
        e(f"buffer_load_dword v{vT3}, v{vT1}, s[{SD}:{SD+3}], 0 offen sc1")
        e("s_waitcnt vmcnt(0)")
        e(f"v_readfirstlane_b32 s{sI}, v{vT3}")
        e(f"s_cmp_ge_u32 s{sI}, 32")
        e("s_cbranch_scc1 L_cleared")
        e(f"s_sleep {self.slp}")
        e(f"s_sub_u32 s{sN}, s{sN}, 1")
        e(f"s_cmp_lg_u32 s{sN}, 0")
        e("s_cbranch_scc1 L_wait_clear")
        lab("L_cleared")
        self.stamp(1)
        e("s_barrier")
        self.stamp(2)
        rO = hv; rML = hv + 16
        e(f"s_mov_b32 s{sN}, {POLL_MAX}")
        lab("L_poll")
        for i in range(4):
            e(f"buffer_load_dwordx2 v[{rML+2*i}:{rML+2*i+1}], v{vNm}, s[{SWS}:{SWS+3}], s{sT} offen offset:{1024*i} sc1")
        for i in range(4):
            e(f"buffer_load_dwordx4 v[{rO+4*i}:{rO+4*i+3}], v{vA}, s[{SWS}:{SWS+3}], s{sD[i]} offen sc1")
        e("s_waitcnt vmcnt(0)")
        e(f"v_max3_u32 v{vT0}, v{rO}, v{rO+1}, v{rO+2}")
        for k in range(3, 23, 2):
            e(f"v_max3_u32 v{vT0}, v{vT0}, v{rO+k}, v{rO+k+1}")
        e(f"v_max_u32 v{vT0}, v{vT0}, v{rO+23}")
        e(f"v_cmp_eq_u32 vcc, -1, v{vT0}")
        e("s_cbranch_vccz L_ready")
        e("s_sleep 1")
        e(f"s_sub_u32 s{sN}, s{sN}, 1")
        e(f"s_cmp_lg_u32 s{sN}, 0")
        e("s_cbranch_scc1 L_poll")
        lab("L_ready")
        self.stamp(3)

        def xreduce(r, tmp, op):
            e("s_nop 1")
            e(f"{op}_dpp v{r}, v{r}, v{r} row_ror:8 row_mask:0xf bank_mask:0xf")
            e(f"v_mov_b32 v{tmp}, v{r}")
            e("s_nop 1")
            e(f"v_permlane16_swap_b32 v{r}, v{tmp}")
            e("s_nop 0")
            e(f"{op} v{r}, v{r}, v{tmp}")
            e(f"v_mov_b32 v{tmp}, v{r}")
            e("s_nop 1")
            e(f"v_permlane32_swap_b32 v{r}, v{tmp}")
            e("s_nop 0")
            e(f"{op} v{r}, v{r}, v{tmp}")
        e(f"v_max3_f32 v{vT0}, v{rML}, v{rML+2}, v{rML+4}")
        e(f"v_max_f32 v{vT0}, v{vT0}, v{rML+6}")
        xreduce(vT0, vT1, "v_max_f32")
        for i in range(4):
            e(f"v_sub_f32 v{rML+2*i}, v{rML+2*i}, v{vT0}")
        for i in range(4):
            e(f"v_exp_f32 v{rML+2*i}, v{rML+2*i}")
        e("s_nop 0")
        acc = vKf
        for k in range(4):
            e(f"v_mul_f32 v{acc+k}, v{rO+k}, v{rML}")
        e(f"v_mul_f32 v{acc+4}, v{rML+1}, v{rML}")
        for i in range(1, 4):
            for k in range(4):
                e(f"v_fmac_f32 v{acc+k}, v{rO+4*i+k}, v{rML+2*i}")
            e(f"v_fmac_f32 v{acc+4}, v{rML+2*i+1}, v{rML+2*i}")
        tm = vKf + 8
        e("s_nop 1")
        for k in range(5):
            e(f"v_add_f32_dpp v{acc+k}, v{acc+k}, v{acc+k} row_ror:8 row_mask:0xf bank_mask:0xf")
        for sw in ("v_permlane16_swap_b32", "v_permlane32_swap_b32"):
            for k in range(5):
                e(f"v_mov_b32 v{tm+k}, v{acc+k}")
            e("s_nop 1")
            for k in range(5):
                e(f"{sw} v{acc+k}, v{tm+k}")
            e("s_nop 0")
            for k in range(5):
                e(f"v_add_f32 v{acc+k}, v{acc+k}, v{tm+k}")
        e(f"v_rcp_f32 v{acc+4}, v{acc+4}")
        e("s_nop 0")
        for k in range(4):
            e(f"v_mul_f32 v{acc+k}, v{acc+k}, v{acc+4}")
        e(f"v_cvt_pk_bf16_f32 v{tm}, v{acc}, v{acc+1}")
        e(f"v_cvt_pk_bf16_f32 v{tm+1}, v{acc+2}, v{acc+3}")
        e("s_mov_b64 exec, 0xff")
        e(f"buffer_store_dwordx2 v[{tm}:{tm+1}], v{vDesc}, s[{SO}:{SO+3}], s{sOff} offen")
        e("s_mov_b64 exec, -1")
        if self.stamps:
            e("s_waitcnt vmcnt(0)")
            self.stamp(4)
        self.flush_stamps()
        lab("L_exit")
        e("s_endpgm")

        nvg = (self.nv + 7) // 8 * 8
        out = HEADER
        out += f"; @launch grid=(256,1,1) block=({64*(W+1)},1,1) lds={lds}\n"
        out += '.amdgcn_target "amdgcn-amd-amdhsa--gfx950"\n.text\n'
        out += f".globl {NAME}_kernel\n.p2align 8\n.type {NAME}_kernel,@function\n{NAME}_kernel:\n"
        out += "\n".join(self.lines) + "\n"
        out += f""".section .rodata,"a"
.p2align 6
.amdhsa_kernel {NAME}_kernel
  .amdhsa_next_free_vgpr {nvg}
  .amdhsa_next_free_sgpr 96
  .amdhsa_accum_offset {nvg}
  .amdhsa_group_segment_fixed_size 0
  .amdhsa_kernarg_size 64
  .amdhsa_user_sgpr_count 2
  .amdhsa_user_sgpr_kernarg_segment_ptr 1
  .amdhsa_system_sgpr_workgroup_id_x 1
.end_amdhsa_kernel
"""
        return out


if __name__ == "__main__":
    path = sys.argv[1]
    kw = {}
    for a in sys.argv[2:]:
        k, v = a.split("=")
        kw[k] = int(v)
    open(path, "w").write(Gen(**kw).build())
```

```python
import sys, math, struct

NAME = "standalone__paged_block_table_kv_radixattention__decode"

HEADER = """; Kernarg layout for this problem (64 bytes, ptrs only, base s[0:1]):
"""

def f2u(x):
    return struct.unpack("<I", struct.pack("<f", x))[0]

KVBYTES = 3072 * 32768
CSCALE = (128 ** -0.5) * math.log2(math.e)
ML_OFF = 0x100000
STAMP_OFF = 0x400000
WS_REC = 0x800000
POLL_MAX = 200000


class Gen:
    def __init__(self, W=4, NF=6, R=2, XM=0, stamps=0, nocompute=0, spec=1, skipmax=1, nt=1, nohelp=0, slp=16):
        self.W, self.NF, self.R, self.XM = W, NF, R, XM
        self.stamps, self.nocompute, self.spec, self.skipmax = stamps, nocompute, spec, skipmax
        self.nt, self.nohelp, self.slp = nt, nohelp, slp
        assert NF <= 8 * (R - 1)
        self.NW = 32 * W
        self.HL = 2048 // self.NW
        assert 2 * self.HL <= 64
        n0 = (26191 + 15) // 16
        self.S = (-(n0 % self.NW) + 1024) % self.NW
        self.lines = []
        self.nv = 0
        self.uid = 0

    def e(self, s):
        self.lines.append("    " + s)

    def lab(self, s):
        self.lines.append(s + ":")

    def valloc(self, n=1, align=1):
        self.nv = (self.nv + align - 1) // align * align
        r = self.nv
        self.nv += n
        return r

    def stamp(self, idx):
        if not self.stamps:
            return
        e = self.e
        e("s_memrealtime s[90:91]")
        e("s_waitcnt lgkmcnt(0)")
        e(f"v_mov_b32 v{self.vSt[idx]}, s90")

    def flush_stamps(self, helper=False):
        if not self.stamps:
            return
        if self.stamps == 2 and not helper:
            return
        e = self.e
        e("s_mov_b64 exec, 1")
        e("s_lshl_b32 s90, s2, 3")
        e("s_add_u32 s90, s90, s3")
        e("s_lshl_b32 s90, s90, 5")
        e(f"s_add_u32 s90, s90, {STAMP_OFF}")
        e(f"v_mov_b32 v{self.vT0}, 0")
        if self.stamps == 2:
            e("s_mov_b32 s52, s20")
            e("s_mov_b32 s53, s21")
            e("s_mov_b32 s54, 256")
            e("s_mov_b32 s55, 0x00020000")
            e(f"v_not_b32 v{self.vSt[6]}, v{self.vSt[7]}")
            for k, i in enumerate([6, 0, 2, 4]):
                e(f"buffer_atomic_umax v{self.vSt[i]}, v{self.vT0}, s[52:55], 0 offen offset:{32 + 4*k} sc1")
        else:
          for i in range(8):
            e(f"buffer_store_dword v{self.vSt[i]}, v{self.vT0}, s[44:47], s90 offen offset:{4*i}")
        e("s_mov_b64 exec, -1")

    def build(self):
        W, NF, R = self.W, self.NF, self.R
        NW, HL = self.NW, self.HL
        e, lab = self.e, self.lab
        ring = R * 8192
        NT = {0: '', 1: 'nt', 2: 'sc1', 3: 'sc1 nt', 4: 'sc0 sc1', 5: 'sc0 sc1 nt', 6: 'sc0 nt'}[self.nt]
        lds = W * ring
        self.nv = 1
        vLane = self.valloc()
        vT0 = self.valloc(); vT1 = self.valloc(); vT2 = self.valloc(); vT3 = self.valloc()
        self.vT0 = vT0
        vM = self.valloc(); vL = self.valloc(); vDesc = self.valloc()
        vShift = self.valloc(); v4g = self.valloc(); vNeg = self.valloc()
        vA = self.valloc(); vNm = self.valloc()
        vS = self.valloc(4, 4)
        vP = self.valloc(2, 2)
        vOffK = self.valloc(4); vOffV = self.valloc(4)
        vLK = self.valloc(4); vLV = self.valloc(8)
        vQ = self.valloc(16, 4)
        vKf = self.valloc(16, 4)
        vVf = self.valloc(16, 4)
        vO = self.valloc(32, 4)
        self.vSt = [self.valloc() for _ in range(8)] if self.stamps else None
        sKVH, sC, sWI = 4, 5, 6
        sCs = 7
        SK, SV, SQ, SB, SWS, SO, SD = 24, 28, 32, 36, 44, 48, 52
        sCtx0, sCtx1 = 40, 41
        sAct = 56
        sN = 58
        sI = 59
        sD = [60, 61, 62, 63]
        sOff = 64
        sBase = 65
        sMk = [66, 68, 70, 72]
        sH = 74
        sT = 76; sT2 = 77
        sPred = 78

        def srd(d, p, size):
            e(f"s_mov_b32 s{d}, s{p}")
            e(f"s_mov_b32 s{d+1}, s{p+1}")
            e(f"s_mov_b32 s{d+2}, {size}")
            e(f"s_mov_b32 s{d+3}, 0x00020000")

        e("s_cmp_ge_u32 s2, 256")
        e("s_cbranch_scc1 L_exit")
        if self.stamps:
            for i in range(8):
                e(f"v_mov_b32 v{self.vSt[i]}, 0")
            self.stamp(7)
        e("s_load_dwordx16 s[8:23], s[0:1], 0")
        e(f"v_lshrrev_b32 v{vT0}, 6, v0")
        e(f"v_and_b32 v{vLane}, 63, v0")
        e(f"v_readfirstlane_b32 s3, v{vT0}")
        if self.XM == 0:
            e(f"s_and_b32 s{sKVH}, s2, 7")
        else:
            e(f"s_lshr_b32 s{sT}, s2, 3")
            e(f"s_add_u32 s{sT}, s{sT}, s2")
            e(f"s_and_b32 s{sKVH}, s{sT}, 7")
        e(f"s_lshr_b32 s{sC}, s2, 3")
        e(f"s_mov_b32 s{sCs}, {hex(f2u(CSCALE))}")
        e(f"s_cmp_eq_u32 s3, {W}")
        e("s_cbranch_scc1 L_helper")
        e(f"s_lshl_b32 s{sWI}, s3, 5")
        e(f"s_add_u32 s{sWI}, s{sWI}, s{sC}")
        e(f"s_mul_i32 s{sBase}, s3, {ring}")
        e(f"s_lshl_b32 s{sT}, s{sKVH}, 8")
        e(f"v_lshrrev_b32 v{vT0}, 4, v{vLane}")
        e(f"v_and_b32 v{vT1}, 15, v{vLane}")
        for i in range(4):
            e(f"v_add_u32 v{vT2}, {4*i}, v{vT0}")
            e(f"v_xor_b32 v{vT3}, v{vT2}, v{vT1}")
            e(f"v_lshlrev_b32 v{vT3}, 4, v{vT3}")
            e(f"v_lshl_add_u32 v{vT3}, v{vT2}, 11, v{vT3}")
            e(f"v_add_u32 v{vT3}, s{sT}, v{vT3}")
            e(f"v_subrev_u32 v{vOffK+i}, {1024*i}, v{vT3}")
            e(f"v_and_b32 v{vT3}, 7, v{vT2}")
            e(f"v_lshlrev_b32 v{vT3}, 1, v{vT3}")
            e(f"v_xor_b32 v{vT3}, v{vT3}, v{vT1}")
            e(f"v_lshlrev_b32 v{vT3}, 4, v{vT3}")
            e(f"v_lshl_add_u32 v{vT3}, v{vT2}, 11, v{vT3}")
            e(f"v_add_u32 v{vT3}, s{sT}, v{vT3}")
            e(f"v_subrev_u32 v{vOffV+i}, {1024*i}, v{vT3}")
        e(f"s_add_u32 s{sT2}, s{sWI}, {self.S}")
        e(f"s_and_b32 s{sT2}, s{sT2}, {NW-1}")
        e(f"v_mov_b32 v{vT2}, s{sWI}")
        e(f"v_mov_b32 v{vT3}, s{sT2}")
        e(f"v_cmp_le_u32 s[{sH}:{sH+1}], {HL}, v{vLane}")
        e(f"v_and_b32 v{vDesc}, {HL-1}, v{vLane}")
        e(f"v_mul_u32_u24 v{vDesc}, {NW}, v{vDesc}")
        e(f"v_cndmask_b32 v{vT2}, v{vT2}, v{vT3}, s[{sH}:{sH+1}]")
        e(f"v_add_u32 v{vDesc}, v{vDesc}, v{vT2}")
        if 2 * HL < 64:
            e(f"v_cmp_le_u32 vcc, {2*HL}, v{vLane}")
            e(f"v_mov_b32 v{vT3}, 4096")
            e("s_nop 0")
            e(f"v_cndmask_b32 v{vDesc}, v{vDesc}, v{vT3}, vcc")
        e(f"v_lshlrev_b32 v{vA}, 2, v{vDesc}")
        e(f"v_bfe_u32 v{vT2}, v{vLane}, 2, 1")
        e(f"v_mul_u32_u24 v{vShift}, 5, v{vT2}")
        e(f"v_lshlrev_b32 v{vT2}, 13, v{vT2}")
        e(f"v_and_b32 v{vT3}, 3, v{vLane}")
        e(f"v_lshl_add_u32 v{vT2}, v{vT3}, 8, v{vT2}")
        e(f"v_lshl_add_u32 v{vT2}, v{vT0}, 4, v{vT2}")
        e(f"s_lshl_b32 s{sT}, s{sKVH}, 10")
        e(f"v_add_u32 v{vNm}, s{sT}, v{vT2}")
        e(f"s_mov_b32 s{sT2}, 8192")
        e("s_waitcnt lgkmcnt(0)")
        e(f"s_load_dwordx2 s[{sCtx0}:{sCtx1}], s[16:17], 0")
        srd(SB, 14, 16384)
        srd(SK, 10, KVBYTES)
        srd(SV, 12, KVBYTES)
        srd(SQ, 8, 16384)
        def issue(slot, i, soff):
            if i == 0 or i == 4 or self.force_m0:
                off = slot * 8192 + (4096 if i >= 4 else 0)
                e(f"s_add_u32 m0, s{sBase}, {off}")
                e("s_nop 0")
                self.force_m0 = False
            if i < 4:
                e(f"buffer_load_dwordx4 v{vOffK+i}, s[{SK}:{SK+3}], s{soff} offen offset:{1024*i} {NT} lds")
            else:
                e(f"buffer_load_dwordx4 v{vOffV+i-4}, s[{SV}:{SV+3}], s{soff} offen offset:{1024*(i-4)} {NT} lds")
        self.force_m0 = False
        e(f"buffer_load_dword v{vT2}, v{vA}, s[{SB}:{SB+3}], 0 offen")
        e(f"buffer_load_dword v{vT3}, v{vA}, s[{SB}:{SB+3}], s{sT2} offen")
        for c in range(4):
            e(f"buffer_load_dwordx4 v[{vQ+4*c}:{vQ+4*c+3}], v{vNm}, s[{SQ}:{SQ+3}], 0 offen offset:{64*c}")
        npu = (NF + 7) // 8
        if self.spec:
            for k in range(npu):
                e(f"s_add_u32 s{sPred+k}, s{sWI}, {NW*k}")
                e(f"s_lshl_b32 s{sPred+k}, s{sPred+k}, 15")
            for p in range(NF):
                issue(p // 8, p % 8, sPred + p // 8)
        srd(SWS, 22, WS_REC)
        e(f"v_xor_b32 v{vA}, v{vT0}, v{vT1}")
        for c in range(4):
            e(f"v_xor_b32 v{vNm}, {4*c}, v{vA}")
            e(f"v_lshlrev_b32 v{vNm}, 4, v{vNm}")
            e(f"v_lshl_add_u32 v{vNm}, v{vT1}, 8, v{vNm}")
            e(f"v_add_u32 v{vLK+c}, s{sBase}, v{vNm}")
        e(f"v_lshlrev_b32 v{v4g}, 2, v{vT0}")
        e(f"v_lshrrev_b32 v{vA}, 2, v{vLane}")
        e(f"v_and_b32 v{vNm}, 3, v{vLane}")
        e(f"v_lshlrev_b32 v{vNm}, 3, v{vNm}")
        e(f"v_lshl_add_u32 v{vNm}, v{vA}, 8, v{vNm}")
        e(f"v_add_u32 v{vNm}, s{sBase}, v{vNm}")
        e(f"v_add_u32 v{vNm}, 4096, v{vNm}")
        e(f"v_and_b32 v{vA}, 7, v{vA}")
        for j in range(8):
            e(f"v_xor_b32 v{vLV+j}, {j}, v{vA}")
            e(f"v_lshl_add_u32 v{vLV+j}, v{vLV+j}, 5, v{vNm}")
        e(f"v_mov_b32 v{vNeg}, {hex(f2u(-2e30))}")
        e(f"v_mov_b32 v{vM}, {hex(f2u(-1e30))}")
        e(f"v_mov_b32 v{vL}, 0")
        for k in range(32):
            e(f"v_mov_b32 v{vO+k}, 0")
        self.stamp(0)
        e("s_waitcnt lgkmcnt(0)")
        e(f"s_cmp_gt_i32 s{sCtx0}, 0")
        e(f"s_cselect_b32 s{sMk[0]}, 0, 0x0f0f0f0f")
        e(f"s_cselect_b32 s{sCtx0}, s{sCtx0}, 32768")
        e(f"s_cmp_gt_i32 s{sCtx1}, 0")
        e(f"s_cselect_b32 s{sMk[0]+1}, 0, 0xf0f0f0f0")
        e(f"s_cselect_b32 s{sCtx1}, s{sCtx1}, 32768")
        e(f"s_or_b32 s{sMk[0]}, s{sMk[0]}, s{sMk[0]+1}")
        e(f"s_mov_b32 s{sMk[0]+1}, s{sMk[0]}")
        e(f"s_min_i32 s{sCtx0}, s{sCtx0}, 32768")
        e(f"s_min_i32 s{sCtx1}, s{sCtx1}, 32768")
        e(f"v_lshlrev_b32 v{vDesc}, 4, v{vDesc}")
        e(f"v_sub_u32 v{vA}, s{sCtx0}, v{vDesc}")
        e(f"v_sub_u32 v{vNm}, s{sCtx1}, v{vDesc}")
        e(f"v_med3_i32 v{vA}, v{vA}, 0, 16")
        e(f"v_med3_i32 v{vNm}, v{vNm}, 0, 16")
        e(f"v_cmp_lt_u32 s[{sMk[1]}:{sMk[1]+1}], 0, v{vA}")
        e(f"s_waitcnt vmcnt({(NF if self.spec else 0) + 4})")
        e(f"v_cmp_eq_u32 vcc, v{vT2}, v{vT3}")
        e(f"v_cndmask_b32 v{vDesc}, v{vT2}, v{vT3}, s[{sH}:{sH+1}]")
        e(f"v_cndmask_b32 v{vA}, v{vA}, 0, s[{sH}:{sH+1}]")
        e(f"s_and_b64 vcc, vcc, s[{sMk[1]}:{sMk[1]+1}]")
        e(f"s_xor_b64 vcc, vcc, s[{sH}:{sH+1}]")
        e(f"v_cndmask_b32 v{vNm}, 0, v{vNm}, vcc")
        e(f"v_lshl_or_b32 v{vA}, v{vNm}, 5, v{vA}")
        e(f"v_cmp_ne_u32 s[{sAct}:{sAct+1}], 0, v{vA}")
        e(f"v_lshl_or_b32 v{vDesc}, v{vDesc}, 15, v{vA}")
        e("s_nop 1")
        e(f"s_bcnt1_i32_b64 s{sN}, s[{sAct}:{sAct+1}]")

        def fetch(dst):
            e(f"s_ff1_i32_b64 s{sI}, s[{sAct}:{sAct+1}]")
            e(f"s_bitset0_b64 s[{sAct}:{sAct+1}], s{sI}")
            e(f"v_readlane_b32 s{dst}, v{vDesc}, s{sI}")
            e(f"s_cmp_lt_i32 s{sI}, 0")
            e(f"s_cselect_b32 s{SK+2}, 0, s{SK+2}")
            e(f"s_cselect_b32 s{SV+2}, 0, s{SV+2}")
            e(f"s_cselect_b32 s{dst}, 0, s{dst}")
            e(f"s_and_b32 s{sOff}, s{dst}, 0xffff8000")

        if self.spec:
            e(f"s_mov_b64 s[{sMk[2]}:{sMk[2]+1}], s[{sAct}:{sAct+1}]")
            e(f"s_mov_b32 s{sT}, 0")
            for k in range(npu):
                fetch(sD[k])
                e(f"s_cmp_lg_u32 s{sOff}, s{sPred+k}")
                e(f"s_cselect_b32 s{sT}, 1, s{sT}")
                e(f"s_cmp_eq_u32 s{SK+2}, 0")
                e(f"s_cselect_b32 s{sT}, 1, s{sT}")
            e(f"s_cmp_eq_u32 s{sT}, 0")
            e("s_cbranch_scc1 L_spec_ok")
            e("s_waitcnt vmcnt(0)")
            e(f"s_mov_b64 s[{sAct}:{sAct+1}], s[{sMk[2]}:{sMk[2]+1}]")
            e(f"s_mov_b32 s{SK+2}, {KVBYTES}")
            e(f"s_mov_b32 s{SV+2}, {KVBYTES}")
        for p in range(NF):
            if p % 8 == 0:
                fetch(sD[p // 8])
            issue(p // 8, p % 8, sOff)
        if self.spec:
            lab("L_spec_ok")
        e(f"s_waitcnt vmcnt({NF})")
        e(f"s_cmp_eq_u32 s{sMk[0]}, 0")
        e("s_cbranch_scc1 L_q_ok")
        for k in range(16):
            e(f"v_cndmask_b32 v{vQ+k}, v{vQ+k}, 0, s[{sMk[0]}:{sMk[0]+1}]")
        lab("L_q_ok")
        self.stamp(1)
        e(f"s_cmp_eq_u32 s{sN}, 0")
        e("s_cbranch_scc1 L_epi")

        def wait_issue(slot, i):
            e(f"s_waitcnt vmcnt({NF-1})")
            p = i + NF
            k, ii = p // 8, p % 8
            if ii == 0:
                fetch(sD[k])
            issue((slot + k) % R, ii, sOff)

        lab("L_loop")
        for slot in range(R):
            so = slot * 8192
            self.force_m0 = True
            if not self.nocompute:
                e(f"v_bfe_u32 v{vT0}, s{sD[0]}, v{vShift}, 5")
                e(f"v_sub_u32 v{vT0}, v{vT0}, v{v4g}")
                for r in range(4):
                    e(f"v_cmp_lt_i32 s[{sMk[r]}:{sMk[r]+1}], {r}, v{vT0}")
                e("s_nop 0")
                for r in range(4):
                    e(f"v_cndmask_b32 v{vS+r}, v{vNeg}, 0, s[{sMk[r]}:{sMk[r]+1}]")
            for i in range(4):
                wait_issue(slot, i)
            if not self.nocompute:
                for c in range(4):
                    e(f"ds_read_b128 v[{vKf+4*c}:{vKf+4*c+3}], v{vLK+c} offset:{so}")
                for c in range(4):
                    e(f"s_waitcnt lgkmcnt({3-c})")
                    e(f"v_mfma_f32_16x16x32_bf16 v[{vS}:{vS+3}], v[{vKf+4*c}:{vKf+4*c+3}], v[{vQ+4*c}:{vQ+4*c+3}], v[{vS}:{vS+3}]")
                e("s_nop 7")
                e(f"v_max3_f32 v{vT0}, v{vS}, v{vS+1}, v{vS+2}")
                e(f"v_max3_f32 v{vT0}, v{vT0}, v{vS+3}, v{vM}")
                sk = f"L_skip{slot}"
                if self.skipmax:
                    e(f"v_cmp_gt_f32 vcc, v{vT0}, v{vM}")
                    e(f"s_cbranch_vccz {sk}")
                e(f"v_mov_b32 v{vT1}, v{vT0}")
                e("s_nop 1")
                e(f"v_permlane32_swap_b32 v{vT0}, v{vT1}")
                e("s_nop 0")
                e(f"v_max_f32 v{vT0}, v{vT0}, v{vT1}")
                e(f"v_mov_b32 v{vT1}, v{vT0}")
                e("s_nop 1")
                e(f"v_permlane16_swap_b32 v{vT0}, v{vT1}")
                e("s_nop 0")
                e(f"v_max_f32 v{vT0}, v{vT0}, v{vT1}")
                e(f"v_sub_f32 v{vA}, v{vM}, v{vT0}")
                e(f"v_mul_f32 v{vA}, s{sCs}, v{vA}")
                e(f"v_exp_f32 v{vA}, v{vA}")
                e(f"v_mov_b32 v{vM}, v{vT0}")
                e(f"v_mul_f32 v{vL}, v{vL}, v{vA}")
                for k in range(32):
                    e(f"v_mul_f32 v{vO+k}, v{vO+k}, v{vA}")
                lab(sk)
                e(f"v_mul_f32 v{vNm}, s{sCs}, v{vM}")
                for r in range(4):
                    e(f"v_fma_f32 v{vS+r}, v{vS+r}, s{sCs}, -v{vNm}")
                for r in range(4):
                    e(f"v_exp_f32 v{vS+r}, v{vS+r}")
                e("s_nop 0")
                e(f"v_cvt_pk_bf16_f32 v{vP}, v{vS}, v{vS+1}")
                e(f"v_cvt_pk_bf16_f32 v{vP+1}, v{vS+2}, v{vS+3}")
                e(f"v_add_f32 v{vT0}, v{vS}, v{vS+1}")
                e(f"v_add_f32 v{vT1}, v{vS+2}, v{vS+3}")
                e(f"v_add_f32 v{vL}, v{vL}, v{vT0}")
                e(f"v_add_f32 v{vL}, v{vL}, v{vT1}")
            for i in range(4, 8):
                wait_issue(slot, i)
            if not self.nocompute:
                for j in range(8):
                    e(f"ds_read_b64_tr_b16 v[{vVf+2*j}:{vVf+2*j+1}], v{vLV+j} offset:{so}")
                for j in range(8):
                    e(f"s_waitcnt lgkmcnt({7-j})")
                    e(f"v_mfma_f32_16x16x16_bf16 v[{vO+4*j}:{vO+4*j+3}], v[{vVf+2*j}:{vVf+2*j+1}], v[{vP}:{vP+1}], v[{vO+4*j}:{vO+4*j+3}]")
            kmax = (7 + NF) // 8
            for k in range(kmax):
                e(f"s_mov_b32 s{sD[k]}, s{sD[k+1]}")
            e(f"s_sub_u32 s{sN}, s{sN}, 1")
            e(f"s_cmp_eq_u32 s{sN}, 0")
            if slot < R - 1:
                e("s_cbranch_scc1 L_epi")
            else:
                e("s_cbranch_scc0 L_loop")
        lab("L_epi")
        self.stamp(2)
        e("s_waitcnt vmcnt(0)")
        e(f"v_and_b32 v{vT0}, 15, v{vLane}")
        e(f"v_mul_u32_u24 v{vT1}, 528, v{vT0}")
        e(f"v_lshl_add_u32 v{vT1}, v{v4g}, 2, v{vT1}")
        e(f"v_add_u32 v{vT1}, s{sBase}, v{vT1}")
        e(f"v_lshlrev_b32 v{vT2}, 2, v{vT0}")
        e(f"v_add_u32 v{vT2}, s{sBase}, v{vT2}")
        e(f"v_lshl_add_u32 v{vT3}, v{vT0}, 4, v{v4g}")
        e(f"v_add_u32 v{vT3}, s{sBase}, v{vT3}")
        e(f"v_mul_f32 v{vM}, s{sCs}, v{vM}")
        e("s_mov_b32 exec_lo, 0x00ff00ff")
        e("s_mov_b32 exec_hi, 0x00ff00ff")
        e("s_nop 4")
        for j in range(8):
            e(f"ds_write_b128 v{vT1}, v[{vO+4*j}:{vO+4*j+3}] offset:{64*j}")
        e(f"ds_write_b32 v{vT2}, v{vM} offset:4224")
        e(f"ds_write_b32 v{vT3}, v{vL} offset:4288")
        e("s_mov_b64 exec, -1")
        npass = 256 // (64 * W)
        e(f"v_lshrrev_b32 v{vT0}, 5, v0")
        e(f"v_and_b32 v{vT1}, 31, v0")
        e(f"v_mul_u32_u24 v{vT2}, 528, v{vT0}")
        e(f"v_lshl_add_u32 v{vT2}, v{vT1}, 4, v{vT2}")
        e(f"v_lshlrev_b32 v{vT3}, 2, v{vT0}")
        e(f"v_lshlrev_b32 v{vA}, 4, v{vT0}")
        e(f"v_lshlrev_b32 v{vNm}, 4, v0")
        e(f"v_lshlrev_b32 v{vDesc}, 3, v{vT0}")
        e(f"v_cmp_eq_u32 s[{sMk[0]}:{sMk[0]+1}], 0, v{vT1}")
        e(f"s_lshl_b32 s{sT}, s{sKVH}, 5")
        e(f"s_add_u32 s{sT}, s{sT}, s{sC}")
        e(f"s_lshl_b32 s{sT2}, s{sT}, 7")
        e(f"s_add_u32 s{sT2}, s{sT2}, {ML_OFF}")
        e(f"s_lshl_b32 s{sT}, s{sT}, 12")
        e(f"s_mov_b32 s{sI}, 0xfffffffe")
        e("s_waitcnt lgkmcnt(0)")
        e("s_barrier")
        qs = 2 * W
        for ps in range(npass):
            rO = vO; rL = vO + 4 * W; rM = vKf
            for w in range(W):
                e(f"ds_read_b32 v{rM+w}, v{vT3} offset:{w*ring + 4224 + ps*qs*4}")
            for w in range(W):
                e(f"ds_read_b128 v[{rL+4*w}:{rL+4*w+3}], v{vA} offset:{w*ring + 4288 + ps*qs*16}")
            for w in range(W):
                e(f"ds_read_b128 v[{rO+4*w}:{rO+4*w+3}], v{vT2} offset:{w*ring + ps*qs*528}")
            e(f"s_waitcnt lgkmcnt({2*W})")
            mm = vVf
            e(f"v_max_f32 v{mm}, v{rM}, v{rM+1}")
            for w in range(2, W):
                e(f"v_max_f32 v{mm}, v{mm}, v{rM+w}")
            for w in range(W):
                e(f"v_sub_f32 v{rM+w}, v{rM+w}, v{mm}")
            for w in range(W):
                e(f"v_exp_f32 v{rM+w}, v{rM+w}")
            e(f"s_waitcnt lgkmcnt({W})")
            for w in range(W):
                e(f"v_add_f32 v{rL+4*w}, v{rL+4*w}, v{rL+4*w+1}")
                e(f"v_add_f32 v{rL+4*w+2}, v{rL+4*w+2}, v{rL+4*w+3}")
                e(f"v_add_f32 v{rL+4*w}, v{rL+4*w}, v{rL+4*w+2}")
            e(f"v_mul_f32 v{mm+1}, v{rL}, v{rM}")
            for w in range(1, W):
                e(f"v_fmac_f32 v{mm+1}, v{rL+4*w}, v{rM+w}")
            e("s_waitcnt lgkmcnt(0)")
            res = vVf + 4
            for k in range(4):
                e(f"v_mul_f32 v{res+k}, v{rO+k}, v{rM}")
            for w in range(1, W):
                for k in range(4):
                    e(f"v_fmac_f32 v{res+k}, v{rO+4*w+k}, v{rM+w}")
            for k in range(4):
                e(f"v_min_u32 v{res+k}, s{sI}, v{res+k}")
            e(f"v_min_u32 v{mm}, s{sI}, v{mm}")
            e(f"v_min_u32 v{mm+1}, s{sI}, v{mm+1}")
            e(f"buffer_store_dwordx4 v[{res}:{res+3}], v{vNm}, s[{SWS}:{SWS+3}], s{sT} offen offset:{ps*64*W*16} sc1")
            e(f"s_mov_b64 exec, s[{sMk[0]}:{sMk[0]+1}]")
            e(f"buffer_store_dwordx2 v[{mm}:{mm+1}], v{vDesc}, s[{SWS}:{SWS+3}], s{sT2} offen offset:{ps*qs*8} sc1")
            e("s_mov_b64 exec, -1")
            e("s_nop 1")
        self.stamp(3)
        if self.stamps:
            e("s_waitcnt vmcnt(0)")
            self.stamp(4)
        self.flush_stamps()
        e("s_endpgm")

        lab("L_helper")
        hv = vO
        e("s_waitcnt lgkmcnt(0)")
        srd(SWS, 22, WS_REC)
        srd(SD, 20, 256)
        srd(SO, 18, 16384)
        self.stamp(0)
        e(f"s_lshl_b32 s{sT}, s{sKVH}, 5")
        e(f"s_add_u32 s{sT}, s{sT}, s{sC}")
        e(f"s_lshl_b32 s{sT2}, s{sT}, 7")
        e(f"s_add_u32 s{sT2}, s{sT2}, {ML_OFF}")
        e(f"s_lshl_b32 s{sT}, s{sT}, 12")
        if self.nohelp:
            e("s_barrier")
            self.flush_stamps()
            e("s_endpgm")
        for k in range(4):
            e(f"v_mov_b32 v{hv+k}, -1")
        e(f"v_lshlrev_b32 v{vT0}, 4, v{vLane}")
        for i in range(4):
            e(f"buffer_store_dwordx4 v[{hv}:{hv+3}], v{vT0}, s[{SWS}:{SWS+3}], s{sT} offen offset:{1024*i} sc1")
        e("s_mov_b64 exec, 0xff")
        e(f"buffer_store_dwordx4 v[{hv}:{hv+3}], v{vT0}, s[{SWS}:{SWS+3}], s{sT2} offen sc1")
        e("s_mov_b64 exec, -1")
        e(f"s_lshl_b32 s{sI}, s{sKVH}, 2")
        e(f"v_mov_b32 v{vT1}, s{sI}")
        e(f"v_mov_b32 v{vT2}, 1")
        e("s_waitcnt vmcnt(0)")
        e("s_mov_b64 exec, 1")
        e(f"buffer_atomic_add v{vT2}, v{vT1}, s[{SD}:{SD+3}], 0 offen sc1")
        e("s_mov_b64 exec, -1")
        e(f"v_lshrrev_b32 v{vT0}, 3, v{vLane}")
        e(f"v_and_b32 v{vT2}, 7, v{vLane}")
        e(f"v_lshlrev_b32 v{vA}, 12, v{vT0}")
        e(f"v_lshl_add_u32 v{vA}, v{vT2}, 4, v{vA}")
        e(f"v_lshlrev_b32 v{vNm}, 7, v{vT0}")
        e(f"s_lshl_b32 s{sT}, s{sKVH}, 17")
        e(f"s_lshl_b32 s{sT2}, s{sC}, 7")
        e(f"s_add_u32 s{sT}, s{sT}, s{sT2}")
        for i in range(4):
            e(f"s_add_u32 s{sD[i]}, s{sT}, {i*8*4096}")
        e(f"s_lshl_b32 s{sT}, s{sKVH}, 12")
        e(f"s_lshr_b32 s{sT2}, s{sC}, 2")
        e(f"s_lshl_b32 s{sOff}, s{sT2}, 3")
        e(f"s_add_u32 s{sT}, s{sT}, s{sOff}")
        e(f"s_add_u32 s{sT}, s{sT}, {ML_OFF}")
        e(f"s_lshr_b32 s{sOff}, s{sT2}, 2")
        e(f"s_lshl_b32 s{sOff}, s{sOff}, 13")
        e(f"s_and_b32 s{sT2}, s{sT2}, 3")
        e(f"s_lshl_b32 s{sT2}, s{sT2}, 8")
        e(f"s_add_u32 s{sOff}, s{sOff}, s{sT2}")
        e(f"s_lshl_b32 s{sT2}, s{sKVH}, 10")
        e(f"s_add_u32 s{sOff}, s{sOff}, s{sT2}")
        e(f"s_and_b32 s{sT2}, s{sC}, 3")
        e(f"s_lshl_b32 s{sT2}, s{sT2}, 6")
        e(f"s_add_u32 s{sOff}, s{sOff}, s{sT2}")
        e(f"v_lshlrev_b32 v{vDesc}, 3, v{vT2}")
        e(f"s_mov_b32 s{sN}, {POLL_MAX}")
        lab("L_wait_clear")
        e(f"buffer_load_dword v{vT3}, v{vT1}, s[{SD}:{SD+3}], 0 offen sc1")
        e("s_waitcnt vmcnt(0)")
        e(f"v_readfirstlane_b32 s{sI}, v{vT3}")
        e(f"s_cmp_ge_u32 s{sI}, 32")
        e("s_cbranch_scc1 L_cleared")
        e(f"s_sleep {self.slp}")
        e(f"s_sub_u32 s{sN}, s{sN}, 1")
        e(f"s_cmp_lg_u32 s{sN}, 0")
        e("s_cbranch_scc1 L_wait_clear")
        lab("L_cleared")
        self.stamp(1)
        e("s_barrier")
        self.stamp(2)
        rO = hv; rML = hv + 16
        e(f"s_mov_b32 s{sN}, {POLL_MAX}")
        lab("L_poll")
        for i in range(4):
            e(f"buffer_load_dwordx2 v[{rML+2*i}:{rML+2*i+1}], v{vNm}, s[{SWS}:{SWS+3}], s{sT} offen offset:{1024*i} sc1")
        for i in range(4):
            e(f"buffer_load_dwordx4 v[{rO+4*i}:{rO+4*i+3}], v{vA}, s[{SWS}:{SWS+3}], s{sD[i]} offen sc1")
        e("s_waitcnt vmcnt(0)")
        e(f"v_max3_u32 v{vT0}, v{rO}, v{rO+1}, v{rO+2}")
        for k in range(3, 23, 2):
            e(f"v_max3_u32 v{vT0}, v{vT0}, v{rO+k}, v{rO+k+1}")
        e(f"v_max_u32 v{vT0}, v{vT0}, v{rO+23}")
        e(f"v_cmp_eq_u32 vcc, -1, v{vT0}")
        e("s_cbranch_vccz L_ready")
        e("s_sleep 1")
        e(f"s_sub_u32 s{sN}, s{sN}, 1")
        e(f"s_cmp_lg_u32 s{sN}, 0")
        e("s_cbranch_scc1 L_poll")
        lab("L_ready")
        self.stamp(3)

        def xreduce(r, tmp, op):
            e("s_nop 1")
            e(f"{op}_dpp v{r}, v{r}, v{r} row_ror:8 row_mask:0xf bank_mask:0xf")
            e(f"v_mov_b32 v{tmp}, v{r}")
            e("s_nop 1")
            e(f"v_permlane16_swap_b32 v{r}, v{tmp}")
            e("s_nop 0")
            e(f"{op} v{r}, v{r}, v{tmp}")
            e(f"v_mov_b32 v{tmp}, v{r}")
            e("s_nop 1")
            e(f"v_permlane32_swap_b32 v{r}, v{tmp}")
            e("s_nop 0")
            e(f"{op} v{r}, v{r}, v{tmp}")
        e(f"v_max3_f32 v{vT0}, v{rML}, v{rML+2}, v{rML+4}")
        e(f"v_max_f32 v{vT0}, v{vT0}, v{rML+6}")
        xreduce(vT0, vT1, "v_max_f32")
        for i in range(4):
            e(f"v_sub_f32 v{rML+2*i}, v{rML+2*i}, v{vT0}")
        for i in range(4):
            e(f"v_exp_f32 v{rML+2*i}, v{rML+2*i}")
        e("s_nop 0")
        acc = vKf
        for k in range(4):
            e(f"v_mul_f32 v{acc+k}, v{rO+k}, v{rML}")
        e(f"v_mul_f32 v{acc+4}, v{rML+1}, v{rML}")
        for i in range(1, 4):
            for k in range(4):
                e(f"v_fmac_f32 v{acc+k}, v{rO+4*i+k}, v{rML+2*i}")
            e(f"v_fmac_f32 v{acc+4}, v{rML+2*i+1}, v{rML+2*i}")
        tm = vKf + 8
        e("s_nop 1")
        for k in range(5):
            e(f"v_add_f32_dpp v{acc+k}, v{acc+k}, v{acc+k} row_ror:8 row_mask:0xf bank_mask:0xf")
        for sw in ("v_permlane16_swap_b32", "v_permlane32_swap_b32"):
            for k in range(5):
                e(f"v_mov_b32 v{tm+k}, v{acc+k}")
            e("s_nop 1")
            for k in range(5):
                e(f"{sw} v{acc+k}, v{tm+k}")
            e("s_nop 0")
            for k in range(5):
                e(f"v_add_f32 v{acc+k}, v{acc+k}, v{tm+k}")
        e(f"v_rcp_f32 v{acc+4}, v{acc+4}")
        e("s_nop 0")
        for k in range(4):
            e(f"v_mul_f32 v{acc+k}, v{acc+k}, v{acc+4}")
        e(f"v_cvt_pk_bf16_f32 v{tm}, v{acc}, v{acc+1}")
        e(f"v_cvt_pk_bf16_f32 v{tm+1}, v{acc+2}, v{acc+3}")
        e("s_mov_b64 exec, 0xff")
        e(f"buffer_store_dwordx2 v[{tm}:{tm+1}], v{vDesc}, s[{SO}:{SO+3}], s{sOff} offen")
        e("s_mov_b64 exec, -1")
        if self.stamps:
            e("s_waitcnt vmcnt(0)")
            self.stamp(4)
        self.flush_stamps(True)
        lab("L_exit")
        e("s_endpgm")

        nvg = (self.nv + 7) // 8 * 8
        out = HEADER
        out += f"; @launch grid=(256,1,1) block=({64*(W+1)},1,1) lds={lds}\n"
        out += '.amdgcn_target "amdgcn-amd-amdhsa--gfx950"\n.text\n'
        out += f".globl {NAME}_kernel\n.p2align 8\n.type {NAME}_kernel,@function\n{NAME}_kernel:\n"
        out += "\n".join(self.lines) + "\n"
        out += f""".section .rodata,"a"
.p2align 6
.amdhsa_kernel {NAME}_kernel
  .amdhsa_next_free_vgpr {nvg}
  .amdhsa_next_free_sgpr 96
  .amdhsa_accum_offset {nvg}
  .amdhsa_group_segment_fixed_size 0
  .amdhsa_kernarg_size 64
  .amdhsa_user_sgpr_count 2
  .amdhsa_user_sgpr_kernarg_segment_ptr 1
  .amdhsa_system_sgpr_workgroup_id_x 1
.end_amdhsa_kernel
"""
        return out


if __name__ == "__main__":
    path = sys.argv[1]
    kw = {}
    for a in sys.argv[2:]:
        k, v = a.split("=")
        kw[k] = int(v)
    open(path, "w").write(Gen(**kw).build())
```

```python
import sys, math, struct

NAME = "standalone__paged_block_table_kv_radixattention__decode"

HEADER = """; Kernarg layout for this problem (64 bytes, ptrs only, base s[0:1]):
"""

def f2u(x):
    return struct.unpack("<I", struct.pack("<f", x))[0]

KVBYTES = 3072 * 32768
CSCALE = (128 ** -0.5) * math.log2(math.e)
ML_OFF = 0x100000
STAMP_OFF = 0x400000
WS_REC = 0x800000
POLL_MAX = 200000


class Gen:
    def __init__(self, W=4, NF=6, R=2, XM=0, stamps=0, nocompute=0, spec=1, skipmax=1, nt=1, nohelp=0, slp=16, slp2=1):
        self.W, self.NF, self.R, self.XM = W, NF, R, XM
        self.stamps, self.nocompute, self.spec, self.skipmax = stamps, nocompute, spec, skipmax
        self.nt, self.nohelp, self.slp, self.slp2 = nt, nohelp, slp, slp2
        assert NF <= 8 * (R - 1)
        self.NW = 32 * W
        self.HL = 2048 // self.NW
        assert 2 * self.HL <= 64
        n0 = (26191 + 15) // 16
        self.S = (-(n0 % self.NW) + 1024) % self.NW
        self.lines = []
        self.nv = 0
        self.uid = 0

    def e(self, s):
        self.lines.append("    " + s)

    def lab(self, s):
        self.lines.append(s + ":")

    def valloc(self, n=1, align=1):
        self.nv = (self.nv + align - 1) // align * align
        r = self.nv
        self.nv += n
        return r

    def stamp(self, idx):
        if not self.stamps:
            return
        e = self.e
        e("s_memrealtime s[90:91]")
        e("s_waitcnt lgkmcnt(0)")
        e(f"v_mov_b32 v{self.vSt[idx]}, s90")

    def flush_stamps(self, helper=False):
        if not self.stamps:
            return
        if self.stamps == 2 and not helper:
            return
        e = self.e
        e("s_mov_b64 exec, 1")
        e("s_lshl_b32 s90, s2, 3")
        e("s_add_u32 s90, s90, s3")
        e("s_lshl_b32 s90, s90, 5")
        e(f"s_add_u32 s90, s90, {STAMP_OFF}")
        e(f"v_mov_b32 v{self.vT0}, 0")
        if self.stamps == 2:
            e("s_mov_b32 s52, s20")
            e("s_mov_b32 s53, s21")
            e("s_mov_b32 s54, 256")
            e("s_mov_b32 s55, 0x00020000")
            e(f"v_not_b32 v{self.vSt[6]}, v{self.vSt[7]}")
            for k, i in enumerate([6, 0, 2, 4]):
                e(f"buffer_atomic_umax v{self.vSt[i]}, v{self.vT0}, s[52:55], 0 offen offset:{32 + 4*k} sc1")
        else:
          for i in range(8):
            e(f"buffer_store_dword v{self.vSt[i]}, v{self.vT0}, s[44:47], s90 offen offset:{4*i}")
        e("s_mov_b64 exec, -1")

    def build(self):
        W, NF, R = self.W, self.NF, self.R
        NW, HL = self.NW, self.HL
        e, lab = self.e, self.lab
        ring = R * 8192
        NT = {0: '', 1: 'nt', 2: 'sc1', 3: 'sc1 nt', 4: 'sc0 sc1', 5: 'sc0 sc1 nt', 6: 'sc0 nt'}[self.nt]
        lds = W * ring
        self.nv = 1
        vLane = self.valloc()
        vT0 = self.valloc(); vT1 = self.valloc(); vT2 = self.valloc(); vT3 = self.valloc()
        self.vT0 = vT0
        vM = self.valloc(); vL = self.valloc(); vDesc = self.valloc()
        vShift = self.valloc(); v4g = self.valloc(); vNeg = self.valloc()
        vA = self.valloc(); vNm = self.valloc()
        vS = self.valloc(4, 4)
        vP = self.valloc(2, 2)
        vOffK = self.valloc(4); vOffV = self.valloc(4)
        vLK = self.valloc(4); vLV = self.valloc(8)
        vQ = self.valloc(16, 4)
        vKf = self.valloc(16, 4)
        vVf = self.valloc(16, 4)
        vO = self.valloc(32, 4)
        self.vSt = [self.valloc() for _ in range(8)] if self.stamps else None
        sKVH, sC, sWI = 4, 5, 6
        sCs = 7
        SK, SV, SQ, SB, SWS, SO, SD = 24, 28, 32, 36, 44, 48, 52
        sCtx0, sCtx1 = 40, 41
        sAct = 56
        sN = 58
        sI = 59
        sD = [60, 61, 62, 63]
        sOff = 64
        sBase = 65
        sMk = [66, 68, 70, 72]
        sH = 74
        sT = 76; sT2 = 77
        sPred = 78

        def srd(d, p, size):
            e(f"s_mov_b32 s{d}, s{p}")
            e(f"s_mov_b32 s{d+1}, s{p+1}")
            e(f"s_mov_b32 s{d+2}, {size}")
            e(f"s_mov_b32 s{d+3}, 0x00020000")

        e("s_cmp_ge_u32 s2, 256")
        e("s_cbranch_scc1 L_exit")
        if self.stamps:
            for i in range(8):
                e(f"v_mov_b32 v{self.vSt[i]}, 0")
            self.stamp(7)
        e("s_load_dwordx16 s[8:23], s[0:1], 0")
        e(f"v_lshrrev_b32 v{vT0}, 6, v0")
        e(f"v_and_b32 v{vLane}, 63, v0")
        e(f"v_readfirstlane_b32 s3, v{vT0}")
        if self.XM == 0:
            e(f"s_and_b32 s{sKVH}, s2, 7")
        elif self.XM >= 100:
            e(f"s_lshr_b32 s{sT}, s2, {3 + (self.XM-100)//10}")
            e(f"s_and_b32 s{sT}, s{sT}, {(self.XM-100)%10}")
            e(f"s_xor_b32 s{sT}, s{sT}, s2")
            e(f"s_and_b32 s{sKVH}, s{sT}, 7")
        elif self.XM >= 20:
            e(f"s_xor_b32 s{sT}, s2, {self.XM-20}")
            e(f"s_and_b32 s{sKVH}, s{sT}, 7")
        elif self.XM >= 10:
            e(f"s_add_u32 s{sT}, s2, {self.XM-10}")
            e(f"s_and_b32 s{sKVH}, s{sT}, 7")
        else:
            e(f"s_lshr_b32 s{sT}, s2, 3")
            e(f"s_add_u32 s{sT}, s{sT}, s2")
            e(f"s_and_b32 s{sKVH}, s{sT}, 7")
        e(f"s_lshr_b32 s{sC}, s2, 3")
        e(f"s_mov_b32 s{sCs}, {hex(f2u(CSCALE))}")
        e(f"s_cmp_eq_u32 s3, {W}")
        e("s_cbranch_scc1 L_helper")
        e(f"s_lshl_b32 s{sWI}, s3, 5")
        e(f"s_add_u32 s{sWI}, s{sWI}, s{sC}")
        e(f"s_mul_i32 s{sBase}, s3, {ring}")
        e(f"s_lshl_b32 s{sT}, s{sKVH}, 8")
        e(f"v_lshrrev_b32 v{vT0}, 4, v{vLane}")
        e(f"v_and_b32 v{vT1}, 15, v{vLane}")
        for i in range(4):
            e(f"v_add_u32 v{vT2}, {4*i}, v{vT0}")
            e(f"v_xor_b32 v{vT3}, v{vT2}, v{vT1}")
            e(f"v_lshlrev_b32 v{vT3}, 4, v{vT3}")
            e(f"v_lshl_add_u32 v{vT3}, v{vT2}, 11, v{vT3}")
            e(f"v_add_u32 v{vT3}, s{sT}, v{vT3}")
            e(f"v_subrev_u32 v{vOffK+i}, {1024*i}, v{vT3}")
            e(f"v_and_b32 v{vT3}, 7, v{vT2}")
            e(f"v_lshlrev_b32 v{vT3}, 1, v{vT3}")
            e(f"v_xor_b32 v{vT3}, v{vT3}, v{vT1}")
            e(f"v_lshlrev_b32 v{vT3}, 4, v{vT3}")
            e(f"v_lshl_add_u32 v{vT3}, v{vT2}, 11, v{vT3}")
            e(f"v_add_u32 v{vT3}, s{sT}, v{vT3}")
            e(f"v_subrev_u32 v{vOffV+i}, {1024*i}, v{vT3}")
        e(f"s_add_u32 s{sT2}, s{sWI}, {self.S}")
        e(f"s_and_b32 s{sT2}, s{sT2}, {NW-1}")
        e(f"v_mov_b32 v{vT2}, s{sWI}")
        e(f"v_mov_b32 v{vT3}, s{sT2}")
        e(f"v_cmp_le_u32 s[{sH}:{sH+1}], {HL}, v{vLane}")
        e(f"v_and_b32 v{vDesc}, {HL-1}, v{vLane}")
        e(f"v_mul_u32_u24 v{vDesc}, {NW}, v{vDesc}")
        e(f"v_cndmask_b32 v{vT2}, v{vT2}, v{vT3}, s[{sH}:{sH+1}]")
        e(f"v_add_u32 v{vDesc}, v{vDesc}, v{vT2}")
        if 2 * HL < 64:
            e(f"v_cmp_le_u32 vcc, {2*HL}, v{vLane}")
            e(f"v_mov_b32 v{vT3}, 4096")
            e("s_nop 0")
            e(f"v_cndmask_b32 v{vDesc}, v{vDesc}, v{vT3}, vcc")
        e(f"v_lshlrev_b32 v{vA}, 2, v{vDesc}")
        e(f"v_bfe_u32 v{vT2}, v{vLane}, 2, 1")
        e(f"v_mul_u32_u24 v{vShift}, 5, v{vT2}")
        e(f"v_lshlrev_b32 v{vT2}, 13, v{vT2}")
        e(f"v_and_b32 v{vT3}, 3, v{vLane}")
        e(f"v_lshl_add_u32 v{vT2}, v{vT3}, 8, v{vT2}")
        e(f"v_lshl_add_u32 v{vT2}, v{vT0}, 4, v{vT2}")
        e(f"s_lshl_b32 s{sT}, s{sKVH}, 10")
        e(f"v_add_u32 v{vNm}, s{sT}, v{vT2}")
        e(f"s_mov_b32 s{sT2}, 8192")
        e("s_waitcnt lgkmcnt(0)")
        e(f"s_load_dwordx2 s[{sCtx0}:{sCtx1}], s[16:17], 0")
        srd(SB, 14, 16384)
        srd(SK, 10, KVBYTES)
        srd(SV, 12, KVBYTES)
        srd(SQ, 8, 16384)
        def issue(slot, i, soff):
            if i == 0 or i == 4 or self.force_m0:
                off = slot * 8192 + (4096 if i >= 4 else 0)
                e(f"s_add_u32 m0, s{sBase}, {off}")
                e("s_nop 0")
                self.force_m0 = False
            if i < 4:
                e(f"buffer_load_dwordx4 v{vOffK+i}, s[{SK}:{SK+3}], s{soff} offen offset:{1024*i} {NT} lds")
            else:
                e(f"buffer_load_dwordx4 v{vOffV+i-4}, s[{SV}:{SV+3}], s{soff} offen offset:{1024*(i-4)} {NT} lds")
        self.force_m0 = False
        e(f"buffer_load_dword v{vT2}, v{vA}, s[{SB}:{SB+3}], 0 offen")
        e(f"buffer_load_dword v{vT3}, v{vA}, s[{SB}:{SB+3}], s{sT2} offen")
        for c in range(4):
            e(f"buffer_load_dwordx4 v[{vQ+4*c}:{vQ+4*c+3}], v{vNm}, s[{SQ}:{SQ+3}], 0 offen offset:{64*c}")
        npu = (NF + 7) // 8
        if self.spec:
            for k in range(npu):
                e(f"s_add_u32 s{sPred+k}, s{sWI}, {NW*k}")
                e(f"s_lshl_b32 s{sPred+k}, s{sPred+k}, 15")
            for p in range(NF):
                issue(p // 8, p % 8, sPred + p // 8)
        srd(SWS, 22, WS_REC)
        e(f"v_xor_b32 v{vA}, v{vT0}, v{vT1}")
        for c in range(4):
            e(f"v_xor_b32 v{vNm}, {4*c}, v{vA}")
            e(f"v_lshlrev_b32 v{vNm}, 4, v{vNm}")
            e(f"v_lshl_add_u32 v{vNm}, v{vT1}, 8, v{vNm}")
            e(f"v_add_u32 v{vLK+c}, s{sBase}, v{vNm}")
        e(f"v_lshlrev_b32 v{v4g}, 2, v{vT0}")
        e(f"v_lshrrev_b32 v{vA}, 2, v{vLane}")
        e(f"v_and_b32 v{vNm}, 3, v{vLane}")
        e(f"v_lshlrev_b32 v{vNm}, 3, v{vNm}")
        e(f"v_lshl_add_u32 v{vNm}, v{vA}, 8, v{vNm}")
        e(f"v_add_u32 v{vNm}, s{sBase}, v{vNm}")
        e(f"v_add_u32 v{vNm}, 4096, v{vNm}")
        e(f"v_and_b32 v{vA}, 7, v{vA}")
        for j in range(8):
            e(f"v_xor_b32 v{vLV+j}, {j}, v{vA}")
            e(f"v_lshl_add_u32 v{vLV+j}, v{vLV+j}, 5, v{vNm}")
        e(f"v_mov_b32 v{vNeg}, {hex(f2u(-2e30))}")
        e(f"v_mov_b32 v{vM}, {hex(f2u(-1e30))}")
        e(f"v_mov_b32 v{vL}, 0")
        for k in range(32):
            e(f"v_mov_b32 v{vO+k}, 0")
        self.stamp(0)
        e("s_waitcnt lgkmcnt(0)")
        e(f"s_cmp_gt_i32 s{sCtx0}, 0")
        e(f"s_cselect_b32 s{sMk[0]}, 0, 0x0f0f0f0f")
        e(f"s_cselect_b32 s{sCtx0}, s{sCtx0}, 32768")
        e(f"s_cmp_gt_i32 s{sCtx1}, 0")
        e(f"s_cselect_b32 s{sMk[0]+1}, 0, 0xf0f0f0f0")
        e(f"s_cselect_b32 s{sCtx1}, s{sCtx1}, 32768")
        e(f"s_or_b32 s{sMk[0]}, s{sMk[0]}, s{sMk[0]+1}")
        e(f"s_mov_b32 s{sMk[0]+1}, s{sMk[0]}")
        e(f"s_min_i32 s{sCtx0}, s{sCtx0}, 32768")
        e(f"s_min_i32 s{sCtx1}, s{sCtx1}, 32768")
        e(f"v_lshlrev_b32 v{vDesc}, 4, v{vDesc}")
        e(f"v_sub_u32 v{vA}, s{sCtx0}, v{vDesc}")
        e(f"v_sub_u32 v{vNm}, s{sCtx1}, v{vDesc}")
        e(f"v_med3_i32 v{vA}, v{vA}, 0, 16")
        e(f"v_med3_i32 v{vNm}, v{vNm}, 0, 16")
        e(f"v_cmp_lt_u32 s[{sMk[1]}:{sMk[1]+1}], 0, v{vA}")
        e(f"s_waitcnt vmcnt({(NF if self.spec else 0) + 4})")
        e(f"v_cmp_eq_u32 vcc, v{vT2}, v{vT3}")
        e(f"v_cndmask_b32 v{vDesc}, v{vT2}, v{vT3}, s[{sH}:{sH+1}]")
        e(f"v_cndmask_b32 v{vA}, v{vA}, 0, s[{sH}:{sH+1}]")
        e(f"s_and_b64 vcc, vcc, s[{sMk[1]}:{sMk[1]+1}]")
        e(f"s_xor_b64 vcc, vcc, s[{sH}:{sH+1}]")
        e(f"v_cndmask_b32 v{vNm}, 0, v{vNm}, vcc")
        e(f"v_lshl_or_b32 v{vA}, v{vNm}, 5, v{vA}")
        e(f"v_cmp_ne_u32 s[{sAct}:{sAct+1}], 0, v{vA}")
        e(f"v_lshl_or_b32 v{vDesc}, v{vDesc}, 15, v{vA}")
        e("s_nop 1")
        e(f"s_bcnt1_i32_b64 s{sN}, s[{sAct}:{sAct+1}]")

        def fetch(dst):
            e(f"s_ff1_i32_b64 s{sI}, s[{sAct}:{sAct+1}]")
            e(f"s_bitset0_b64 s[{sAct}:{sAct+1}], s{sI}")
            e(f"v_readlane_b32 s{dst}, v{vDesc}, s{sI}")
            e(f"s_cmp_lt_i32 s{sI}, 0")
            e(f"s_cselect_b32 s{SK+2}, 0, s{SK+2}")
            e(f"s_cselect_b32 s{SV+2}, 0, s{SV+2}")
            e(f"s_cselect_b32 s{dst}, 0, s{dst}")
            e(f"s_and_b32 s{sOff}, s{dst}, 0xffff8000")

        if self.spec:
            e(f"s_mov_b64 s[{sMk[2]}:{sMk[2]+1}], s[{sAct}:{sAct+1}]")
            e(f"s_mov_b32 s{sT}, 0")
            for k in range(npu):
                fetch(sD[k])
                e(f"s_cmp_lg_u32 s{sOff}, s{sPred+k}")
                e(f"s_cselect_b32 s{sT}, 1, s{sT}")
                e(f"s_cmp_eq_u32 s{SK+2}, 0")
                e(f"s_cselect_b32 s{sT}, 1, s{sT}")
            e(f"s_cmp_eq_u32 s{sT}, 0")
            e("s_cbranch_scc1 L_spec_ok")
            e("s_waitcnt vmcnt(0)")
            e(f"s_mov_b64 s[{sAct}:{sAct+1}], s[{sMk[2]}:{sMk[2]+1}]")
            e(f"s_mov_b32 s{SK+2}, {KVBYTES}")
            e(f"s_mov_b32 s{SV+2}, {KVBYTES}")
        for p in range(NF):
            if p % 8 == 0:
                fetch(sD[p // 8])
            issue(p // 8, p % 8, sOff)
        if self.spec:
            lab("L_spec_ok")
        e(f"s_waitcnt vmcnt({NF})")
        e(f"s_cmp_eq_u32 s{sMk[0]}, 0")
        e("s_cbranch_scc1 L_q_ok")
        for k in range(16):
            e(f"v_cndmask_b32 v{vQ+k}, v{vQ+k}, 0, s[{sMk[0]}:{sMk[0]+1}]")
        lab("L_q_ok")
        self.stamp(1)
        e(f"s_cmp_eq_u32 s{sN}, 0")
        e("s_cbranch_scc1 L_epi")

        def wait_issue(slot, i):
            e(f"s_waitcnt vmcnt({NF-1})")
            p = i + NF
            k, ii = p // 8, p % 8
            if ii == 0:
                fetch(sD[k])
            issue((slot + k) % R, ii, sOff)

        lab("L_loop")
        for slot in range(R):
            so = slot * 8192
            self.force_m0 = True
            if not self.nocompute:
                e(f"v_bfe_u32 v{vT0}, s{sD[0]}, v{vShift}, 5")
                e(f"v_sub_u32 v{vT0}, v{vT0}, v{v4g}")
                for r in range(4):
                    e(f"v_cmp_lt_i32 s[{sMk[r]}:{sMk[r]+1}], {r}, v{vT0}")
                e("s_nop 0")
                for r in range(4):
                    e(f"v_cndmask_b32 v{vS+r}, v{vNeg}, 0, s[{sMk[r]}:{sMk[r]+1}]")
            for i in range(4):
                wait_issue(slot, i)
            if not self.nocompute:
                for c in range(4):
                    e(f"ds_read_b128 v[{vKf+4*c}:{vKf+4*c+3}], v{vLK+c} offset:{so}")
                for c in range(4):
                    e(f"s_waitcnt lgkmcnt({3-c})")
                    e(f"v_mfma_f32_16x16x32_bf16 v[{vS}:{vS+3}], v[{vKf+4*c}:{vKf+4*c+3}], v[{vQ+4*c}:{vQ+4*c+3}], v[{vS}:{vS+3}]")
                e("s_nop 7")
                e(f"v_max3_f32 v{vT0}, v{vS}, v{vS+1}, v{vS+2}")
                e(f"v_max3_f32 v{vT0}, v{vT0}, v{vS+3}, v{vM}")
                sk = f"L_skip{slot}"
                if self.skipmax:
                    e(f"v_cmp_gt_f32 vcc, v{vT0}, v{vM}")
                    e(f"s_cbranch_vccz {sk}")
                e(f"v_mov_b32 v{vT1}, v{vT0}")
                e("s_nop 1")
                e(f"v_permlane32_swap_b32 v{vT0}, v{vT1}")
                e("s_nop 0")
                e(f"v_max_f32 v{vT0}, v{vT0}, v{vT1}")
                e(f"v_mov_b32 v{vT1}, v{vT0}")
                e("s_nop 1")
                e(f"v_permlane16_swap_b32 v{vT0}, v{vT1}")
                e("s_nop 0")
                e(f"v_max_f32 v{vT0}, v{vT0}, v{vT1}")
                e(f"v_sub_f32 v{vA}, v{vM}, v{vT0}")
                e(f"v_mul_f32 v{vA}, s{sCs}, v{vA}")
                e(f"v_exp_f32 v{vA}, v{vA}")
                e(f"v_mov_b32 v{vM}, v{vT0}")
                e(f"v_mul_f32 v{vL}, v{vL}, v{vA}")
                for k in range(32):
                    e(f"v_mul_f32 v{vO+k}, v{vO+k}, v{vA}")
                lab(sk)
                e(f"v_mul_f32 v{vNm}, s{sCs}, v{vM}")
                for r in range(4):
                    e(f"v_fma_f32 v{vS+r}, v{vS+r}, s{sCs}, -v{vNm}")
                for r in range(4):
                    e(f"v_exp_f32 v{vS+r}, v{vS+r}")
                e("s_nop 0")
                e(f"v_cvt_pk_bf16_f32 v{vP}, v{vS}, v{vS+1}")
                e(f"v_cvt_pk_bf16_f32 v{vP+1}, v{vS+2}, v{vS+3}")
                e(f"v_add_f32 v{vT0}, v{vS}, v{vS+1}")
                e(f"v_add_f32 v{vT1}, v{vS+2}, v{vS+3}")
                e(f"v_add_f32 v{vL}, v{vL}, v{vT0}")
                e(f"v_add_f32 v{vL}, v{vL}, v{vT1}")
            for i in range(4, 8):
                wait_issue(slot, i)
            if not self.nocompute:
                for j in range(8):
                    e(f"ds_read_b64_tr_b16 v[{vVf+2*j}:{vVf+2*j+1}], v{vLV+j} offset:{so}")
                for j in range(8):
                    e(f"s_waitcnt lgkmcnt({7-j})")
                    e(f"v_mfma_f32_16x16x16_bf16 v[{vO+4*j}:{vO+4*j+3}], v[{vVf+2*j}:{vVf+2*j+1}], v[{vP}:{vP+1}], v[{vO+4*j}:{vO+4*j+3}]")
            kmax = (7 + NF) // 8
            for k in range(kmax):
                e(f"s_mov_b32 s{sD[k]}, s{sD[k+1]}")
            e(f"s_sub_u32 s{sN}, s{sN}, 1")
            e(f"s_cmp_eq_u32 s{sN}, 0")
            if slot < R - 1:
                e("s_cbranch_scc1 L_epi")
            else:
                e("s_cbranch_scc0 L_loop")
        lab("L_epi")
        self.stamp(2)
        e("s_waitcnt vmcnt(0)")
        e(f"v_and_b32 v{vT0}, 15, v{vLane}")
        e(f"v_mul_u32_u24 v{vT1}, 528, v{vT0}")
        e(f"v_lshl_add_u32 v{vT1}, v{v4g}, 2, v{vT1}")
        e(f"v_add_u32 v{vT1}, s{sBase}, v{vT1}")
        e(f"v_lshlrev_b32 v{vT2}, 2, v{vT0}")
        e(f"v_add_u32 v{vT2}, s{sBase}, v{vT2}")
        e(f"v_lshl_add_u32 v{vT3}, v{vT0}, 4, v{v4g}")
        e(f"v_add_u32 v{vT3}, s{sBase}, v{vT3}")
        e(f"v_mul_f32 v{vM}, s{sCs}, v{vM}")
        e("s_mov_b32 exec_lo, 0x00ff00ff")
        e("s_mov_b32 exec_hi, 0x00ff00ff")
        e("s_nop 4")
        for j in range(8):
            e(f"ds_write_b128 v{vT1}, v[{vO+4*j}:{vO+4*j+3}] offset:{64*j}")
        e(f"ds_write_b32 v{vT2}, v{vM} offset:4224")
        e(f"ds_write_b32 v{vT3}, v{vL} offset:4288")
        e("s_mov_b64 exec, -1")
        npass = 256 // (64 * W)
        e(f"v_lshrrev_b32 v{vT0}, 5, v0")
        e(f"v_and_b32 v{vT1}, 31, v0")
        e(f"v_mul_u32_u24 v{vT2}, 528, v{vT0}")
        e(f"v_lshl_add_u32 v{vT2}, v{vT1}, 4, v{vT2}")
        e(f"v_lshlrev_b32 v{vT3}, 2, v{vT0}")
        e(f"v_lshlrev_b32 v{vA}, 4, v{vT0}")
        e(f"v_lshlrev_b32 v{vNm}, 4, v0")
        e(f"v_lshlrev_b32 v{vDesc}, 3, v{vT0}")
        e(f"v_cmp_eq_u32 s[{sMk[0]}:{sMk[0]+1}], 0, v{vT1}")
        e(f"s_lshl_b32 s{sT}, s{sKVH}, 5")
        e(f"s_add_u32 s{sT}, s{sT}, s{sC}")
        e(f"s_lshl_b32 s{sT2}, s{sT}, 7")
        e(f"s_add_u32 s{sT2}, s{sT2}, {ML_OFF}")
        e(f"s_lshl_b32 s{sT}, s{sT}, 12")
        e(f"s_mov_b32 s{sI}, 0xfffffffe")
        e("s_waitcnt lgkmcnt(0)")
        e("s_barrier")
        qs = 2 * W
        for ps in range(npass):
            rO = vO; rL = vO + 4 * W; rM = vKf
            for w in range(W):
                e(f"ds_read_b32 v{rM+w}, v{vT3} offset:{w*ring + 4224 + ps*qs*4}")
            for w in range(W):
                e(f"ds_read_b128 v[{rL+4*w}:{rL+4*w+3}], v{vA} offset:{w*ring + 4288 + ps*qs*16}")
            for w in range(W):
                e(f"ds_read_b128 v[{rO+4*w}:{rO+4*w+3}], v{vT2} offset:{w*ring + ps*qs*528}")
            e(f"s_waitcnt lgkmcnt({2*W})")
            mm = vVf
            e(f"v_max_f32 v{mm}, v{rM}, v{rM+1}")
            for w in range(2, W):
                e(f"v_max_f32 v{mm}, v{mm}, v{rM+w}")
            for w in range(W):
                e(f"v_sub_f32 v{rM+w}, v{rM+w}, v{mm}")
            for w in range(W):
                e(f"v_exp_f32 v{rM+w}, v{rM+w}")
            e(f"s_waitcnt lgkmcnt({W})")
            for w in range(W):
                e(f"v_add_f32 v{rL+4*w}, v{rL+4*w}, v{rL+4*w+1}")
                e(f"v_add_f32 v{rL+4*w+2}, v{rL+4*w+2}, v{rL+4*w+3}")
                e(f"v_add_f32 v{rL+4*w}, v{rL+4*w}, v{rL+4*w+2}")
            e(f"v_mul_f32 v{mm+1}, v{rL}, v{rM}")
            for w in range(1, W):
                e(f"v_fmac_f32 v{mm+1}, v{rL+4*w}, v{rM+w}")
            e("s_waitcnt lgkmcnt(0)")
            res = vVf + 4
            for k in range(4):
                e(f"v_mul_f32 v{res+k}, v{rO+k}, v{rM}")
            for w in range(1, W):
                for k in range(4):
                    e(f"v_fmac_f32 v{res+k}, v{rO+4*w+k}, v{rM+w}")
            for k in range(4):
                e(f"v_min_u32 v{res+k}, s{sI}, v{res+k}")
            e(f"v_min_u32 v{mm}, s{sI}, v{mm}")
            e(f"v_min_u32 v{mm+1}, s{sI}, v{mm+1}")
            e(f"buffer_store_dwordx4 v[{res}:{res+3}], v{vNm}, s[{SWS}:{SWS+3}], s{sT} offen offset:{ps*64*W*16} sc1")
            e(f"s_mov_b64 exec, s[{sMk[0]}:{sMk[0]+1}]")
            e(f"buffer_store_dwordx2 v[{mm}:{mm+1}], v{vDesc}, s[{SWS}:{SWS+3}], s{sT2} offen offset:{ps*qs*8} sc1")
            e("s_mov_b64 exec, -1")
            e("s_nop 1")
        self.stamp(3)
        if self.stamps:
            e("s_waitcnt vmcnt(0)")
            self.stamp(4)
        self.flush_stamps()
        e("s_endpgm")

        lab("L_helper")
        hv = vO
        e("s_waitcnt lgkmcnt(0)")
        srd(SWS, 22, WS_REC)
        srd(SD, 20, 256)
        srd(SO, 18, 16384)
        self.stamp(0)
        e(f"s_lshl_b32 s{sT}, s{sKVH}, 5")
        e(f"s_add_u32 s{sT}, s{sT}, s{sC}")
        e(f"s_lshl_b32 s{sT2}, s{sT}, 7")
        e(f"s_add_u32 s{sT2}, s{sT2}, {ML_OFF}")
        e(f"s_lshl_b32 s{sT}, s{sT}, 12")
        if self.nohelp == 4:
            e("s_branch L_noclear")
        if self.nohelp == 1:
            e("s_barrier")
            self.flush_stamps()
            e("s_endpgm")
        for k in range(4):
            e(f"v_mov_b32 v{hv+k}, -1")
        e(f"v_lshlrev_b32 v{vT0}, 4, v{vLane}")
        if self.nohelp == 9:
            e(f"s_cmp_lg_u32 s{sC}, 0")
            e("s_cbranch_scc1 L_n9")
            e(f"s_mov_b32 s{sN}, 32")
            lab("L_n9l")
            for i in range(4):
                e(f"buffer_store_dwordx4 v[{hv}:{hv+3}], v{vT0}, s[{SWS}:{SWS+3}], s{sT} offen offset:{1024*i} sc1")
            e(f"s_add_u32 s{sT}, s{sT}, 4096")
            e("s_waitcnt vmcnt(8)")
            e(f"s_sub_u32 s{sN}, s{sN}, 1")
            e(f"s_cmp_lg_u32 s{sN}, 0")
            e("s_cbranch_scc1 L_n9l")
            e("s_waitcnt vmcnt(0)")
            self.stamp(1)
            lab("L_n9")
            e("s_barrier")
            self.flush_stamps()
            e("s_endpgm")
        if self.nohelp != 8:
          for i in range(4):
            e(f"buffer_store_dwordx4 v[{hv}:{hv+3}], v{vT0}, s[{SWS}:{SWS+3}], s{sT} offen offset:{1024*i} sc1")
          e("s_mov_b64 exec, 0xff")
          e(f"buffer_store_dwordx4 v[{hv}:{hv+3}], v{vT0}, s[{SWS}:{SWS+3}], s{sT2} offen sc1")
          e("s_mov_b64 exec, -1")
        e(f"s_lshl_b32 s{sI}, s{sKVH}, 2")
        e(f"v_mov_b32 v{vT1}, s{sI}")
        e(f"v_mov_b32 v{vT2}, 1")
        e("s_waitcnt vmcnt(0)")
        e("s_mov_b64 exec, 1")
        if self.nohelp != 7:
            e(f"buffer_atomic_add v{vT2}, v{vT1}, s[{SD}:{SD+3}], 0 offen sc1")
        e("s_mov_b64 exec, -1")
        if self.nohelp in (2, 7, 8):
            self.stamp(1)
            e("s_barrier")
            self.flush_stamps()
            e("s_endpgm")
        if self.nohelp == 4:
            lab("L_noclear")
        e(f"v_lshrrev_b32 v{vT0}, 3, v{vLane}")
        e(f"v_and_b32 v{vT2}, 7, v{vLane}")
        e(f"v_lshlrev_b32 v{vA}, 12, v{vT0}")
        e(f"v_lshl_add_u32 v{vA}, v{vT2}, 4, v{vA}")
        e(f"v_lshlrev_b32 v{vNm}, 7, v{vT0}")
        e(f"s_lshl_b32 s{sT}, s{sKVH}, 17")
        e(f"s_lshl_b32 s{sT2}, s{sC}, 7")
        e(f"s_add_u32 s{sT}, s{sT}, s{sT2}")
        for i in range(4):
            e(f"s_add_u32 s{sD[i]}, s{sT}, {i*8*4096}")
        e(f"s_lshl_b32 s{sT}, s{sKVH}, 12")
        e(f"s_lshr_b32 s{sT2}, s{sC}, 2")
        e(f"s_lshl_b32 s{sOff}, s{sT2}, 3")
        e(f"s_add_u32 s{sT}, s{sT}, s{sOff}")
        e(f"s_add_u32 s{sT}, s{sT}, {ML_OFF}")
        e(f"s_lshr_b32 s{sOff}, s{sT2}, 2")
        e(f"s_lshl_b32 s{sOff}, s{sOff}, 13")
        e(f"s_and_b32 s{sT2}, s{sT2}, 3")
        e(f"s_lshl_b32 s{sT2}, s{sT2}, 8")
        e(f"s_add_u32 s{sOff}, s{sOff}, s{sT2}")
        e(f"s_lshl_b32 s{sT2}, s{sKVH}, 10")
        e(f"s_add_u32 s{sOff}, s{sOff}, s{sT2}")
        e(f"s_and_b32 s{sT2}, s{sC}, 3")
        e(f"s_lshl_b32 s{sT2}, s{sT2}, 6")
        e(f"s_add_u32 s{sOff}, s{sOff}, s{sT2}")
        e(f"v_lshlrev_b32 v{vDesc}, 3, v{vT2}")
        e(f"s_mov_b32 s{sN}, {POLL_MAX}")
        if self.nohelp == 4:
            e("s_branch L_cleared")
        lab("L_wait_clear")
        e(f"buffer_load_dword v{vT3}, v{vT1}, s[{SD}:{SD+3}], 0 offen sc1")
        e("s_waitcnt vmcnt(0)")
        e(f"v_readfirstlane_b32 s{sI}, v{vT3}")
        e(f"s_cmp_ge_u32 s{sI}, 32")
        e("s_cbranch_scc1 L_cleared")
        e(f"s_sleep {self.slp}")
        e(f"s_sub_u32 s{sN}, s{sN}, 1")
        e(f"s_cmp_lg_u32 s{sN}, 0")
        e("s_cbranch_scc1 L_wait_clear")
        lab("L_cleared")
        self.stamp(1)
        e("s_barrier")
        self.stamp(2)
        if self.nohelp == 3:
            self.flush_stamps()
            e("s_endpgm")
        rO = hv; rML = hv + 16
        e(f"s_mov_b32 s{sN}, {POLL_MAX}")
        lab("L_poll")
        for i in range(4):
            e(f"buffer_load_dwordx2 v[{rML+2*i}:{rML+2*i+1}], v{vNm}, s[{SWS}:{SWS+3}], s{sT} offen offset:{1024*i} sc1")
        for i in range(4):
            e(f"buffer_load_dwordx4 v[{rO+4*i}:{rO+4*i+3}], v{vA}, s[{SWS}:{SWS+3}], s{sD[i]} offen sc1")
        e("s_waitcnt vmcnt(0)")
        e(f"v_max3_u32 v{vT0}, v{rO}, v{rO+1}, v{rO+2}")
        for k in range(3, 23, 2):
            e(f"v_max3_u32 v{vT0}, v{vT0}, v{rO+k}, v{rO+k+1}")
        e(f"v_max_u32 v{vT0}, v{vT0}, v{rO+23}")
        e(f"v_cmp_eq_u32 vcc, -1, v{vT0}")
        e("s_cbranch_vccz L_ready")
        e(f"s_sleep {self.slp2}")
        e(f"s_sub_u32 s{sN}, s{sN}, 1")
        e(f"s_cmp_lg_u32 s{sN}, 0")
        e("s_cbranch_scc1 L_poll")
        lab("L_ready")
        self.stamp(3)

        def xreduce(r, tmp, op):
            e("s_nop 1")
            e(f"{op}_dpp v{r}, v{r}, v{r} row_ror:8 row_mask:0xf bank_mask:0xf")
            e(f"v_mov_b32 v{tmp}, v{r}")
            e("s_nop 1")
            e(f"v_permlane16_swap_b32 v{r}, v{tmp}")
            e("s_nop 0")
            e(f"{op} v{r}, v{r}, v{tmp}")
            e(f"v_mov_b32 v{tmp}, v{r}")
            e("s_nop 1")
            e(f"v_permlane32_swap_b32 v{r}, v{tmp}")
            e("s_nop 0")
            e(f"{op} v{r}, v{r}, v{tmp}")
        e(f"v_max3_f32 v{vT0}, v{rML}, v{rML+2}, v{rML+4}")
        e(f"v_max_f32 v{vT0}, v{vT0}, v{rML+6}")
        xreduce(vT0, vT1, "v_max_f32")
        for i in range(4):
            e(f"v_sub_f32 v{rML+2*i}, v{rML+2*i}, v{vT0}")
        for i in range(4):
            e(f"v_exp_f32 v{rML+2*i}, v{rML+2*i}")
        e("s_nop 0")
        acc = vKf
        for k in range(4):
            e(f"v_mul_f32 v{acc+k}, v{rO+k}, v{rML}")
        e(f"v_mul_f32 v{acc+4}, v{rML+1}, v{rML}")
        for i in range(1, 4):
            for k in range(4):
                e(f"v_fmac_f32 v{acc+k}, v{rO+4*i+k}, v{rML+2*i}")
            e(f"v_fmac_f32 v{acc+4}, v{rML+2*i+1}, v{rML+2*i}")
        tm = vKf + 8
        e("s_nop 1")
        for k in range(5):
            e(f"v_add_f32_dpp v{acc+k}, v{acc+k}, v{acc+k} row_ror:8 row_mask:0xf bank_mask:0xf")
        for sw in ("v_permlane16_swap_b32", "v_permlane32_swap_b32"):
            for k in range(5):
                e(f"v_mov_b32 v{tm+k}, v{acc+k}")
            e("s_nop 1")
            for k in range(5):
                e(f"{sw} v{acc+k}, v{tm+k}")
            e("s_nop 0")
            for k in range(5):
                e(f"v_add_f32 v{acc+k}, v{acc+k}, v{tm+k}")
        e(f"v_rcp_f32 v{acc+4}, v{acc+4}")
        e("s_nop 0")
        for k in range(4):
            e(f"v_mul_f32 v{acc+k}, v{acc+k}, v{acc+4}")
        e(f"v_cvt_pk_bf16_f32 v{tm}, v{acc}, v{acc+1}")
        e(f"v_cvt_pk_bf16_f32 v{tm+1}, v{acc+2}, v{acc+3}")
        e("s_mov_b64 exec, 0xff")
        e(f"buffer_store_dwordx2 v[{tm}:{tm+1}], v{vDesc}, s[{SO}:{SO+3}], s{sOff} offen")
        e("s_mov_b64 exec, -1")
        if self.stamps:
            e("s_waitcnt vmcnt(0)")
            self.stamp(4)
        self.flush_stamps(True)
        lab("L_exit")
        e("s_endpgm")

        nvg = (self.nv + 7) // 8 * 8
        out = HEADER
        out += f"; @launch grid=(256,1,1) block=({64*(W+1)},1,1) lds={lds}\n"
        out += '.amdgcn_target "amdgcn-amd-amdhsa--gfx950"\n.text\n'
        out += f".globl {NAME}_kernel\n.p2align 8\n.type {NAME}_kernel,@function\n{NAME}_kernel:\n"
        out += "\n".join(self.lines) + "\n"
        out += f""".section .rodata,"a"
.p2align 6
.amdhsa_kernel {NAME}_kernel
  .amdhsa_next_free_vgpr {nvg}
  .amdhsa_next_free_sgpr 96
  .amdhsa_accum_offset {nvg}
  .amdhsa_group_segment_fixed_size 0
  .amdhsa_kernarg_size 64
  .amdhsa_user_sgpr_count 2
  .amdhsa_user_sgpr_kernarg_segment_ptr 1
  .amdhsa_system_sgpr_workgroup_id_x 1
.end_amdhsa_kernel
"""
        return out


if __name__ == "__main__":
    path = sys.argv[1]
    kw = {}
    for a in sys.argv[2:]:
        k, v = a.split("=")
        kw[k] = int(v)
    open(path, "w").write(Gen(**kw).build())
```

```python
import sys, math, struct
from gen import NAME, HEADER, f2u, KVBYTES, CSCALE

EP_OFF = 0x100000
CT_OFF = 0x101000
STAMP_OFF = 0x400000
WS_REC = 0x800000
POLL_MAX = 200000
LIST = 65536
BIG = 0x7fffffff
FL = ['', 'sc1', 'sc0 sc1', 'sc1 nt', 'sc0 sc1 nt', 'nt', 'sc0']


class Gen:
    def __init__(self, NF=20, D=1, J0=192, K=96, stamps=0, prio=3, nocompute=0, slp=1, dom=2, nopoll=0, probe=0, st2=0, msgf=1, pollf=1, outf=0,
                 NF0=32, NS=2, stag=7, NF2=0, FT=32, qw=3, eb=0, W0=64, trace=0, tkx=0, apoll=0, pd=0, sat=0):
        self.NF, self.D, self.J0, self.K = NF, D, J0, K
        self.stamps, self.prio, self.nocompute, self.slp, self.dom, self.nopoll = stamps, prio, nocompute, slp, dom, nopoll
        self.probe = probe
        self.eb = eb
        self.sat = sat
        assert not sat or (tkx and D == 1)
        self.tkx, self.apoll, self.pd = tkx, apoll, pd
        self.trace = trace
        self.W0 = W0
        self.NF0, self.NS, self.stag, self.NF2, self.FT, self.qw = NF0, NS, stag, NF2, FT, qw
        self.st2, self.msgf, self.pollf, self.outf = st2, msgf, pollf, outf
        assert 16 <= NF <= 24 and 0 <= D <= 3
        assert K <= 128 and K % 2 == 0 and J0 % 32 == 0 and (dom * K) % 32 == 0 and J0 >= 128
        assert dom in (1, 2, 4)
        self.lines = []
        self.nv = 0

    def e(self, s):
        self.lines.append("    " + s)

    def lab(self, s):
        self.lines.append(s + ":")

    def valloc(self, n=1, align=1):
        self.nv = (self.nv + align - 1) // align * align
        r = self.nv
        self.nv += n
        return r

    def stamp(self, idx):
        if not self.stamps:
            return
        e = self.e
        e("s_memrealtime s[90:91]")
        e("s_waitcnt lgkmcnt(0)")
        e(f"v_mov_b32 v{self.vSt[idx]}, s90")

    def flush_stamps(self):
        if not self.stamps:
            return
        e = self.e
        e("s_mov_b64 exec, 1")
        e("s_lshl_b32 s90, s2, 3")
        e("s_add_u32 s90, s90, s3")
        e("s_lshl_b32 s90, s90, 5")
        e(f"s_add_u32 s90, s90, {STAMP_OFF}")
        e(f"v_mov_b32 v{self.vStT}, 0")
        for i in range(8):
            e(f"buffer_store_dword v{self.vSt[i]}, v{self.vStT}, s[44:47], s90 offen offset:{4*i}")
        e("s_mov_b64 exec, -1")

    def srd(self, d, p, size):
        e = self.e
        e(f"s_mov_b32 s{d}, s{p}")
        e(f"s_mov_b32 s{d+1}, s{p+1}")
        e(f"s_mov_b32 s{d+2}, {size}")
        e(f"s_mov_b32 s{d+3}, 0x00020000")

    def build(self):
        NF, D, J0, K, dom = self.NF, self.D, self.J0, self.K, self.dom
        e, lab, srd = self.e, self.lab, self.srd
        kk = (7 + NF) // 16
        ib = (7 + NF) % 16
        LA = kk + 2
        NF0, NS, NF2 = self.NF0, self.NS, self.NF2
        assert kk == 1 and 16 + ib <= NF0 <= 32 + ib
        NSPEC = (NF0 + 15) // 16
        assert J0 >= 64 * NSPEC
        QL = 49152
        NMIN2 = (2 * (D + LA) + 3) // 4 * 4
        assert NMIN2 >= 2 * (kk + 1)
        lds = LIST + 1280
        sKVH, sC, sT, sT2, sTag = 4, 5, 6, 7, 42
        SWS = 44
        if self.stamps:
            self.vSt = list(range(112, 120))
            self.vStT = 120

        e("s_cmp_ge_u32 s2, 256")
        e("s_cbranch_scc1 L_exit")
        if self.stamps:
            for i in range(8):
                e(f"v_mov_b32 v{self.vSt[i]}, 0")
            self.stamp(7)
        if self.probe:
            e("s_memrealtime s[82:83]")
        e("s_load_dwordx16 s[8:23], s[0:1], 0")
        e("v_lshrrev_b32 v1, 6, v0")
        e(f"s_lshr_b32 s{sT}, s2, 5")
        e(f"s_xor_b32 s{sT}, s{sT}, s2")
        e("v_readfirstlane_b32 s3, v1")
        e(f"s_and_b32 s{sKVH}, s{sT}, 7")
        e(f"s_lshr_b32 s{sC}, s2, 3")
        e("s_cmp_lg_u32 s3, 0")
        e("s_cbranch_scc1 L_consumer")

        vOffK, vOffV = 4, 8
        vL_, vD = 12, 16
        SKA, SKB, SVA, SVB, SO = 24, 28, 32, 36, 48
        sA, sB, sBuf, sFull = 52, 53, 54, 55
        sE = [56, 57, 58, 59, 60, 61]
        sP = [62, 63, 64, 65, 66, 67]
        if self.prio:
            e(f"s_setprio {self.prio}")
        e("v_lshrrev_b32 v1, 4, v0")
        e("v_and_b32 v2, 15, v0")
        e(f"s_lshl_b32 s{sT}, s{sKVH}, 8")
        e(f"v_lshlrev_b32 v3, 11, v1")
        e(f"v_add_u32 v3, s{sT}, v3")
        e(f"v_xor_b32 v{vOffK}, v1, v2")
        e(f"v_lshl_add_u32 v{vOffK}, v{vOffK}, 4, v3")
        e("v_lshlrev_b32 v1, 1, v1")
        e(f"v_xor_b32 v{vOffV}, v1, v2")
        e(f"v_lshl_add_u32 v{vOffV}, v{vOffV}, 4, v3")
        for i in range(1, 4):
            e(f"v_xor_b32 v{vOffK+i}, {64*i}, v{vOffK}")
            e(f"v_add_u32 v{vOffK+i}, {7168*i}, v{vOffK+i}")
        e(f"v_xor_b32 v{vOffV+1}, 128, v{vOffV}")
        e(f"v_add_u32 v{vOffV+2}, {7168*2}, v{vOffV}")
        e(f"v_add_u32 v{vOffV+3}, {7168*3}, v{vOffV+1}")
        e(f"v_add_u32 v{vOffV+1}, {7168}, v{vOffV+1}")
        for k in range(2 * NSPEC):
            e(f"s_add_u32 s{sP[k]}, s{sC}, {32*k}")
            e(f"s_lshl_b32 s{sP[k]}, s{sP[k]}, 15")
        e(f"s_mov_b32 s{sFull}, {KVBYTES}")
        for S in (SKA, SKB, SVA, SVB):
            e(f"s_mov_b32 s{S+2}, s{sFull}")
            e(f"s_mov_b32 s{S+3}, 0x00020000")
        e(f"s_add_u32 s{sT}, s{sT}, {EP_OFF}")
        if self.st2:
            self.stamp(2)
        e("s_waitcnt lgkmcnt(0)")
        if self.st2:
            self.stamp(3)
        e(f"s_mov_b64 s[{SKA}:{SKA+1}], s[10:11]")
        e(f"s_mov_b64 s[{SKB}:{SKB+1}], s[10:11]")
        if self.eb:
            e("s_barrier")

        def issue(p, sa, sb, m0const=None):
            grp, i = p // 4, p % 4
            if i == 0 or self.force_m0:
                if m0const is None:
                    e(f"s_add_u32 m0, s{sBuf}, {4096*grp}")
                else:
                    e(f"s_mov_b32 m0, {m0const + 4096*grp}")
                e("s_nop 0")
                self.force_m0 = False
            S = (SKA, SKB, SVA, SVB)[grp]
            so = (sa, sb)[grp & 1]
            vo = (vOffK if grp < 2 else vOffV) + i
            e(f"buffer_load_dwordx4 v{vo}, s[{S}:{S+3}], s{so} offen offset:{1024*i} nt lds")
        self.force_m0 = False
        for p in range(NF0):
            r = p // 16
            if p == 8:
                if self.st2:
                    self.stamp(4)
                e(f"s_mov_b64 s[{SVA}:{SVA+1}], s[12:13]")
                e(f"s_mov_b64 s[{SVB}:{SVB+1}], s[12:13]")
            if p >= self.W0:
                e(f"s_waitcnt vmcnt({self.W0-1})")
            issue(p % 16, sP[2*r], sP[2*r+1], 16384 * r)
        self.stamp(0)
        e(f"s_load_dword s{sTag}, s[22:23], s{sT}")
        srd(SWS, 22, WS_REC)
        srd(SO, 18, 16384)
        e(f"v_mov_b32 v{vL_}, {LIST}")
        vPA, vOA = 13, 14
        sMB, sEP, sOO = 68, 69, 70
        e(f"s_mov_b32 s{sEP}, s{sT}")
        e(f"v_lshlrev_b32 v{vPA}, 4, v0")
        e(f"s_lshl_b32 s{sMB}, s{sKVH}, 5")
        e(f"s_add_u32 s{sMB}, s{sMB}, s{sC}")
        e(f"s_lshl_b32 s{sMB}, s{sMB}, 12")
        e("v_bfe_u32 v1, v0, 2, 1")
        e("v_and_b32 v2, 3, v0")
        e("v_lshlrev_b32 v1, 13, v1")
        e(f"v_lshl_add_u32 v{vOA}, v2, 8, v1")
        e("v_bfe_u32 v1, v0, 4, 1")
        e(f"v_lshl_add_u32 v{vOA}, v1, 2, v{vOA}")
        e("v_bfe_u32 v1, v0, 5, 1")
        e(f"v_lshl_add_u32 v{vOA}, v1, 1, v{vOA}")
        sXM = 40
        e(f"s_mov_b32 s{sXM}, 0x00ff00ff")
        e(f"s_mov_b32 s{sXM+1}, 0x00ff00ff")
        e(f"s_lshl_b32 s{sOO}, s{sKVH}, 10")
        e(f"s_lshl_b32 s{sT}, s{sC}, 3")
        e(f"s_add_u32 s{sOO}, s{sOO}, s{sT}")
        e("s_waitcnt lgkmcnt(0)")
        e(f"s_add_u32 s{sTag}, s{sTag}, 1")
        e(f"s_waitcnt vmcnt({NF0-8})")
        e("s_barrier")
        nrd = 6
        e(f"ds_read_b128 v[{vD}:{vD+3}], v{vL_}")
        e(f"ds_read_b64 v[{vD+4}:{vD+5}], v{vL_} offset:16")
        e(f"v_add_u32 v{vL_}, {4*nrd}, v{vL_}")
        e("s_waitcnt lgkmcnt(0)")
        for k in range(nrd):
            e(f"v_readfirstlane_b32 s{sE[k]}, v{vD+k}")
        for k in range(2 * NSPEC):
            d = sT if k == 0 else sT2
            e(f"s_xor_b32 s{d}, s{sE[k]}, s{sP[k]}")
            e(f"s_sub_u32 s{d}, s{d}, 1")
            if k:
                e(f"s_max_u32 s{sT}, s{sT}, s{sT2}")

        def setround(ea, eb):
            e(f"s_and_b32 s{sA}, s{ea}, 0xffff8000")
            e(f"s_and_b32 s{sB}, s{eb}, 0xffff8000")
            e(f"s_and_b32 s{sT2}, s{ea}, 0x3ff")
            e(f"s_cselect_b32 s{SKA+2}, s{sFull}, 0")
            e(f"s_cselect_b32 s{SVA+2}, s{sFull}, 0")
            e(f"s_and_b32 s{sT2}, s{eb}, 0x3ff")
            e(f"s_cselect_b32 s{SKB+2}, s{sFull}, 0")
            e(f"s_cselect_b32 s{SVB+2}, s{sFull}, 0")
        e(f"s_cmp_lt_u32 s{sT}, 0x3ff")
        e("s_cbranch_scc1 L_spec_ok")
        e("s_waitcnt vmcnt(0)")
        for p in range(NF0):
            r = p // 16
            if p % 16 == 0:
                setround(sE[2*r], sE[2*r+1])
            issue(p % 16, sA, sB, 16384 * r)
        e(f"s_waitcnt vmcnt({NF0-8})")
        e("s_barrier")
        lab("L_spec_ok")
        self.stamp(1)
        if self.trace:
            e("v_mov_b32 v121, 0")
            e("s_mov_b32 s81, 1")
        if self.probe:
            e("s_memrealtime s[84:85]")
        p0 = NF0
        while p0 < 32:
            if p0 == NF0:
                setround(sE[2], sE[3])
                self.force_m0 = True
            e(f"s_waitcnt vmcnt({NF-1})")
            issue(p0 % 16, sA, sB, 16384)
            p0 += 1
        setround(sE[4], sE[5])
        e(f"s_mov_b32 s{sBuf}, {16384*2}")
        pe = p0 % 16
        assert pe <= ib
        if pe % 4:
            e(f"s_add_u32 m0, s{sBuf}, {4096*(pe//4)}")
        if pe:
            e("s_branch L_enter")
        lab("L_round")
        for p in range(16):
            if p == pe and pe:
                lab("L_enter")
            e(f"s_waitcnt vmcnt({NF-1})")
            if p == ib:
                if self.trace == 2:
                    e("s_memrealtime s[88:89]")
                e("s_barrier")
                if self.trace in (1, 3):
                    e("s_memrealtime s[88:89]")
                e(f"ds_read_b64 v[{vD}:{vD+1}], v{vL_}")
                e(f"v_add_u32 v{vL_}, 8, v{vL_}")
            issue(p, sA, sB)
        lab("L_next")
        e(f"s_add_u32 s{sBuf}, s{sBuf}, 16384")
        e(f"s_and_b32 s{sBuf}, s{sBuf}, 0xffff")
        e("s_waitcnt lgkmcnt(0)")
        if self.trace:
            e("s_lshl_b64 exec, 1, s81")
            e("v_mov_b32 v121, s88")
            e("s_mov_b64 exec, -1")
            e("s_add_u32 s81, s81, 1")
        e(f"v_readfirstlane_b32 s{sE[0]}, v{vD}")
        e(f"v_readfirstlane_b32 s{sE[1]}, v{vD+1}")
        setround(sE[0], sE[1])
        if NF2:
            e(f"s_bitcmp1_b32 s{sE[0]}, 11")
            e("s_cbranch_scc1 L_fast")
        e(f"s_cmp_lg_u32 s{sE[0]}, 0")
        e("s_cbranch_scc1 L_round")
        if NF2:
            e("s_branch L_drain")
            lab("L_fast")
            for p in range(16):
                if NF2 < 40:
                    e(f"s_waitcnt vmcnt({NF2-1})")
                issue(p, sA, sB)
            e("s_waitcnt vmcnt(24)")
            e("s_barrier")
            e(f"ds_read_b64 v[{vD}:{vD+1}], v{vL_}")
            e(f"v_add_u32 v{vL_}, 8, v{vL_}")
            e("s_branch L_next")
            lab("L_drain")
        if not self.st2:
            self.stamp(2)
        for k in range(kk - 1, -1, -1):
            e(f"s_waitcnt vmcnt({8+16*k})")
            e("s_barrier")
        e("s_waitcnt vmcnt(0)")
        e("s_barrier")
        if not self.st2:
            self.stamp(3)
        if self.trace:
            e("v_lshlrev_b32 v122, 2, v0")
            e("s_lshl_b32 s88, s2, 9")
            e(f"s_add_u32 s88, s88, {STAMP_OFF + 0x10000}")
            e(f"buffer_store_dword v121, v122, s[{SWS}:{SWS+3}], s88 offen")
            e("s_waitcnt vmcnt(0)")
        if self.probe:
            e("s_memrealtime s[86:87]")
        RS = [24 + 16 * k for k in range(NS)]
        sM = [[52 + 8 * k + 2 * i for i in range(4)] for k in range(2)] + [[72, 74, 76, 78]]
        sN = 80
        if self.nopoll:
            self.flush_stamps()
            e("s_endpgm")

        ap = self.apoll

        def poll(k, masked):
            for i in range(4):
                if masked:
                    e(f"s_mov_b64 exec, s[{sM[k][i]}:{sM[k][i]+1}]")
                r = RS[k] + 4 * i
                if ap == 2 or (ap and masked):
                    for q in range(4):
                        e(f"v_mov_b32 v{r+q}, 0")
                    e(f"buffer_atomic_add_x2 v[{r+2}:{r+3}], v{vPA}, s[{SWS}:{SWS+3}], s{sMB} offen offset:{1024*i+8} sc0 sc1")
                    e(f"buffer_atomic_add_x2 v[{r}:{r+1}], v{vPA}, s[{SWS}:{SWS+3}], s{sMB} offen offset:{1024*i} sc0 sc1")
                else:
                    e(f"buffer_load_dwordx4 v[{r}:{r+3}], v{vPA}, s[{SWS}:{SWS+3}], s{sMB} offen offset:{1024*i} {FL[self.pollf]}")
            if masked:
                e("s_mov_b64 exec, -1")
        e(f"s_mov_b32 s{sN}, {POLL_MAX}")
        if self.pd:
            e(f"s_sleep {self.pd}")
        assert not ap or NS == 1
        for k in range(NS):
            if k:
                e(f"s_sleep {self.stag}")
            poll(k, False)
        lab("L_poll")
        for k in range(NS):
            e(f"s_waitcnt vmcnt({4*(NS-1)})")
            for i in range(4):
                e(f"v_cmp_ne_u32 s[{sM[k][i]}:{sM[k][i]+1}], s{sTag}, v{RS[k]+4*i+3}")
            e(f"s_or_b64 vcc, s[{sM[k][0]}:{sM[k][0]+1}], s[{sM[k][1]}:{sM[k][1]+1}]")
            e(f"s_or_b64 vcc, vcc, s[{sM[k][2]}:{sM[k][2]+1}]")
            e(f"s_or_b64 vcc, vcc, s[{sM[k][3]}:{sM[k][3]+1}]")
            e(f"s_cbranch_scc0 L_ready{k}")
            if self.slp:
                e(f"s_sleep {self.slp}")
            poll(k, True)
        e(f"s_sub_u32 s{sN}, s{sN}, 1")
        e(f"s_cmp_lg_u32 s{sN}, 0")
        e("s_cbranch_scc1 L_poll")
        mx, tm, den, t5 = 72, 73, 74, 76
        U, acc = 80, 96
        for k in range(NS):
            R = RS[k]
            lab(f"L_ready{k}")
            if not self.st2:
                self.stamp(4)

            def unp(j):
                src = R + 4 * (j // 4) + (j // 2) % 2
                if j % 2:
                    e(f"v_and_b32 v{U+j}, 0xffff0000, v{src}")
                else:
                    e(f"v_lshlrev_b32 v{U+j}, 16, v{src}")
            e(f"v_max3_f32 v{mx}, v{R+2}, v{R+6}, v{R+10}")
            e(f"v_max_f32 v{mx}, v{mx}, v{R+14}")
            unp(0); unp(1)
            e(f"v_max_f32_dpp v{mx}, v{mx}, v{mx} row_ror:8 row_mask:0xf bank_mask:0xf")
            e(f"v_mov_b32 v{tm}, v{mx}")
            unp(2); unp(3)
            e(f"v_permlane16_swap_b32 v{mx}, v{tm}")
            unp(4)
            e(f"v_max_f32 v{mx}, v{mx}, v{tm}")
            e(f"v_mov_b32 v{tm}, v{mx}")
            unp(5); unp(6)
            e(f"v_permlane32_swap_b32 v{mx}, v{tm}")
            unp(7)
            e(f"v_max_f32 v{mx}, v{mx}, v{tm}")
            for i in range(4):
                e(f"v_sub_f32 v{R+4*i+2}, v{R+4*i+2}, v{mx}")
            for i in range(4):
                e(f"v_exp_f32 v{R+4*i+2}, v{R+4*i+2}")
                unp(8 + 2 * i); unp(9 + 2 * i)

            def pk(i, h):
                w = R + 4 * i + 2
                a = acc + 2 * h
                if i == 0:
                    e(f"v_pk_mul_f32 v[{a}:{a+1}], v[{U+2*h}:{U+2*h+1}], v[{w}:{w+1}] op_sel_hi:[1,0]")
                else:
                    e(f"v_pk_fma_f32 v[{a}:{a+1}], v[{U+4*i+2*h}:{U+4*i+2*h+1}], v[{w}:{w+1}], v[{a}:{a+1}] op_sel_hi:[1,0,1]")
            e(f"v_add_f32 v{den}, v{R+2}, v{R+6}")
            e(f"v_add_f32 v{tm}, v{R+10}, v{R+14}")
            pk(0, 0)
            e(f"v_add_f32 v{den}, v{den}, v{tm}")
            pk(0, 1); pk(1, 0)
            e(f"v_add_f32_dpp v{den}, v{den}, v{den} row_ror:8 row_mask:0xf bank_mask:0xf")
            e(f"v_mov_b32 v{tm}, v{den}")
            pk(1, 1); pk(2, 0)
            e(f"v_permlane16_swap_b32 v{den}, v{tm}")
            pk(2, 1)
            e(f"v_add_f32 v{den}, v{den}, v{tm}")
            e(f"v_mov_b32 v{tm}, v{den}")
            pk(3, 0); pk(3, 1)
            e(f"v_permlane32_swap_b32 v{den}, v{tm}")
            e(f"v_permlane32_swap_b32 v{acc}, v{acc+1}")
            e(f"v_permlane32_swap_b32 v{acc+2}, v{acc+3}")
            e(f"v_add_f32 v{den}, v{den}, v{tm}")
            e(f"v_add_f32 v{acc}, v{acc}, v{acc+1}")
            e(f"v_add_f32 v{acc+2}, v{acc+2}, v{acc+3}")
            e(f"v_rcp_f32 v{den}, v{den}")
            e("s_nop 0")
            e(f"v_permlane16_swap_b32 v{acc}, v{acc+2}")
            e(f"v_mov_b32 v{t5+2}, s{sTag}")
            e(f"v_add_f32 v{acc}, v{acc}, v{acc+2}")
            e(f"v_mov_b32 v{t5+3}, 0")
            e("s_nop 0")
            e(f"v_add_f32_dpp v{acc}, v{acc}, v{acc} row_ror:8 row_mask:0xf bank_mask:0xf")
            e(f"v_mul_f32 v{acc}, v{acc}, v{den}")
            if k < NS - 1:
                e("s_branch L_out")
        lab("L_out")
        e(f"v_cvt_pk_bf16_f32 v{t5}, v{acc}, v{acc}")
        e(f"s_mov_b64 exec, s[{sXM}:{sXM+1}]")
        e(f"buffer_store_short v{t5}, v{vOA}, s[{SO}:{SO+3}], s{sOO} offen {FL[self.outf]}")
        e(f"s_cmp_lg_u32 s{sC}, 0")
        e("s_cbranch_scc1 L_noep")
        e("s_mov_b64 exec, 1")
        e(f"buffer_store_dword v{t5+2}, v{t5+3}, s[{SWS}:{SWS+3}], s{sEP} offen")
        lab("L_noep")
        if self.probe:
            e("s_mov_b64 exec, -1")
            e("s_waitcnt vmcnt(0)")
            e("s_memrealtime s[88:89]")
            srd(48, 20, 256)
            e("v_mov_b32 v1, 0")
            e("buffer_load_dword v2, v1, s[48:51], 0 offen sc0 sc1")
            e("s_waitcnt vmcnt(0) lgkmcnt(0)")
            e("v_readfirstlane_b32 s92, v2")
            e("s_not_b32 s92, s92")
            a, b, sh = {1: (88, 92, 0), 2: (84, 92, 2), 3: (88, 86, 2), 5: (82, 92, 3), 6: (88, 88, 0), 7: (84, 82, 2)}[self.probe]
            e(f"s_sub_u32 s93, s{a}, s{b}")
            e(f"s_lshl_b32 s93, s93, {sh}")
            e("s_min_u32 s93, s93, 20000")
            lab("L_spin")
            e("s_memrealtime s[94:95]")
            e("s_waitcnt lgkmcnt(0)")
            e("s_sub_u32 s94, s94, s88")
            e("s_cmp_lt_u32 s94, s93")
            e("s_cbranch_scc1 L_spin")
        if self.stamps:
            e("s_mov_b64 exec, -1")
            self.stamp(5)
            e("s_waitcnt vmcnt(0)")
            self.stamp(6)
        self.flush_stamps()
        lab("L_exit")
        e("s_endpgm")

        lab("L_consumer")
        self.nv = 1
        vLane = self.valloc()
        vT0 = self.valloc(); vT1 = self.valloc(); vT2 = self.valloc(); vT3 = self.valloc()
        vM = self.valloc(); vL = self.valloc(); vNm = self.valloc()
        vShift = self.valloc(); v4g = self.valloc(); vNeg = self.valloc()
        vA = self.valloc(); vList = self.valloc(); vTail = self.valloc(); vZero = self.valloc()
        vPool = self.valloc(2, 2)
        vE = [self.valloc(2, 2), self.valloc(2, 2)]
        vTk = self.valloc(8, 2)
        vCS = vTk + 4
        vLK = self.valloc(4); vLV = self.valloc(2)
        vS = self.valloc(8, 4)
        vP = self.valloc(4, 4)
        vQ = self.valloc(16, 4)
        vKf = self.valloc(32, 4)
        vVf = self.valloc(8, 4)
        vO = self.valloc(8, 4)
        assert self.nv <= 112
        SQ, SB = 24, 28
        sCtx0, sCtx1 = 40, 41
        sW, sCs, sR, sFirst, sFirstD, sNp, sCt, sX = 52, 53, 54, 55, 56, 57, 58, 59
        sMk = [60, 62, 64, 66, 68, 70, 72, 74]
        sZ = 76
        sMsg = 78
        sK8 = 79
        sSp = [32, 33, 34, 35, 36, 37]
        sTg24, sTk = 80, 81

        e(f"v_and_b32 v{vLane}, 63, v0")
        e(f"s_sub_u32 s{sW}, s3, 1")
        e(f"v_lshrrev_b32 v{vT0}, 4, v{vLane}")
        e(f"v_and_b32 v{vT1}, 15, v{vLane}")
        e(f"s_lshl_b32 s{sT}, s{sC}, 2")
        e(f"v_lshlrev_b32 v{vA}, 7, v{vLane}")
        e(f"v_add_u32 v{vA}, s{sT}, v{vA}")
        e(f"s_and_b32 s{sT2}, s{sC}, {dom-1}")
        e(f"s_lshl_b32 s{sT}, s{sT2}, 2")
        e(f"s_add_u32 s{sT}, s{sT}, {4*J0}")
        e(f"v_mul_u32_u24 v{vTail}, {8*dom}, v{vLane}")
        e(f"v_add_u32 v{vTail}, s{sT}, v{vTail}")
        e(f"s_mul_i32 s{sCt}, s{sKVH}, {dom}")
        e(f"s_add_u32 s{sCt}, s{sCt}, s{sT2}")
        e(f"s_lshl_b32 s{sCt}, s{sCt}, 8")
        e(f"s_add_u32 s{sCt}, s{sCt}, {CT_OFF}")
        e(f"v_bfe_u32 v{vT2}, v{vLane}, 2, 1")
        e(f"v_mul_u32_u24 v{vShift}, 5, v{vT2}")
        e(f"v_lshlrev_b32 v{vT2}, 1, v{vT0}")
        e(f"v_xor_b32 v{vT2}, v{vT2}, v{vT1}")
        e(f"v_lshlrev_b32 v{vT2}, 4, v{vT2}")
        e(f"v_lshl_add_u32 v{vT2}, v{vT0}, 8, v{vT2}")
        e(f"s_lshl_b32 s{sT}, s{sKVH}, 10")
        e(f"v_add_u32 v{vNm}, s{sT}, v{vT2}")
        e(f"v_xor_b32 v{vM}, 128, v{vNm}")
        e(f"s_mov_b32 m0, {QL}")
        e(f"s_mov_b32 s{sK8}, 8192")
        e(f"s_lshl_b32 s{sT}, s{sKVH}, 8")
        e(f"s_add_u32 s{sT}, s{sT}, {EP_OFF}")
        e(f"v_mov_b32 v{vZero}, 0")
        e("s_waitcnt lgkmcnt(0)")
        e(f"s_load_dwordx2 s[{sCtx0}:{sCtx1}], s[16:17], 0")
        e(f"s_load_dword s{sTag}, s[22:23], s{sT}")
        srd(SB, 14, 16384)
        srd(SQ, 8, 16384)
        srd(SWS, 22, WS_REC)
        tb = vKf
        e(f"s_cmp_lg_u32 s{sW}, 0")
        e("s_cbranch_scc1 L_notab")
        e(f"buffer_load_dword v{tb}, v{vA}, s[{SB}:{SB+3}], 0 offen")
        e(f"buffer_load_dword v{tb+1}, v{vA}, s[{SB}:{SB+3}], s{sK8} offen")
        if K:
            e(f"buffer_load_dword v{tb+2}, v{vTail}, s[{SB}:{SB+3}], 0 offen")
            e(f"buffer_load_dword v{tb+3}, v{vTail}, s[{SB}:{SB+3}], 0 offen offset:{4*dom}")
            e(f"buffer_load_dword v{tb+4}, v{vTail}, s[{SB}:{SB+3}], s{sK8} offen")
            e(f"buffer_load_dword v{tb+5}, v{vTail}, s[{SB}:{SB+3}], s{sK8} offen offset:{4*dom}")
        lab("L_notab")
        e(f"s_cmp_lg_u32 s{sW}, {self.qw}")
        e("s_cbranch_scc1 L_noq")
        e(f"s_mov_b32 s{sT}, {8192-1024}")
        e(f"buffer_load_dwordx4 v{vNm}, s[{SQ}:{SQ+3}], 0 offen lds")
        e(f"buffer_load_dwordx4 v{vM}, s[{SQ}:{SQ+3}], s{sT} offen offset:1024 lds")
        lab("L_noq")
        if self.eb:
            e("s_barrier")
        vQA = vS + 4
        e(f"v_and_b32 v{vT3}, 7, v{vT1}")
        e(f"v_lshlrev_b32 v{vT2}, 1, v{vT3}")
        e(f"v_xor_b32 v{vT2}, v{vT2}, v{vT0}")
        e(f"v_lshlrev_b32 v{vT2}, 4, v{vT2}")
        e(f"v_lshl_add_u32 v{vQA}, v{vT3}, 8, v{vT2}")
        for c in range(1, 4):
            e(f"v_xor_b32 v{vQA+c}, {64*c}, v{vQA}")
        for k in range(2 * NSPEC):
            e(f"s_add_u32 s{sSp[k]}, s{sC}, {32*k}")
            e(f"s_lshl_b32 s{sSp[k]}, s{sSp[k]}, 15")
        e(f"v_xor_b32 v{vT2}, v{vT0}, v{vT1}")
        e(f"v_lshlrev_b32 v{vT2}, 4, v{vT2}")
        e(f"v_lshl_add_u32 v{vLK}, v{vT1}, 8, v{vT2}")
        for c in range(1, 4):
            e(f"v_xor_b32 v{vLK+c}, {64*c}, v{vLK}")
        e(f"v_lshlrev_b32 v{v4g}, 2, v{vT0}")
        e(f"v_lshrrev_b32 v{vT2}, 2, v{vLane}")
        e(f"v_and_b32 v{vT3}, 3, v{vLane}")
        e(f"v_lshlrev_b32 v{vT3}, 3, v{vT3}")
        e(f"v_lshl_add_u32 v{vT3}, v{vT2}, 8, v{vT3}")
        e(f"v_and_b32 v{vT2}, 7, v{vT2}")
        e(f"s_lshl_b32 s{sT}, s{sW}, 1")
        e(f"v_xor_b32 v{vT2}, s{sT}, v{vT2}")
        e(f"v_lshl_add_u32 v{vLV}, v{vT2}, 5, v{vT3}")
        e(f"v_xor_b32 v{vLV+1}, 32, v{vLV}")
        e(f"v_mov_b32 v{vNeg}, {hex(f2u(-2e30))}")
        e(f"v_mov_b32 v{vM}, {hex(f2u(-1e30))}")
        e(f"s_mov_b32 s{sCs}, {hex(f2u(CSCALE))}")
        e(f"v_mov_b32 v{vL}, 0")
        for k in range(8):
            e(f"v_mov_b32 v{vO+k}, 0")
        e(f"v_mov_b32 v{vList}, {LIST}")
        e(f"s_mov_b32 s{sR}, 0")
        if self.trace:
            e("v_mov_b32 v121, -1")
            e(f"v_lshlrev_b32 v122, 2, v{vLane}")
        e(f"s_mov_b32 s{sFirst}, {BIG}")
        e(f"s_mov_b32 s{sFirstD}, {BIG}")
        vMA = vLane
        e(f"s_lshl_b32 s{sMsg}, s{sKVH}, 17")
        e(f"s_lshl_b32 s{sT}, s{sC}, 7")
        e(f"s_add_u32 s{sMsg}, s{sMsg}, s{sT}")
        e(f"s_lshl_b32 s{sT}, s{sW}, 15")
        e(f"s_add_u32 s{sMsg}, s{sMsg}, s{sT}")
        e("s_waitcnt lgkmcnt(0)")
        e(f"s_add_u32 s{sTag}, s{sTag}, 1")
        e(f"s_cmp_gt_i32 s{sCtx0}, 0")
        e(f"s_cselect_b32 s{sZ}, 0, 0x0f0f0f0f")
        e(f"s_cselect_b32 s{sCtx0}, s{sCtx0}, 32768")
        e(f"s_cmp_gt_i32 s{sCtx1}, 0")
        e(f"s_cselect_b32 s{sZ+1}, 0, 0xf0f0f0f0")
        e(f"s_cselect_b32 s{sCtx1}, s{sCtx1}, 32768")
        e(f"s_or_b32 s{sZ}, s{sZ}, s{sZ+1}")
        e(f"s_mov_b32 s{sZ+1}, s{sZ}")
        e(f"s_min_i32 s{sCtx0}, s{sCtx0}, 32768")
        e(f"s_min_i32 s{sCtx1}, s{sCtx1}, 32768")
        e(f"s_cmp_lg_u32 s{sW}, 0")
        e("s_cbranch_scc1 L_nobuild")
        f0 = vS
        l0, l1, dp, ds_, px = vVf, vVf + 1, vVf + 2, vVf + 3, vVf + 4
        if K and not self.tkx:
            e("s_mov_b64 exec, 1")
            e(f"buffer_load_dwordx2 v[{vCS+2}:{vCS+3}], v{vZero}, s[{SWS}:{SWS+3}], s{sCt} offen sc1")
            e("s_mov_b64 exec, -1")
        if K and self.tkx:
            if self.sat:
                e(f"s_and_b32 s{sTg24}, s{sTag}, 0xffffff")
                e(f"v_mov_b32 v{vCS}, s{sTg24}")
            else:
                e(f"v_mov_b32 v{vCS}, s{sTag}")
                e(f"v_mov_b32 v{vCS+1}, 0")
            e(f"s_cmp_lt_u32 s{sC}, {dom}")
            e(f"s_cselect_b32 s{SWS+2}, s{SWS+2}, 0")
            e("s_mov_b64 exec, 1")
            if self.sat:
                e(f"buffer_atomic_swap v{vCS}, v{vZero}, s[{SWS}:{SWS+3}], s{sCt} offen sc0 sc1")
            else:
                e(f"buffer_atomic_swap_x2 v[{vCS}:{vCS+1}], v{vZero}, s[{SWS}:{SWS+3}], s{sCt} offen sc1")
            e("s_mov_b64 exec, -1")
            e(f"s_mov_b32 s{SWS+2}, {WS_REC}")
        e(f"v_cmp_gt_u32 vcc, {NMIN2//4}, v{vLane}")
        e(f"v_mov_b32 v{f0+1}, 0x400")
        e(f"v_lshlrev_b32 v{vT2}, 4, v{vLane}")
        e(f"v_cndmask_b32 v{f0}, 0, v{f0+1}, vcc")
        e(f"v_lshlrev_b32 v{vT3}, 2, v{vLane}")
        e(f"v_add_u32 v{vT2}, v{vList}, v{vT2}")
        e(f"v_add_u32 v{vT3}, v{vList}, v{vT3}")
        for k in range(1, 4):
            e(f"v_mov_b32 v{f0+k}, v{f0}")
        e(f"ds_write_b128 v{vT2}, v[{f0}:{f0+3}]")
        e(f"ds_write_b32 v{vT3}, v{vZero} offset:1024")
        e(f"v_lshlrev_b32 v{vT2}, 2, v{vA}")
        e(f"v_sub_u32 v{l0}, s{sCtx0}, v{vT2}")
        e(f"v_sub_u32 v{l1}, s{sCtx1}, v{vT2}")
        e(f"v_med3_i32 v{l0}, v{l0}, 0, 16")
        e(f"v_med3_i32 v{l1}, v{l1}, 0, 16")
        e(f"v_cmp_lt_u32 s[{sMk[0]}:{sMk[0]+1}], 0, v{l0}")
        e(f"v_cmp_lt_u32 s[{sMk[1]}:{sMk[1]+1}], 0, v{l1}")
        e(f"v_lshlrev_b32 v{l1}, 5, v{l1}")
        pm = 0
        for i in range(J0 // 32, (J0 + dom * K) // 32):
            pm |= 1 << i
        pm = ~pm & ((1 << 64) - 1)
        e(f"s_mov_b32 s{sMk[2]}, {hex(pm & 0xffffffff)}")
        e(f"s_mov_b32 s{sMk[2]+1}, {hex(pm >> 32)}")
        e(f"s_and_b64 s[{sMk[2]}:{sMk[2]+1}], s[{sMk[2]}:{sMk[2]+1}], s[{sMk[0]}:{sMk[0]+1}]")
        e(f"s_bcnt1_i32_b64 s{sT}, s[{sMk[2]}:{sMk[2]+1}]")
        e(f"v_mbcnt_lo_u32_b32 v{vT2}, s{sMk[2]}, 0")
        e(f"v_mbcnt_hi_u32_b32 v{vT2}, s{sMk[2]+1}, v{vT2}")
        e(f"v_lshl_add_u32 v{vT2}, v{vT2}, 2, v{vList}")
        nq = 2 if self.qw == 0 else 0
        e(f"s_waitcnt vmcnt({(5 if K else 0) + nq})")
        e(f"v_cmp_eq_u32 vcc, v{tb}, v{tb+1}")
        e(f"v_lshl_or_b32 v{dp}, v{tb}, 15, v{l0}")
        e(f"v_lshl_or_b32 v{ds_}, v{tb+1}, 15, v{l1}")
        e(f"s_and_b64 vcc, vcc, s[{sMk[0]}:{sMk[0]+1}]")
        e(f"s_andn2_b64 s[{sMk[3]}:{sMk[3]+1}], s[{sMk[1]}:{sMk[1]+1}], vcc")
        e(f"v_cndmask_b32 v{px}, 0, v{l1}, vcc")
        e(f"v_mov_b32 v{vT3}, s{sT}")
        e(f"v_or_b32 v{dp}, v{dp}, v{px}")
        e(f"v_mbcnt_lo_u32_b32 v{vT3}, s{sMk[3]}, v{vT3}")
        e(f"v_mbcnt_hi_u32_b32 v{vT3}, s{sMk[3]+1}, v{vT3}")
        e(f"v_lshl_add_u32 v{vT3}, v{vT3}, 2, v{vList}")
        e(f"s_mov_b64 exec, s[{sMk[2]}:{sMk[2]+1}]")
        e(f"ds_write_b32 v{vT2}, v{dp}")
        e(f"s_mov_b64 exec, s[{sMk[3]}:{sMk[3]+1}]")
        e(f"ds_write_b32 v{vT3}, v{ds_}")
        e("s_mov_b64 exec, -1")
        e(f"s_bcnt1_i32_b64 s{sT2}, s[{sMk[3]}:{sMk[3]+1}]")
        e(f"s_add_u32 s{sX}, s{sT}, s{sT2}")
        e(f"s_max_u32 s{sX}, s{sX}, {NMIN2}")
        if K:
            e(f"v_lshlrev_b32 v{vT2}, 2, v{vTail}")
            e(f"v_cmp_gt_u32 s[{sMk[2]}:{sMk[2]+1}], {K//2}, v{vLane}")
            e(f"s_mov_b32 s{sNp}, 0")
            e(f"s_waitcnt vmcnt({1 + nq})")
            for h in range(2):
                e(f"v_sub_u32 v{l0}, s{sCtx0}, v{vT2}")
                e(f"v_sub_u32 v{l1}, s{sCtx1}, v{vT2}")
                e(f"v_med3_i32 v{l0}, v{l0}, 0, 16")
                e(f"v_med3_i32 v{l1}, v{l1}, 0, 16")
                e(f"v_cmp_lt_u32 s[{sMk[0]}:{sMk[0]+1}], 0, v{l0}")
                e(f"v_cmp_eq_u32 vcc, v{tb+2+h}, v{tb+4+h}")
                e(f"v_lshl_or_b32 v{dp}, v{tb+2+h}, 15, v{l0}")
                e(f"s_and_b64 s[{sMk[0]}:{sMk[0]+1}], s[{sMk[0]}:{sMk[0]+1}], s[{sMk[2]}:{sMk[2]+1}]")
                e(f"v_cndmask_b32 v{l1}, 0, v{l1}, vcc")
                e(f"s_bcnt1_i32_b64 s{sT}, s[{sMk[0]}:{sMk[0]+1}]")
                e(f"v_lshl_or_b32 v{dp}, v{l1}, 5, v{dp}")
                e(f"s_add_u32 s{sNp}, s{sNp}, s{sT}")
                e(f"v_cndmask_b32 v{vPool+h}, 0, v{dp}, s[{sMk[0]}:{sMk[0]+1}]")
                if h == 0:
                    e(f"v_add_u32 v{vT2}, {16*dom}, v{vT2}")
            if NF2:
                e(f"s_sub_i32 s{sT}, s{sNp}, {self.FT}")
                e(f"v_lshlrev_b32 v{l0}, 1, v{vLane}")
                e(f"v_cmp_le_i32 vcc, s{sT}, v{l0}")
                e(f"v_mov_b32 v{l1}, 0x800")
                e(f"v_cmp_ne_u32 s[{sMk[0]}:{sMk[0]+1}], 0, v{vPool+1}")
                e(f"v_cndmask_b32 v{l1}, 0, v{l1}, vcc")
                e(f"v_or_b32 v{vPool}, v{vPool}, v{l1}")
                e(f"v_cndmask_b32 v{l1}, 0, v{l1}, s[{sMk[0]}:{sMk[0]+1}]")
                e(f"v_or_b32 v{vPool+1}, v{vPool+1}, v{l1}")
            e(f"s_lshl_b32 s{sT}, s{sX}, 2")
            e(f"v_add_u32 v{vTail}, s{sT}, v{vList}")
            e(f"s_lshr_b32 s{sT}, s{sX}, 1")
            e(f"s_sub_u32 s{sT}, s{sT}, {D+LA}")
            e(f"s_add_u32 s{sT2}, s{sT}, {D}")
            e(f"s_cmp_lg_u32 s{sNp}, 0")
            e(f"s_cselect_b32 s{sFirst}, s{sT}, s{sFirst}")
            e(f"s_cselect_b32 s{sFirstD}, s{sT2}, s{sFirstD}")
            if not self.tkx:
                e(f"v_mov_b32 v{vCS}, 0")
                e(f"v_mov_b32 v{vCS+1}, s{sTag}")
        if nq:
            e(f"s_waitcnt vmcnt({1 if K else 0})")
        e("s_branch L_built")
        lab("L_nobuild")
        e("s_waitcnt vmcnt(0)")
        lab("L_built")
        e(f"v_lshrrev_b32 v{vT2}, 3, v{vT1}")
        e(f"v_lshl_add_u32 v{vT2}, v{vT2}, 2, v{vT0}")
        e(f"v_and_b32 v{vT3}, 7, v{vT1}")
        e(f"v_lshlrev_b32 v{vT3}, 4, v{vT3}")
        e(f"v_lshl_add_u32 v{vMA}, v{vT2}, 12, v{vT3}")
        e(f"v_mul_f32 v{vNm}, s{sCs}, v{vM}")
        if self.probe:
            e(f"s_cmp_lg_u32 s{sW}, 3")
            e("s_cbranch_scc1 L_nopost")
            srd(48, 20, 256)
            e("s_not_b32 s82, s82")
            e(f"v_mov_b32 v{vT3}, s82")
            e("s_mov_b64 exec, 1")
            e(f"buffer_atomic_umax v{vT3}, v{vZero}, s[48:51], 0 offen sc1")
            e("s_mov_b64 exec, -1")
            lab("L_nopost")
        e("s_waitcnt lgkmcnt(0)")
        self.stamp(0)

        def pv_reads(buf, extra=0):
            o = buf * 16384 + 8192
            for jj in range(2):
                e(f"ds_read_b64_tr_b16 v[{vVf+4*jj}:{vVf+4*jj+1}], v{vLV+jj} offset:{o}")
                e(f"ds_read_b64_tr_b16 v[{vVf+4*jj+2}:{vVf+4*jj+3}], v{vLV+jj} offset:{o+4096}")

        def pv_mfma(jj):
            e(f"v_mfma_f32_16x16x32_bf16 v[{vO+4*jj}:{vO+4*jj+3}], v[{vVf+4*jj}:{vVf+4*jj+3}], v[{vP}:{vP+3}], v[{vO+4*jj}:{vO+4*jj+3}]")

        def round_(r, first, tag):
            cur, nxt = vE[r & 1], vE[(r + 1) & 1]
            so = r * 16384
            def masks(cur):
                for u in range(2):
                    e(f"v_bfe_u32 v{vT0+u}, v{cur+u}, v{vShift}, 5")
                    e(f"v_sub_u32 v{vT0+u}, v{vT0+u}, v{v4g}")
                for u in range(2):
                    for k in range(4):
                        e(f"v_cmp_lt_i32 s[{sMk[4*u+k]}:{sMk[4*u+k]+1}], {k}, v{vT0+u}")
                for k in range(8):
                    e(f"v_cndmask_b32 v{vS+k}, v{vNeg}, 0, s[{sMk[k]}:{sMk[k]+1}]")

            def k_reads():
                for c in range(4):
                    e(f"ds_read_b128 v[{vKf+4*c}:{vKf+4*c+3}], v{vLK+c} offset:{so}")
                    e(f"ds_read_b128 v[{vKf+16+4*c}:{vKf+16+4*c+3}], v{vLK+c} offset:{so+4096}")

            def request():
                e(f"s_cmp_lt_u32 s{sR}, s{sFirst}")
                e(f"s_cbranch_scc1 L_noreq{tag}")
                e("s_mov_b64 exec, 1")
                e(f"v_mov_b32 v{vTk+2*r+1}, 1")
                if self.tkx:
                    e(f"v_mov_b32 v{vTk+2*r}, 0")
                    e(f"buffer_atomic_add_x2 v[{vTk+2*r}:{vTk+2*r+1}], v{vZero}, s[{SWS}:{SWS+3}], s{sCt} offen sc0 sc1")
                else:
                    e(f"buffer_atomic_add v{vTk+2*r+1}, v{vZero}, s[{SWS}:{SWS+3}], s{sCt} offen sc0 sc1")
                e("s_mov_b64 exec, -1")
                lab(f"L_noreq{tag}")
            if not self.nocompute and not first:
                masks(cur)
            e("s_barrier")
            if first:
                self.stamp(1)
                e(f"ds_read_b128 v[{vP}:{vP+3}], v{vList}")
                if NSPEC == 3:
                    e(f"ds_read_b64 v[{vVf}:{vVf+1}], v{vList} offset:16")
                for c in range(4):
                    e(f"ds_read_b128 v[{vQ+4*c}:{vQ+4*c+3}], v{vQA+c} offset:{QL}")
                k_reads()
                e("s_waitcnt lgkmcnt(12)")
                ent = [vP, vP + 1, vP + 2, vP + 3, vVf, vVf + 1]
                x = vVf + 2
                for k in range(2 * NSPEC):
                    e(f"v_xor_b32 v{x+k}, s{sSp[k]}, v{ent[k]}")
                    e(f"v_subrev_u32 v{x+k}, 1, v{x+k}")
                e(f"v_max3_u32 v{x}, v{x}, v{x+1}, v{x+2}")
                if NSPEC == 3:
                    e(f"v_max3_u32 v{x}, v{x}, v{x+4}, v{x+5}")
                e(f"v_max_u32 v{x}, v{x}, v{x+3}")
                e(f"v_mov_b32 v{nxt}, v{vP+2}")
                e(f"v_mov_b32 v{nxt+1}, v{vP+3}")
                e(f"v_cmp_gt_u32 vcc, 0x3ff, v{x}")
                e("s_cbranch_vccnz L_cspec_ok")
                e("s_waitcnt lgkmcnt(0)")
                e("s_barrier")
                k_reads()
                e("s_waitcnt lgkmcnt(0)")
                lab("L_cspec_ok")
                masks(vP)
                e(f"s_cmp_eq_u32 s{sZ}, 0")
                e("s_cbranch_scc1 L_q_ok")
                e("s_waitcnt lgkmcnt(8)")
                for k in range(16):
                    e(f"v_cndmask_b32 v{vQ+k}, v{vQ+k}, 0, s[{sZ}:{sZ+1}]")
                e("s_nop 1")
                lab("L_q_ok")
            else:
                if not self.nocompute:
                    pv_reads((r + 3) % 4)
                    k_reads()
                e(f"ds_read_b64 v[{nxt}:{nxt+1}], v{vList} offset:{8*(r+1)}")
                if K and not self.sat:
                    request()
            if not self.nocompute:
                if not first:
                    e("s_waitcnt lgkmcnt(11)")
                    pv_mfma(0)
                    e("s_waitcnt lgkmcnt(9)")
                    pv_mfma(1)
                for c in range(4):
                    for u in range(2):
                        e(f"s_waitcnt lgkmcnt({(7 if first else 8)-2*c-u})")
                        e(f"v_mfma_f32_16x16x32_bf16 v[{vS+4*u}:{vS+4*u+3}], v[{vKf+16*u+4*c}:{vKf+16*u+4*c+3}], v[{vQ+4*c}:{vQ+4*c+3}], v[{vS+4*u}:{vS+4*u+3}]")
                e("s_nop 7")
                e(f"v_max3_f32 v{vT0}, v{vS}, v{vS+1}, v{vS+2}")
                e(f"v_max3_f32 v{vT1}, v{vS+4}, v{vS+5}, v{vS+6}")
                e(f"v_max3_f32 v{vT0}, v{vT0}, v{vS+3}, v{vM}")
                e(f"v_max3_f32 v{vT0}, v{vT0}, v{vT1}, v{vS+7}")
                e(f"v_cmp_gt_f32 vcc, v{vT0}, v{vM}")
                e(f"s_cbranch_vccz L_skip{tag}")
                e(f"v_mov_b32 v{vT1}, v{vT0}")
                e("s_nop 1")
                e(f"v_permlane32_swap_b32 v{vT0}, v{vT1}")
                e("s_nop 0")
                e(f"v_max_f32 v{vT0}, v{vT0}, v{vT1}")
                e(f"v_mov_b32 v{vT1}, v{vT0}")
                e("s_nop 1")
                e(f"v_permlane16_swap_b32 v{vT0}, v{vT1}")
                e("s_nop 0")
                e(f"v_max_f32 v{vT0}, v{vT0}, v{vT1}")
                e(f"v_sub_f32 v{vA}, v{vM}, v{vT0}")
                e(f"v_mul_f32 v{vA}, s{sCs}, v{vA}")
                e(f"v_exp_f32 v{vA}, v{vA}")
                e(f"v_mov_b32 v{vM}, v{vT0}")
                e(f"v_mul_f32 v{vNm}, s{sCs}, v{vT0}")
                e(f"v_mul_f32 v{vL}, v{vL}, v{vA}")
                for k in range(8):
                    e(f"v_mul_f32 v{vO+k}, v{vO+k}, v{vA}")
                lab(f"L_skip{tag}")
                for k in range(8):
                    e(f"v_fma_f32 v{vS+k}, v{vS+k}, s{sCs}, -v{vNm}")
                for k in range(8):
                    e(f"v_exp_f32 v{vS+k}, v{vS+k}")
                e("s_nop 0")
                for k in range(4):
                    e(f"v_cvt_pk_bf16_f32 v{vP+k}, v{vS+2*k}, v{vS+2*k+1}")
                e(f"v_pk_add_f32 v[{vS}:{vS+1}], v[{vS}:{vS+1}], v[{vS+2}:{vS+3}]")
                e(f"v_pk_add_f32 v[{vS+4}:{vS+5}], v[{vS+4}:{vS+5}], v[{vS+6}:{vS+7}]")
                e(f"v_pk_add_f32 v[{vS}:{vS+1}], v[{vS}:{vS+1}], v[{vS+4}:{vS+5}]")
                e(f"v_add_f32 v{vL}, v{vL}, v{vS}")
                e(f"v_add_f32 v{vL}, v{vL}, v{vS+1}")
            if K and first and self.tkx and not self.sat:
                request()
            if K and first and not self.tkx:
                e(f"s_cmp_lg_u32 s{sW}, 0")
                e("s_cbranch_scc1 L_claimed")
                e("s_waitcnt vmcnt(0)")
                e(f"v_readfirstlane_b32 s{sT}, v{vCS+3}")
                e(f"s_cmp_eq_u32 s{sT}, s{sTag}")
                e("s_cbranch_scc1 L_claimed")
                e("s_mov_b64 exec, 1")
                e(f"buffer_atomic_cmpswap_x2 v[{vCS}:{vCS+3}], v{vZero}, s[{SWS}:{SWS+3}], s{sCt} offen sc1")
                e("s_mov_b64 exec, -1")
                lab("L_claimed")
                request()
            if K and self.sat:
                e(f"s_cmp_lt_u32 s{sR}, s{sFirst}")
                e("s_waitcnt lgkmcnt(0)")
                e(f"s_cbranch_scc1 L_noproc{tag}")
                e(f"s_cmp_lt_u32 s{sR}, s{sFirstD}")
                e(f"s_cbranch_scc1 L_req{tag}")
                e(f"s_xor_b32 s{sX}, s{sTk}, s{sTg24}")
                e(f"s_and_b32 s{sT}, s{sX}, 0xffffff")
                e(f"s_cbranch_scc1 L_done{tag}")
                e(f"s_lshr_b32 s{sX}, s{sX}, 24")
                if self.trace in (1, 2):
                    e(f"s_lshl_b64 exec, 1, s{sR}")
                    e(f"v_mov_b32 v121, s{sX}")
                    e("s_mov_b64 exec, -1")
                e(f"s_lshl_b32 s{sT}, s{sX}, 1")
                e(f"s_cmp_ge_u32 s{sT}, s{sNp}")
                e(f"s_cbranch_scc1 L_done{tag}")
                e(f"s_lshl_b64 exec, 1, s{sX}")
                e(f"ds_write2_b32 v{vTail}, v{vPool}, v{vPool+1} offset0:0 offset1:1")
                e("s_mov_b64 exec, -1")
                e(f"v_add_u32 v{vTail}, 8, v{vTail}")
                e(f"s_add_u32 s{sT}, s{sT}, 2")
                e(f"s_cmp_lt_u32 s{sT}, s{sNp}")
                e("s_waitcnt lgkmcnt(0)")
                e(f"s_cbranch_scc0 L_done{tag}")
                lab(f"L_req{tag}")
                e(f"s_mov_b32 s{sTk}, 0x1000000")
                e("s_waitcnt vmcnt(0)")
                if self.trace == 3:
                    e("s_memrealtime s[84:85]")
                    e("s_waitcnt lgkmcnt(0)")
                e(f"s_atomic_add s{sTk}, s[22:23], s{sCt} glc")
                if self.trace == 3:
                    e("s_waitcnt lgkmcnt(0)")
                    e("s_memrealtime s[86:87]")
                    e("s_waitcnt lgkmcnt(0)")
                    e("s_sub_u32 s86, s86, s84")
                    e("s_lshl_b32 s84, s84, 8")
                    e("s_and_b32 s84, s84, 0x7fffff00")
                    e("s_min_u32 s86, s86, 255")
                    e("s_or_b32 s86, s86, s84")
                    e(f"s_lshl_b64 exec, 1, s{sR}")
                    e(f"v_mov_b32 v121, s86")
                    e("s_mov_b64 exec, -1")
                e(f"s_branch L_noproc{tag}")
                lab(f"L_done{tag}")
                e(f"s_mov_b32 s{sFirst}, {BIG}")
                lab(f"L_noproc{tag}")
            if K and not self.sat:
                e(f"s_cmp_lt_u32 s{sR}, s{sFirstD}")
                e(f"s_cbranch_scc1 L_noproc{tag}")
                e(f"s_waitcnt vmcnt({D})")
                e(f"v_readfirstlane_b32 s{sX}, v{vTk+2*((r-D)%4)+1}")
                if self.tkx:
                    e(f"v_readfirstlane_b32 s{sT}, v{vTk+2*((r-D)%4)}")
                    e(f"s_cmp_lg_u32 s{sT}, s{sTag}")
                    e(f"s_cbranch_scc1 L_done{tag}")
                if self.trace:
                    e(f"s_lshl_b64 exec, 1, s{sR}")
                    e(f"v_mov_b32 v121, s{sX}")
                    e("s_mov_b64 exec, -1")
                e(f"s_lshl_b32 s{sT}, s{sX}, 1")
                e(f"s_cmp_ge_u32 s{sT}, s{sNp}")
                e(f"s_cbranch_scc1 L_done{tag}")
                e(f"s_lshl_b64 exec, 1, s{sX}")
                e(f"ds_write2_b32 v{vTail}, v{vPool}, v{vPool+1} offset0:0 offset1:1")
                e("s_mov_b64 exec, -1")
                e(f"v_add_u32 v{vTail}, 8, v{vTail}")
                e(f"s_add_u32 s{sT}, s{sT}, 2")
                e(f"s_cmp_lt_u32 s{sT}, s{sNp}")
                e(f"s_cbranch_scc1 L_noproc{tag}")
                lab(f"L_done{tag}")
                e(f"s_mov_b32 s{sFirst}, {BIG}")
                e(f"s_mov_b32 s{sFirstD}, {BIG}")
                lab(f"L_noproc{tag}")
            if not (K and self.sat):
                e("s_waitcnt lgkmcnt(0)")
            e(f"v_readfirstlane_b32 s{sX}, v{nxt}")
            e(f"s_add_u32 s{sR}, s{sR}, 1")
            if r == 3:
                e(f"v_add_u32 v{vList}, 32, v{vList}")
            e(f"s_mov_b32 s{sT2}, {so}")
            e(f"s_cmp_eq_u32 s{sX}, 0")

        round_(0, True, "f")
        e("s_branch L_r1")
        lab("L_r0")
        for r in range(4):
            if r == 1:
                lab("L_r1")
            round_(r, False, str(r))
            if r < 3:
                e("s_cbranch_scc1 L_fin")
            else:
                e("s_cbranch_scc0 L_r0")
        lab("L_fin")
        e(f"v_add_u32 v{vLV}, s{sT2}, v{vLV}")
        e(f"v_add_u32 v{vLV+1}, s{sT2}, v{vLV+1}")
        e(f"v_mov_b32 v{vT1}, v{vL}")
        e(f"s_mov_b32 s{sMk[0]}, 0xff00ff00")
        e(f"s_mov_b32 s{sMk[0]+1}, 0xff00ff00")
        e(f"v_permlane32_swap_b32 v{vL}, v{vT1}")
        e("s_nop 0")
        e(f"v_add_f32 v{vL}, v{vL}, v{vT1}")
        e(f"v_mov_b32 v{vT1}, v{vL}")
        e("s_nop 1")
        e(f"v_permlane16_swap_b32 v{vL}, v{vT1}")
        e("s_nop 0")
        e(f"v_add_f32 v{vL}, v{vL}, v{vT1}")
        e(f"v_max_f32 v{vL}, {hex(f2u(1e-30))}, v{vL}")
        e(f"v_rcp_f32 v{vA}, v{vL}")
        e(f"v_log_f32 v{vL}, v{vL}")
        e(f"v_mov_b32 v{vS+3}, s{sTag}")
        e(f"v_add_f32 v{vS+2}, v{vNm}, v{vL}")
        if self.stamps:
            e(f"v_mov_b32 v{self.vSt[6]}, s{sR}")
        e("s_barrier")
        self.stamp(2)
        pv_reads(0)
        e("s_waitcnt lgkmcnt(2)")
        pv_mfma(0)
        e("s_waitcnt lgkmcnt(0)")
        pv_mfma(1)
        e("s_nop 7")
        for k in range(4):
            e(f"v_cndmask_b32 v{vO+k}, v{vO+k}, v{vO+4+k}, s[{sMk[0]}:{sMk[0]+1}]")
        for k in range(4):
            e(f"v_mul_f32 v{vO+k}, v{vO+k}, v{vA}")
        e(f"v_cvt_pk_bf16_f32 v{vS}, v{vO}, v{vO+1}")
        e(f"v_cvt_pk_bf16_f32 v{vS+1}, v{vO+2}, v{vO+3}")
        e(f"buffer_store_dwordx4 v[{vS}:{vS+3}], v{vMA}, s[{SWS}:{SWS+3}], s{sMsg} offen {FL[self.msgf]}")
        self.stamp(3)
        if self.stamps:
            e("s_waitcnt vmcnt(0)")
            self.stamp(4)
        if self.trace:
            e(f"s_cmp_lg_u32 s{sW}, 0")
            e("s_cbranch_scc1 L_notr")
            e("s_lshl_b32 s88, s2, 9")
            e(f"s_add_u32 s88, s88, {STAMP_OFF + 0x10000 + 256}")
            e(f"buffer_store_dword v121, v122, s[{SWS}:{SWS+3}], s88 offen")
            lab("L_notr")
        self.flush_stamps()
        e("s_endpgm")

        nvg = 128 if self.stamps else (max(self.nv, 100) + 7) // 8 * 8
        out = HEADER
        out += f"; @launch grid=(256,1,1) block=(320,1,1) lds={lds}\n"
        out += '.amdgcn_target "amdgcn-amd-amdhsa--gfx950"\n.text\n'
        out += f".globl {NAME}_kernel\n.p2align 8\n.type {NAME}_kernel,@function\n{NAME}_kernel:\n"
        out += "\n".join(self.lines) + "\n"
        out += f""".section .rodata,"a"
.p2align 6
.amdhsa_kernel {NAME}_kernel
  .amdhsa_next_free_vgpr {nvg}
  .amdhsa_next_free_sgpr 96
  .amdhsa_accum_offset {nvg}
  .amdhsa_group_segment_fixed_size 0
  .amdhsa_kernarg_size 64
  .amdhsa_user_sgpr_count 2
  .amdhsa_user_sgpr_kernarg_segment_ptr 1
  .amdhsa_system_sgpr_workgroup_id_x 1
.end_amdhsa_kernel
"""
        return out


if __name__ == "__main__":
    path = sys.argv[1]
    kw = {}
    for a in sys.argv[2:]:
        k, v = a.split("=")
        kw[k] = int(v)
    open(path, "w").write(Gen(**kw).build())
```

```python
import sys, math, struct
from gen import NAME, HEADER, f2u, KVBYTES, CSCALE

EP_OFF = 0x100000
CT_OFF = 0x101000
STAMP_OFF = 0x400000
WS_REC = 0x800000
POLL_MAX = 200000
LIST = 65536
BIG = 0x7fffffff
FL = ['', 'sc1', 'sc0 sc1', 'sc1 nt', 'sc0 sc1 nt', 'nt', 'sc0']


class Gen:
    def __init__(self, NF=20, D=1, J0=192, K=96, stamps=0, prio=3, nocompute=0, slp=1, dom=2, nopoll=0, probe=0, st2=0, msgf=1, pollf=1, outf=0,
                 NF0=32, NS=2, stag=7, NF2=0, FT=32, qw=3, eb=0, W0=64, trace=0, tkx=0, apoll=0, pd=0, sat=0, pa=88, pb=82, psh=0, pw=-1):
        self.pa, self.pb, self.psh, self.pw = pa, pb, psh, pw
        self.NF, self.D, self.J0, self.K = NF, D, J0, K
        self.stamps, self.prio, self.nocompute, self.slp, self.dom, self.nopoll = stamps, prio, nocompute, slp, dom, nopoll
        self.probe = probe
        self.eb = eb
        self.sat = sat
        assert not sat or (tkx and D == 1)
        self.tkx, self.apoll, self.pd = tkx, apoll, pd
        self.trace = trace
        self.W0 = W0
        self.NF0, self.NS, self.stag, self.NF2, self.FT, self.qw = NF0, NS, stag, NF2, FT, qw
        self.st2, self.msgf, self.pollf, self.outf = st2, msgf, pollf, outf
        assert 16 <= NF <= 24 and 0 <= D <= 3
        assert K <= 128 and K % 2 == 0 and J0 % 32 == 0 and (dom * K) % 32 == 0 and J0 >= 128
        assert dom in (1, 2, 4)
        self.lines = []
        self.nv = 0

    def e(self, s):
        self.lines.append("    " + s)

    def lab(self, s):
        self.lines.append(s + ":")

    def valloc(self, n=1, align=1):
        self.nv = (self.nv + align - 1) // align * align
        r = self.nv
        self.nv += n
        return r

    def stamp(self, idx):
        if not self.stamps:
            return
        e = self.e
        e("s_memrealtime s[90:91]")
        e("s_waitcnt lgkmcnt(0)")
        e(f"v_mov_b32 v{self.vSt[idx]}, s90")

    def flush_stamps(self):
        if not self.stamps:
            return
        e = self.e
        e("s_mov_b64 exec, 1")
        e("s_lshl_b32 s90, s2, 3")
        e("s_add_u32 s90, s90, s3")
        e("s_lshl_b32 s90, s90, 5")
        e(f"s_add_u32 s90, s90, {STAMP_OFF}")
        e(f"v_mov_b32 v{self.vStT}, 0")
        for i in range(8):
            e(f"buffer_store_dword v{self.vSt[i]}, v{self.vStT}, s[44:47], s90 offen offset:{4*i}")
        e("s_mov_b64 exec, -1")

    def srd(self, d, p, size):
        e = self.e
        e(f"s_mov_b32 s{d}, s{p}")
        e(f"s_mov_b32 s{d+1}, s{p+1}")
        e(f"s_mov_b32 s{d+2}, {size}")
        e(f"s_mov_b32 s{d+3}, 0x00020000")

    def build(self):
        NF, D, J0, K, dom = self.NF, self.D, self.J0, self.K, self.dom
        e, lab, srd = self.e, self.lab, self.srd
        kk = (7 + NF) // 16
        ib = (7 + NF) % 16
        LA = kk + 2
        NF0, NS, NF2 = self.NF0, self.NS, self.NF2
        assert kk == 1 and 16 + ib <= NF0 <= 32 + ib
        NSPEC = (NF0 + 15) // 16
        assert J0 >= 64 * NSPEC
        QL = 49152
        NMIN2 = (2 * (D + LA) + 3) // 4 * 4
        assert NMIN2 >= 2 * (kk + 1)
        lds = LIST + 1280
        sKVH, sC, sT, sT2, sTag = 4, 5, 6, 7, 42
        SWS = 44
        if self.stamps:
            self.vSt = list(range(112, 120))
            self.vStT = 120

        e("s_cmp_ge_u32 s2, 256")
        e("s_cbranch_scc1 L_exit")
        if self.stamps:
            for i in range(8):
                e(f"v_mov_b32 v{self.vSt[i]}, 0")
            self.stamp(7)
        if self.probe:
            e("s_memrealtime s[82:83]")
        e("s_load_dwordx16 s[8:23], s[0:1], 0")
        e("v_lshrrev_b32 v1, 6, v0")
        e(f"s_lshr_b32 s{sT}, s2, 5")
        e(f"s_xor_b32 s{sT}, s{sT}, s2")
        e("v_readfirstlane_b32 s3, v1")
        e(f"s_and_b32 s{sKVH}, s{sT}, 7")
        e(f"s_lshr_b32 s{sC}, s2, 3")
        e("s_cmp_lg_u32 s3, 0")
        e("s_cbranch_scc1 L_consumer")

        vOffK, vOffV = 4, 8
        vL_, vD = 12, 16
        SKA, SKB, SVA, SVB, SO = 24, 28, 32, 36, 48
        sA, sB, sBuf, sFull = 52, 53, 54, 55
        sE = [56, 57, 58, 59, 60, 61]
        sP = [62, 63, 64, 65, 66, 67]
        if self.prio:
            e(f"s_setprio {self.prio}")
        e("v_lshrrev_b32 v1, 4, v0")
        e("v_and_b32 v2, 15, v0")
        e(f"s_lshl_b32 s{sT}, s{sKVH}, 8")
        e(f"v_lshlrev_b32 v3, 11, v1")
        e(f"v_add_u32 v3, s{sT}, v3")
        e(f"v_xor_b32 v{vOffK}, v1, v2")
        e(f"v_lshl_add_u32 v{vOffK}, v{vOffK}, 4, v3")
        e("v_lshlrev_b32 v1, 1, v1")
        e(f"v_xor_b32 v{vOffV}, v1, v2")
        e(f"v_lshl_add_u32 v{vOffV}, v{vOffV}, 4, v3")
        for i in range(1, 4):
            e(f"v_xor_b32 v{vOffK+i}, {64*i}, v{vOffK}")
            e(f"v_add_u32 v{vOffK+i}, {7168*i}, v{vOffK+i}")
        e(f"v_xor_b32 v{vOffV+1}, 128, v{vOffV}")
        e(f"v_add_u32 v{vOffV+2}, {7168*2}, v{vOffV}")
        e(f"v_add_u32 v{vOffV+3}, {7168*3}, v{vOffV+1}")
        e(f"v_add_u32 v{vOffV+1}, {7168}, v{vOffV+1}")
        for k in range(2 * NSPEC):
            e(f"s_add_u32 s{sP[k]}, s{sC}, {32*k}")
            e(f"s_lshl_b32 s{sP[k]}, s{sP[k]}, 15")
        e(f"s_mov_b32 s{sFull}, {KVBYTES}")
        for S in (SKA, SKB, SVA, SVB):
            e(f"s_mov_b32 s{S+2}, s{sFull}")
            e(f"s_mov_b32 s{S+3}, 0x00020000")
        e(f"s_add_u32 s{sT}, s{sT}, {EP_OFF}")
        if self.st2:
            self.stamp(2)
        e("s_waitcnt lgkmcnt(0)")
        if self.st2:
            self.stamp(3)
        e(f"s_mov_b64 s[{SKA}:{SKA+1}], s[10:11]")
        e(f"s_mov_b64 s[{SKB}:{SKB+1}], s[10:11]")
        if self.eb:
            e("s_barrier")

        def issue(p, sa, sb, m0const=None):
            grp, i = p // 4, p % 4
            if i == 0 or self.force_m0:
                if m0const is None:
                    e(f"s_add_u32 m0, s{sBuf}, {4096*grp}")
                else:
                    e(f"s_mov_b32 m0, {m0const + 4096*grp}")
                e("s_nop 0")
                self.force_m0 = False
            S = (SKA, SKB, SVA, SVB)[grp]
            so = (sa, sb)[grp & 1]
            vo = (vOffK if grp < 2 else vOffV) + i
            e(f"buffer_load_dwordx4 v{vo}, s[{S}:{S+3}], s{so} offen offset:{1024*i} nt lds")
        self.force_m0 = False
        for p in range(NF0):
            r = p // 16
            if p == 8:
                if self.st2:
                    self.stamp(4)
                e(f"s_mov_b64 s[{SVA}:{SVA+1}], s[12:13]")
                e(f"s_mov_b64 s[{SVB}:{SVB+1}], s[12:13]")
            if p >= self.W0:
                e(f"s_waitcnt vmcnt({self.W0-1})")
            issue(p % 16, sP[2*r], sP[2*r+1], 16384 * r)
        self.stamp(0)
        e(f"s_load_dword s{sTag}, s[22:23], s{sT}")
        srd(SWS, 22, WS_REC)
        srd(SO, 18, 16384)
        e(f"v_mov_b32 v{vL_}, {LIST}")
        vPA, vOA = 13, 14
        sMB, sEP, sOO = 68, 69, 70
        e(f"s_mov_b32 s{sEP}, s{sT}")
        e(f"v_lshlrev_b32 v{vPA}, 4, v0")
        e(f"s_lshl_b32 s{sMB}, s{sKVH}, 5")
        e(f"s_add_u32 s{sMB}, s{sMB}, s{sC}")
        e(f"s_lshl_b32 s{sMB}, s{sMB}, 12")
        e("v_bfe_u32 v1, v0, 2, 1")
        e("v_and_b32 v2, 3, v0")
        e("v_lshlrev_b32 v1, 13, v1")
        e(f"v_lshl_add_u32 v{vOA}, v2, 8, v1")
        e("v_bfe_u32 v1, v0, 4, 1")
        e(f"v_lshl_add_u32 v{vOA}, v1, 2, v{vOA}")
        e("v_bfe_u32 v1, v0, 5, 1")
        e(f"v_lshl_add_u32 v{vOA}, v1, 1, v{vOA}")
        sXM = 40
        e(f"s_mov_b32 s{sXM}, 0x00ff00ff")
        e(f"s_mov_b32 s{sXM+1}, 0x00ff00ff")
        e(f"s_lshl_b32 s{sOO}, s{sKVH}, 10")
        e(f"s_lshl_b32 s{sT}, s{sC}, 3")
        e(f"s_add_u32 s{sOO}, s{sOO}, s{sT}")
        e("s_waitcnt lgkmcnt(0)")
        e(f"s_add_u32 s{sTag}, s{sTag}, 1")
        e(f"s_waitcnt vmcnt({NF0-8})")
        e("s_barrier")
        nrd = 6
        e(f"ds_read_b128 v[{vD}:{vD+3}], v{vL_}")
        e(f"ds_read_b64 v[{vD+4}:{vD+5}], v{vL_} offset:16")
        e(f"v_add_u32 v{vL_}, {4*nrd}, v{vL_}")
        e("s_waitcnt lgkmcnt(0)")
        for k in range(nrd):
            e(f"v_readfirstlane_b32 s{sE[k]}, v{vD+k}")
        for k in range(2 * NSPEC):
            d = sT if k == 0 else sT2
            e(f"s_xor_b32 s{d}, s{sE[k]}, s{sP[k]}")
            e(f"s_sub_u32 s{d}, s{d}, 1")
            if k:
                e(f"s_max_u32 s{sT}, s{sT}, s{sT2}")

        def setround(ea, eb):
            e(f"s_and_b32 s{sA}, s{ea}, 0xffff8000")
            e(f"s_and_b32 s{sB}, s{eb}, 0xffff8000")
            e(f"s_and_b32 s{sT2}, s{ea}, 0x3ff")
            e(f"s_cselect_b32 s{SKA+2}, s{sFull}, 0")
            e(f"s_cselect_b32 s{SVA+2}, s{sFull}, 0")
            e(f"s_and_b32 s{sT2}, s{eb}, 0x3ff")
            e(f"s_cselect_b32 s{SKB+2}, s{sFull}, 0")
            e(f"s_cselect_b32 s{SVB+2}, s{sFull}, 0")
        e(f"s_cmp_lt_u32 s{sT}, 0x3ff")
        e("s_cbranch_scc1 L_spec_ok")
        e("s_waitcnt vmcnt(0)")
        for p in range(NF0):
            r = p // 16
            if p % 16 == 0:
                setround(sE[2*r], sE[2*r+1])
            issue(p % 16, sA, sB, 16384 * r)
        e(f"s_waitcnt vmcnt({NF0-8})")
        e("s_barrier")
        lab("L_spec_ok")
        self.stamp(1)
        if self.trace:
            e("v_mov_b32 v121, 0")
            e("s_mov_b32 s81, 1")
        if self.probe:
            e("s_memrealtime s[84:85]")
        p0 = NF0
        while p0 < 32:
            if p0 == NF0:
                setround(sE[2], sE[3])
                self.force_m0 = True
            e(f"s_waitcnt vmcnt({NF-1})")
            issue(p0 % 16, sA, sB, 16384)
            p0 += 1
        setround(sE[4], sE[5])
        e(f"s_mov_b32 s{sBuf}, {16384*2}")
        pe = p0 % 16
        assert pe <= ib
        if pe % 4:
            e(f"s_add_u32 m0, s{sBuf}, {4096*(pe//4)}")
        if pe:
            e("s_branch L_enter")
        lab("L_round")
        for p in range(16):
            if p == pe and pe:
                lab("L_enter")
            e(f"s_waitcnt vmcnt({NF-1})")
            if p == ib:
                if self.trace == 2:
                    e("s_memrealtime s[88:89]")
                e("s_barrier")
                if self.trace in (1, 3):
                    e("s_memrealtime s[88:89]")
                e(f"ds_read_b64 v[{vD}:{vD+1}], v{vL_}")
                e(f"v_add_u32 v{vL_}, 8, v{vL_}")
            issue(p, sA, sB)
        lab("L_next")
        e(f"s_add_u32 s{sBuf}, s{sBuf}, 16384")
        e(f"s_and_b32 s{sBuf}, s{sBuf}, 0xffff")
        e("s_waitcnt lgkmcnt(0)")
        if self.trace:
            e("s_lshl_b64 exec, 1, s81")
            e("v_mov_b32 v121, s88")
            e("s_mov_b64 exec, -1")
            e("s_add_u32 s81, s81, 1")
        e(f"v_readfirstlane_b32 s{sE[0]}, v{vD}")
        e(f"v_readfirstlane_b32 s{sE[1]}, v{vD+1}")
        setround(sE[0], sE[1])
        if NF2:
            e(f"s_bitcmp1_b32 s{sE[0]}, 11")
            e("s_cbranch_scc1 L_fast")
        e(f"s_cmp_lg_u32 s{sE[0]}, 0")
        e("s_cbranch_scc1 L_round")
        if NF2:
            e("s_branch L_drain")
            lab("L_fast")
            for p in range(16):
                if NF2 < 40:
                    e(f"s_waitcnt vmcnt({NF2-1})")
                issue(p, sA, sB)
            e("s_waitcnt vmcnt(24)")
            e("s_barrier")
            e(f"ds_read_b64 v[{vD}:{vD+1}], v{vL_}")
            e(f"v_add_u32 v{vL_}, 8, v{vL_}")
            e("s_branch L_next")
            lab("L_drain")
        if not self.st2:
            self.stamp(2)
        for k in range(kk - 1, -1, -1):
            e(f"s_waitcnt vmcnt({8+16*k})")
            e("s_barrier")
        e("s_waitcnt vmcnt(0)")
        e("s_barrier")
        if not self.st2:
            self.stamp(3)
        if self.trace:
            e("v_lshlrev_b32 v122, 2, v0")
            e("s_lshl_b32 s88, s2, 9")
            e(f"s_add_u32 s88, s88, {STAMP_OFF + 0x10000}")
            e(f"buffer_store_dword v121, v122, s[{SWS}:{SWS+3}], s88 offen")
            e("s_waitcnt vmcnt(0)")
        if self.probe:
            e("s_memrealtime s[86:87]")
        RS = [24 + 16 * k for k in range(NS)]
        sM = [[52 + 8 * k + 2 * i for i in range(4)] for k in range(2)] + [[72, 74, 76, 78]]
        sN = 80
        if self.nopoll:
            self.flush_stamps()
            e("s_endpgm")

        ap = self.apoll

        def poll(k, masked):
            for i in range(4):
                if masked:
                    e(f"s_mov_b64 exec, s[{sM[k][i]}:{sM[k][i]+1}]")
                r = RS[k] + 4 * i
                if ap == 2 or (ap and masked):
                    for q in range(4):
                        e(f"v_mov_b32 v{r+q}, 0")
                    e(f"buffer_atomic_add_x2 v[{r+2}:{r+3}], v{vPA}, s[{SWS}:{SWS+3}], s{sMB} offen offset:{1024*i+8} sc0 sc1")
                    e(f"buffer_atomic_add_x2 v[{r}:{r+1}], v{vPA}, s[{SWS}:{SWS+3}], s{sMB} offen offset:{1024*i} sc0 sc1")
                else:
                    e(f"buffer_load_dwordx4 v[{r}:{r+3}], v{vPA}, s[{SWS}:{SWS+3}], s{sMB} offen offset:{1024*i} {FL[self.pollf]}")
            if masked:
                e("s_mov_b64 exec, -1")
        e(f"s_mov_b32 s{sN}, {POLL_MAX}")
        if self.pd:
            e(f"s_sleep {self.pd}")
        assert not ap or NS == 1
        for k in range(NS):
            if k:
                e(f"s_sleep {self.stag}")
            poll(k, False)
        lab("L_poll")
        for k in range(NS):
            e(f"s_waitcnt vmcnt({4*(NS-1)})")
            for i in range(4):
                e(f"v_cmp_ne_u32 s[{sM[k][i]}:{sM[k][i]+1}], s{sTag}, v{RS[k]+4*i+3}")
            e(f"s_or_b64 vcc, s[{sM[k][0]}:{sM[k][0]+1}], s[{sM[k][1]}:{sM[k][1]+1}]")
            e(f"s_or_b64 vcc, vcc, s[{sM[k][2]}:{sM[k][2]+1}]")
            e(f"s_or_b64 vcc, vcc, s[{sM[k][3]}:{sM[k][3]+1}]")
            e(f"s_cbranch_scc0 L_ready{k}")
            if self.slp:
                e(f"s_sleep {self.slp}")
            poll(k, True)
        e(f"s_sub_u32 s{sN}, s{sN}, 1")
        e(f"s_cmp_lg_u32 s{sN}, 0")
        e("s_cbranch_scc1 L_poll")
        mx, tm, den, t5 = 72, 73, 74, 76
        U, acc = 80, 96
        for k in range(NS):
            R = RS[k]
            lab(f"L_ready{k}")
            if self.probe == 20:
                e("s_memrealtime s[90:91]")
            if not self.st2:
                self.stamp(4)

            def unp(j):
                src = R + 4 * (j // 4) + (j // 2) % 2
                if j % 2:
                    e(f"v_and_b32 v{U+j}, 0xffff0000, v{src}")
                else:
                    e(f"v_lshlrev_b32 v{U+j}, 16, v{src}")
            e(f"v_max3_f32 v{mx}, v{R+2}, v{R+6}, v{R+10}")
            e(f"v_max_f32 v{mx}, v{mx}, v{R+14}")
            unp(0); unp(1)
            e(f"v_max_f32_dpp v{mx}, v{mx}, v{mx} row_ror:8 row_mask:0xf bank_mask:0xf")
            e(f"v_mov_b32 v{tm}, v{mx}")
            unp(2); unp(3)
            e(f"v_permlane16_swap_b32 v{mx}, v{tm}")
            unp(4)
            e(f"v_max_f32 v{mx}, v{mx}, v{tm}")
            e(f"v_mov_b32 v{tm}, v{mx}")
            unp(5); unp(6)
            e(f"v_permlane32_swap_b32 v{mx}, v{tm}")
            unp(7)
            e(f"v_max_f32 v{mx}, v{mx}, v{tm}")
            for i in range(4):
                e(f"v_sub_f32 v{R+4*i+2}, v{R+4*i+2}, v{mx}")
            for i in range(4):
                e(f"v_exp_f32 v{R+4*i+2}, v{R+4*i+2}")
                unp(8 + 2 * i); unp(9 + 2 * i)

            def pk(i, h):
                w = R + 4 * i + 2
                a = acc + 2 * h
                if i == 0:
                    e(f"v_pk_mul_f32 v[{a}:{a+1}], v[{U+2*h}:{U+2*h+1}], v[{w}:{w+1}] op_sel_hi:[1,0]")
                else:
                    e(f"v_pk_fma_f32 v[{a}:{a+1}], v[{U+4*i+2*h}:{U+4*i+2*h+1}], v[{w}:{w+1}], v[{a}:{a+1}] op_sel_hi:[1,0,1]")
            e(f"v_add_f32 v{den}, v{R+2}, v{R+6}")
            e(f"v_add_f32 v{tm}, v{R+10}, v{R+14}")
            pk(0, 0)
            e(f"v_add_f32 v{den}, v{den}, v{tm}")
            pk(0, 1); pk(1, 0)
            e(f"v_add_f32_dpp v{den}, v{den}, v{den} row_ror:8 row_mask:0xf bank_mask:0xf")
            e(f"v_mov_b32 v{tm}, v{den}")
            pk(1, 1); pk(2, 0)
            e(f"v_permlane16_swap_b32 v{den}, v{tm}")
            pk(2, 1)
            e(f"v_add_f32 v{den}, v{den}, v{tm}")
            e(f"v_mov_b32 v{tm}, v{den}")
            pk(3, 0); pk(3, 1)
            e(f"v_permlane32_swap_b32 v{den}, v{tm}")
            e(f"v_permlane32_swap_b32 v{acc}, v{acc+1}")
            e(f"v_permlane32_swap_b32 v{acc+2}, v{acc+3}")
            e(f"v_add_f32 v{den}, v{den}, v{tm}")
            e(f"v_add_f32 v{acc}, v{acc}, v{acc+1}")
            e(f"v_add_f32 v{acc+2}, v{acc+2}, v{acc+3}")
            e(f"v_rcp_f32 v{den}, v{den}")
            e("s_nop 0")
            e(f"v_permlane16_swap_b32 v{acc}, v{acc+2}")
            e(f"v_mov_b32 v{t5+2}, s{sTag}")
            e(f"v_add_f32 v{acc}, v{acc}, v{acc+2}")
            e(f"v_mov_b32 v{t5+3}, 0")
            e("s_nop 0")
            e(f"v_add_f32_dpp v{acc}, v{acc}, v{acc} row_ror:8 row_mask:0xf bank_mask:0xf")
            e(f"v_mul_f32 v{acc}, v{acc}, v{den}")
            if k < NS - 1:
                e("s_branch L_out")
        lab("L_out")
        e(f"v_cvt_pk_bf16_f32 v{t5}, v{acc}, v{acc}")
        e(f"s_mov_b64 exec, s[{sXM}:{sXM+1}]")
        e(f"buffer_store_short v{t5}, v{vOA}, s[{SO}:{SO+3}], s{sOO} offen {FL[self.outf]}")
        e(f"s_cmp_lg_u32 s{sC}, 0")
        e("s_cbranch_scc1 L_noep")
        e("s_mov_b64 exec, 1")
        e(f"buffer_store_dword v{t5+2}, v{t5+3}, s[{SWS}:{SWS+3}], s{sEP} offen")
        lab("L_noep")
        if self.probe == 20:
            e("s_mov_b64 exec, -1")
            e("s_waitcnt vmcnt(0)")
            e("s_memrealtime s[88:89]")
            e("s_waitcnt lgkmcnt(0)")
            e(f"s_sub_u32 s93, s{self.pa}, s{self.pb}")
            e(f"s_lshl_b32 s93, s93, {self.psh}")
            e("s_min_u32 s93, s93, 20000")
            if self.pw >= 0:
                e(f"s_cmp_eq_u32 s2, {self.pw}")
                e("s_cselect_b32 s93, s93, 0")
            lab("L_spin")
            e("s_memrealtime s[94:95]")
            e("s_waitcnt lgkmcnt(0)")
            e("s_sub_u32 s94, s94, s88")
            e("s_cmp_lt_u32 s94, s93")
            e("s_cbranch_scc1 L_spin")
        elif self.probe:
            e("s_mov_b64 exec, -1")
            e("s_waitcnt vmcnt(0)")
            e("s_memrealtime s[88:89]")
            srd(48, 20, 256)
            e("v_mov_b32 v1, 0")
            e("buffer_load_dword v2, v1, s[48:51], 0 offen sc0 sc1")
            e("s_waitcnt vmcnt(0) lgkmcnt(0)")
            e("v_readfirstlane_b32 s92, v2")
            e("s_not_b32 s92, s92")
            a, b, sh = {1: (88, 92, 0), 2: (84, 92, 2), 3: (88, 86, 2), 5: (82, 92, 3), 6: (88, 88, 0), 7: (84, 82, 2)}[self.probe]
            e(f"s_sub_u32 s93, s{a}, s{b}")
            e(f"s_lshl_b32 s93, s93, {sh}")
            e("s_min_u32 s93, s93, 20000")
            lab("L_spin")
            e("s_memrealtime s[94:95]")
            e("s_waitcnt lgkmcnt(0)")
            e("s_sub_u32 s94, s94, s88")
            e("s_cmp_lt_u32 s94, s93")
            e("s_cbranch_scc1 L_spin")
        if self.stamps:
            e("s_mov_b64 exec, -1")
            self.stamp(5)
            e("s_waitcnt vmcnt(0)")
            self.stamp(6)
        self.flush_stamps()
        lab("L_exit")
        e("s_endpgm")

        lab("L_consumer")
        self.nv = 1
        vLane = self.valloc()
        vT0 = self.valloc(); vT1 = self.valloc(); vT2 = self.valloc(); vT3 = self.valloc()
        vM = self.valloc(); vL = self.valloc(); vNm = self.valloc()
        vShift = self.valloc(); v4g = self.valloc(); vNeg = self.valloc()
        vA = self.valloc(); vList = self.valloc(); vTail = self.valloc(); vZero = self.valloc()
        vPool = self.valloc(2, 2)
        vE = [self.valloc(2, 2), self.valloc(2, 2)]
        vTk = self.valloc(8, 2)
        vCS = vTk + 4
        vLK = self.valloc(4); vLV = self.valloc(2)
        vS = self.valloc(8, 4)
        vP = self.valloc(4, 4)
        vQ = self.valloc(16, 4)
        vKf = self.valloc(32, 4)
        vVf = self.valloc(8, 4)
        vO = self.valloc(8, 4)
        assert self.nv <= 112
        SQ, SB = 24, 28
        sCtx0, sCtx1 = 40, 41
        sW, sCs, sR, sFirst, sFirstD, sNp, sCt, sX = 52, 53, 54, 55, 56, 57, 58, 59
        sMk = [60, 62, 64, 66, 68, 70, 72, 74]
        sZ = 76
        sMsg = 78
        sK8 = 79
        sSp = [32, 33, 34, 35, 36, 37]
        sTg24, sTk = 80, 81

        e(f"v_and_b32 v{vLane}, 63, v0")
        e(f"s_sub_u32 s{sW}, s3, 1")
        e(f"v_lshrrev_b32 v{vT0}, 4, v{vLane}")
        e(f"v_and_b32 v{vT1}, 15, v{vLane}")
        e(f"s_lshl_b32 s{sT}, s{sC}, 2")
        e(f"v_lshlrev_b32 v{vA}, 7, v{vLane}")
        e(f"v_add_u32 v{vA}, s{sT}, v{vA}")
        e(f"s_and_b32 s{sT2}, s{sC}, {dom-1}")
        e(f"s_lshl_b32 s{sT}, s{sT2}, 2")
        e(f"s_add_u32 s{sT}, s{sT}, {4*J0}")
        e(f"v_mul_u32_u24 v{vTail}, {8*dom}, v{vLane}")
        e(f"v_add_u32 v{vTail}, s{sT}, v{vTail}")
        e(f"s_mul_i32 s{sCt}, s{sKVH}, {dom}")
        e(f"s_add_u32 s{sCt}, s{sCt}, s{sT2}")
        e(f"s_lshl_b32 s{sCt}, s{sCt}, 8")
        e(f"s_add_u32 s{sCt}, s{sCt}, {CT_OFF}")
        e(f"v_bfe_u32 v{vT2}, v{vLane}, 2, 1")
        e(f"v_mul_u32_u24 v{vShift}, 5, v{vT2}")
        e(f"v_lshlrev_b32 v{vT2}, 1, v{vT0}")
        e(f"v_xor_b32 v{vT2}, v{vT2}, v{vT1}")
        e(f"v_lshlrev_b32 v{vT2}, 4, v{vT2}")
        e(f"v_lshl_add_u32 v{vT2}, v{vT0}, 8, v{vT2}")
        e(f"s_lshl_b32 s{sT}, s{sKVH}, 10")
        e(f"v_add_u32 v{vNm}, s{sT}, v{vT2}")
        e(f"v_xor_b32 v{vM}, 128, v{vNm}")
        e(f"s_mov_b32 m0, {QL}")
        e(f"s_mov_b32 s{sK8}, 8192")
        e(f"s_lshl_b32 s{sT}, s{sKVH}, 8")
        e(f"s_add_u32 s{sT}, s{sT}, {EP_OFF}")
        e(f"v_mov_b32 v{vZero}, 0")
        e("s_waitcnt lgkmcnt(0)")
        e(f"s_load_dwordx2 s[{sCtx0}:{sCtx1}], s[16:17], 0")
        e(f"s_load_dword s{sTag}, s[22:23], s{sT}")
        srd(SB, 14, 16384)
        srd(SQ, 8, 16384)
        srd(SWS, 22, WS_REC)
        tb = vKf
        e(f"s_cmp_lg_u32 s{sW}, 0")
        e("s_cbranch_scc1 L_notab")
        e(f"buffer_load_dword v{tb}, v{vA}, s[{SB}:{SB+3}], 0 offen")
        e(f"buffer_load_dword v{tb+1}, v{vA}, s[{SB}:{SB+3}], s{sK8} offen")
        if K:
            e(f"buffer_load_dword v{tb+2}, v{vTail}, s[{SB}:{SB+3}], 0 offen")
            e(f"buffer_load_dword v{tb+3}, v{vTail}, s[{SB}:{SB+3}], 0 offen offset:{4*dom}")
            e(f"buffer_load_dword v{tb+4}, v{vTail}, s[{SB}:{SB+3}], s{sK8} offen")
            e(f"buffer_load_dword v{tb+5}, v{vTail}, s[{SB}:{SB+3}], s{sK8} offen offset:{4*dom}")
        lab("L_notab")
        e(f"s_cmp_lg_u32 s{sW}, {self.qw}")
        e("s_cbranch_scc1 L_noq")
        e(f"s_mov_b32 s{sT}, {8192-1024}")
        e(f"buffer_load_dwordx4 v{vNm}, s[{SQ}:{SQ+3}], 0 offen lds")
        e(f"buffer_load_dwordx4 v{vM}, s[{SQ}:{SQ+3}], s{sT} offen offset:1024 lds")
        lab("L_noq")
        if self.eb:
            e("s_barrier")
        vQA = vS + 4
        e(f"v_and_b32 v{vT3}, 7, v{vT1}")
        e(f"v_lshlrev_b32 v{vT2}, 1, v{vT3}")
        e(f"v_xor_b32 v{vT2}, v{vT2}, v{vT0}")
        e(f"v_lshlrev_b32 v{vT2}, 4, v{vT2}")
        e(f"v_lshl_add_u32 v{vQA}, v{vT3}, 8, v{vT2}")
        for c in range(1, 4):
            e(f"v_xor_b32 v{vQA+c}, {64*c}, v{vQA}")
        for k in range(2 * NSPEC):
            e(f"s_add_u32 s{sSp[k]}, s{sC}, {32*k}")
            e(f"s_lshl_b32 s{sSp[k]}, s{sSp[k]}, 15")
        e(f"v_xor_b32 v{vT2}, v{vT0}, v{vT1}")
        e(f"v_lshlrev_b32 v{vT2}, 4, v{vT2}")
        e(f"v_lshl_add_u32 v{vLK}, v{vT1}, 8, v{vT2}")
        for c in range(1, 4):
            e(f"v_xor_b32 v{vLK+c}, {64*c}, v{vLK}")
        e(f"v_lshlrev_b32 v{v4g}, 2, v{vT0}")
        e(f"v_lshrrev_b32 v{vT2}, 2, v{vLane}")
        e(f"v_and_b32 v{vT3}, 3, v{vLane}")
        e(f"v_lshlrev_b32 v{vT3}, 3, v{vT3}")
        e(f"v_lshl_add_u32 v{vT3}, v{vT2}, 8, v{vT3}")
        e(f"v_and_b32 v{vT2}, 7, v{vT2}")
        e(f"s_lshl_b32 s{sT}, s{sW}, 1")
        e(f"v_xor_b32 v{vT2}, s{sT}, v{vT2}")
        e(f"v_lshl_add_u32 v{vLV}, v{vT2}, 5, v{vT3}")
        e(f"v_xor_b32 v{vLV+1}, 32, v{vLV}")
        e(f"v_mov_b32 v{vNeg}, {hex(f2u(-2e30))}")
        e(f"v_mov_b32 v{vM}, {hex(f2u(-1e30))}")
        e(f"s_mov_b32 s{sCs}, {hex(f2u(CSCALE))}")
        e(f"v_mov_b32 v{vL}, 0")
        for k in range(8):
            e(f"v_mov_b32 v{vO+k}, 0")
        e(f"v_mov_b32 v{vList}, {LIST}")
        e(f"s_mov_b32 s{sR}, 0")
        if self.trace:
            e("v_mov_b32 v121, -1")
            e(f"v_lshlrev_b32 v122, 2, v{vLane}")
        e(f"s_mov_b32 s{sFirst}, {BIG}")
        e(f"s_mov_b32 s{sFirstD}, {BIG}")
        vMA = vLane
        e(f"s_lshl_b32 s{sMsg}, s{sKVH}, 17")
        e(f"s_lshl_b32 s{sT}, s{sC}, 7")
        e(f"s_add_u32 s{sMsg}, s{sMsg}, s{sT}")
        e(f"s_lshl_b32 s{sT}, s{sW}, 15")
        e(f"s_add_u32 s{sMsg}, s{sMsg}, s{sT}")
        e("s_waitcnt lgkmcnt(0)")
        e(f"s_add_u32 s{sTag}, s{sTag}, 1")
        e(f"s_cmp_gt_i32 s{sCtx0}, 0")
        e(f"s_cselect_b32 s{sZ}, 0, 0x0f0f0f0f")
        e(f"s_cselect_b32 s{sCtx0}, s{sCtx0}, 32768")
        e(f"s_cmp_gt_i32 s{sCtx1}, 0")
        e(f"s_cselect_b32 s{sZ+1}, 0, 0xf0f0f0f0")
        e(f"s_cselect_b32 s{sCtx1}, s{sCtx1}, 32768")
        e(f"s_or_b32 s{sZ}, s{sZ}, s{sZ+1}")
        e(f"s_mov_b32 s{sZ+1}, s{sZ}")
        e(f"s_min_i32 s{sCtx0}, s{sCtx0}, 32768")
        e(f"s_min_i32 s{sCtx1}, s{sCtx1}, 32768")
        e(f"s_cmp_lg_u32 s{sW}, 0")
        e("s_cbranch_scc1 L_nobuild")
        f0 = vS
        l0, l1, dp, ds_, px = vVf, vVf + 1, vVf + 2, vVf + 3, vVf + 4
        if K and not self.tkx:
            e("s_mov_b64 exec, 1")
            e(f"buffer_load_dwordx2 v[{vCS+2}:{vCS+3}], v{vZero}, s[{SWS}:{SWS+3}], s{sCt} offen sc1")
            e("s_mov_b64 exec, -1")
        if K and self.tkx:
            if self.sat:
                e(f"s_and_b32 s{sTg24}, s{sTag}, 0xffffff")
                e(f"v_mov_b32 v{vCS}, s{sTg24}")
            else:
                e(f"v_mov_b32 v{vCS}, s{sTag}")
                e(f"v_mov_b32 v{vCS+1}, 0")
            e(f"s_cmp_lt_u32 s{sC}, {dom}")
            e(f"s_cselect_b32 s{SWS+2}, s{SWS+2}, 0")
            e("s_mov_b64 exec, 1")
            if self.sat:
                e(f"buffer_atomic_swap v{vCS}, v{vZero}, s[{SWS}:{SWS+3}], s{sCt} offen sc0 sc1")
            else:
                e(f"buffer_atomic_swap_x2 v[{vCS}:{vCS+1}], v{vZero}, s[{SWS}:{SWS+3}], s{sCt} offen sc1")
            e("s_mov_b64 exec, -1")
            e(f"s_mov_b32 s{SWS+2}, {WS_REC}")
        e(f"v_cmp_gt_u32 vcc, {NMIN2//4}, v{vLane}")
        e(f"v_mov_b32 v{f0+1}, 0x400")
        e(f"v_lshlrev_b32 v{vT2}, 4, v{vLane}")
        e(f"v_cndmask_b32 v{f0}, 0, v{f0+1}, vcc")
        e(f"v_lshlrev_b32 v{vT3}, 2, v{vLane}")
        e(f"v_add_u32 v{vT2}, v{vList}, v{vT2}")
        e(f"v_add_u32 v{vT3}, v{vList}, v{vT3}")
        for k in range(1, 4):
            e(f"v_mov_b32 v{f0+k}, v{f0}")
        e(f"ds_write_b128 v{vT2}, v[{f0}:{f0+3}]")
        e(f"ds_write_b32 v{vT3}, v{vZero} offset:1024")
        e(f"v_lshlrev_b32 v{vT2}, 2, v{vA}")
        e(f"v_sub_u32 v{l0}, s{sCtx0}, v{vT2}")
        e(f"v_sub_u32 v{l1}, s{sCtx1}, v{vT2}")
        e(f"v_med3_i32 v{l0}, v{l0}, 0, 16")
        e(f"v_med3_i32 v{l1}, v{l1}, 0, 16")
        e(f"v_cmp_lt_u32 s[{sMk[0]}:{sMk[0]+1}], 0, v{l0}")
        e(f"v_cmp_lt_u32 s[{sMk[1]}:{sMk[1]+1}], 0, v{l1}")
        e(f"v_lshlrev_b32 v{l1}, 5, v{l1}")
        pm = 0
        for i in range(J0 // 32, (J0 + dom * K) // 32):
            pm |= 1 << i
        pm = ~pm & ((1 << 64) - 1)
        e(f"s_mov_b32 s{sMk[2]}, {hex(pm & 0xffffffff)}")
        e(f"s_mov_b32 s{sMk[2]+1}, {hex(pm >> 32)}")
        e(f"s_and_b64 s[{sMk[2]}:{sMk[2]+1}], s[{sMk[2]}:{sMk[2]+1}], s[{sMk[0]}:{sMk[0]+1}]")
        e(f"s_bcnt1_i32_b64 s{sT}, s[{sMk[2]}:{sMk[2]+1}]")
        e(f"v_mbcnt_lo_u32_b32 v{vT2}, s{sMk[2]}, 0")
        e(f"v_mbcnt_hi_u32_b32 v{vT2}, s{sMk[2]+1}, v{vT2}")
        e(f"v_lshl_add_u32 v{vT2}, v{vT2}, 2, v{vList}")
        nq = 2 if self.qw == 0 else 0
        e(f"s_waitcnt vmcnt({(5 if K else 0) + nq})")
        e(f"v_cmp_eq_u32 vcc, v{tb}, v{tb+1}")
        e(f"v_lshl_or_b32 v{dp}, v{tb}, 15, v{l0}")
        e(f"v_lshl_or_b32 v{ds_}, v{tb+1}, 15, v{l1}")
        e(f"s_and_b64 vcc, vcc, s[{sMk[0]}:{sMk[0]+1}]")
        e(f"s_andn2_b64 s[{sMk[3]}:{sMk[3]+1}], s[{sMk[1]}:{sMk[1]+1}], vcc")
        e(f"v_cndmask_b32 v{px}, 0, v{l1}, vcc")
        e(f"v_mov_b32 v{vT3}, s{sT}")
        e(f"v_or_b32 v{dp}, v{dp}, v{px}")
        e(f"v_mbcnt_lo_u32_b32 v{vT3}, s{sMk[3]}, v{vT3}")
        e(f"v_mbcnt_hi_u32_b32 v{vT3}, s{sMk[3]+1}, v{vT3}")
        e(f"v_lshl_add_u32 v{vT3}, v{vT3}, 2, v{vList}")
        e(f"s_mov_b64 exec, s[{sMk[2]}:{sMk[2]+1}]")
        e(f"ds_write_b32 v{vT2}, v{dp}")
        e(f"s_mov_b64 exec, s[{sMk[3]}:{sMk[3]+1}]")
        e(f"ds_write_b32 v{vT3}, v{ds_}")
        e("s_mov_b64 exec, -1")
        e(f"s_bcnt1_i32_b64 s{sT2}, s[{sMk[3]}:{sMk[3]+1}]")
        e(f"s_add_u32 s{sX}, s{sT}, s{sT2}")
        e(f"s_max_u32 s{sX}, s{sX}, {NMIN2}")
        if K:
            e(f"v_lshlrev_b32 v{vT2}, 2, v{vTail}")
            e(f"v_cmp_gt_u32 s[{sMk[2]}:{sMk[2]+1}], {K//2}, v{vLane}")
            e(f"s_mov_b32 s{sNp}, 0")
            e(f"s_waitcnt vmcnt({1 + nq})")
            for h in range(2):
                e(f"v_sub_u32 v{l0}, s{sCtx0}, v{vT2}")
                e(f"v_sub_u32 v{l1}, s{sCtx1}, v{vT2}")
                e(f"v_med3_i32 v{l0}, v{l0}, 0, 16")
                e(f"v_med3_i32 v{l1}, v{l1}, 0, 16")
                e(f"v_cmp_lt_u32 s[{sMk[0]}:{sMk[0]+1}], 0, v{l0}")
                e(f"v_cmp_eq_u32 vcc, v{tb+2+h}, v{tb+4+h}")
                e(f"v_lshl_or_b32 v{dp}, v{tb+2+h}, 15, v{l0}")
                e(f"s_and_b64 s[{sMk[0]}:{sMk[0]+1}], s[{sMk[0]}:{sMk[0]+1}], s[{sMk[2]}:{sMk[2]+1}]")
                e(f"v_cndmask_b32 v{l1}, 0, v{l1}, vcc")
                e(f"s_bcnt1_i32_b64 s{sT}, s[{sMk[0]}:{sMk[0]+1}]")
                e(f"v_lshl_or_b32 v{dp}, v{l1}, 5, v{dp}")
                e(f"s_add_u32 s{sNp}, s{sNp}, s{sT}")
                e(f"v_cndmask_b32 v{vPool+h}, 0, v{dp}, s[{sMk[0]}:{sMk[0]+1}]")
                if h == 0:
                    e(f"v_add_u32 v{vT2}, {16*dom}, v{vT2}")
            if NF2:
                e(f"s_sub_i32 s{sT}, s{sNp}, {self.FT}")
                e(f"v_lshlrev_b32 v{l0}, 1, v{vLane}")
                e(f"v_cmp_le_i32 vcc, s{sT}, v{l0}")
                e(f"v_mov_b32 v{l1}, 0x800")
                e(f"v_cmp_ne_u32 s[{sMk[0]}:{sMk[0]+1}], 0, v{vPool+1}")
                e(f"v_cndmask_b32 v{l1}, 0, v{l1}, vcc")
                e(f"v_or_b32 v{vPool}, v{vPool}, v{l1}")
                e(f"v_cndmask_b32 v{l1}, 0, v{l1}, s[{sMk[0]}:{sMk[0]+1}]")
                e(f"v_or_b32 v{vPool+1}, v{vPool+1}, v{l1}")
            e(f"s_lshl_b32 s{sT}, s{sX}, 2")
            e(f"v_add_u32 v{vTail}, s{sT}, v{vList}")
            e(f"s_lshr_b32 s{sT}, s{sX}, 1")
            e(f"s_sub_u32 s{sT}, s{sT}, {D+LA}")
            e(f"s_add_u32 s{sT2}, s{sT}, {D}")
            e(f"s_cmp_lg_u32 s{sNp}, 0")
            e(f"s_cselect_b32 s{sFirst}, s{sT}, s{sFirst}")
            e(f"s_cselect_b32 s{sFirstD}, s{sT2}, s{sFirstD}")
            if not self.tkx:
                e(f"v_mov_b32 v{vCS}, 0")
                e(f"v_mov_b32 v{vCS+1}, s{sTag}")
        if nq:
            e(f"s_waitcnt vmcnt({1 if K else 0})")
        e("s_branch L_built")
        lab("L_nobuild")
        e("s_waitcnt vmcnt(0)")
        lab("L_built")
        e(f"v_lshrrev_b32 v{vT2}, 3, v{vT1}")
        e(f"v_lshl_add_u32 v{vT2}, v{vT2}, 2, v{vT0}")
        e(f"v_and_b32 v{vT3}, 7, v{vT1}")
        e(f"v_lshlrev_b32 v{vT3}, 4, v{vT3}")
        e(f"v_lshl_add_u32 v{vMA}, v{vT2}, 12, v{vT3}")
        e(f"v_mul_f32 v{vNm}, s{sCs}, v{vM}")
        if self.probe and self.probe != 20:
            e(f"s_cmp_lg_u32 s{sW}, 3")
            e("s_cbranch_scc1 L_nopost")
            srd(48, 20, 256)
            e("s_not_b32 s82, s82")
            e(f"v_mov_b32 v{vT3}, s82")
            e("s_mov_b64 exec, 1")
            e(f"buffer_atomic_umax v{vT3}, v{vZero}, s[48:51], 0 offen sc1")
            e("s_mov_b64 exec, -1")
            lab("L_nopost")
        e("s_waitcnt lgkmcnt(0)")
        self.stamp(0)

        def pv_reads(buf, extra=0):
            o = buf * 16384 + 8192
            for jj in range(2):
                e(f"ds_read_b64_tr_b16 v[{vVf+4*jj}:{vVf+4*jj+1}], v{vLV+jj} offset:{o}")
                e(f"ds_read_b64_tr_b16 v[{vVf+4*jj+2}:{vVf+4*jj+3}], v{vLV+jj} offset:{o+4096}")

        def pv_mfma(jj):
            e(f"v_mfma_f32_16x16x32_bf16 v[{vO+4*jj}:{vO+4*jj+3}], v[{vVf+4*jj}:{vVf+4*jj+3}], v[{vP}:{vP+3}], v[{vO+4*jj}:{vO+4*jj+3}]")

        def round_(r, first, tag):
            cur, nxt = vE[r & 1], vE[(r + 1) & 1]
            so = r * 16384
            def masks(cur):
                for u in range(2):
                    e(f"v_bfe_u32 v{vT0+u}, v{cur+u}, v{vShift}, 5")
                    e(f"v_sub_u32 v{vT0+u}, v{vT0+u}, v{v4g}")
                for u in range(2):
                    for k in range(4):
                        e(f"v_cmp_lt_i32 s[{sMk[4*u+k]}:{sMk[4*u+k]+1}], {k}, v{vT0+u}")
                for k in range(8):
                    e(f"v_cndmask_b32 v{vS+k}, v{vNeg}, 0, s[{sMk[k]}:{sMk[k]+1}]")

            def k_reads():
                for c in range(4):
                    e(f"ds_read_b128 v[{vKf+4*c}:{vKf+4*c+3}], v{vLK+c} offset:{so}")
                    e(f"ds_read_b128 v[{vKf+16+4*c}:{vKf+16+4*c+3}], v{vLK+c} offset:{so+4096}")

            def request():
                e(f"s_cmp_lt_u32 s{sR}, s{sFirst}")
                e(f"s_cbranch_scc1 L_noreq{tag}")
                e("s_mov_b64 exec, 1")
                e(f"v_mov_b32 v{vTk+2*r+1}, 1")
                if self.tkx:
                    e(f"v_mov_b32 v{vTk+2*r}, 0")
                    e(f"buffer_atomic_add_x2 v[{vTk+2*r}:{vTk+2*r+1}], v{vZero}, s[{SWS}:{SWS+3}], s{sCt} offen sc0 sc1")
                else:
                    e(f"buffer_atomic_add v{vTk+2*r+1}, v{vZero}, s[{SWS}:{SWS+3}], s{sCt} offen sc0 sc1")
                e("s_mov_b64 exec, -1")
                lab(f"L_noreq{tag}")
            if not self.nocompute and not first:
                masks(cur)
            e("s_barrier")
            if first:
                self.stamp(1)
                e(f"ds_read_b128 v[{vP}:{vP+3}], v{vList}")
                if NSPEC == 3:
                    e(f"ds_read_b64 v[{vVf}:{vVf+1}], v{vList} offset:16")
                for c in range(4):
                    e(f"ds_read_b128 v[{vQ+4*c}:{vQ+4*c+3}], v{vQA+c} offset:{QL}")
                k_reads()
                e("s_waitcnt lgkmcnt(12)")
                ent = [vP, vP + 1, vP + 2, vP + 3, vVf, vVf + 1]
                x = vVf + 2
                for k in range(2 * NSPEC):
                    e(f"v_xor_b32 v{x+k}, s{sSp[k]}, v{ent[k]}")
                    e(f"v_subrev_u32 v{x+k}, 1, v{x+k}")
                e(f"v_max3_u32 v{x}, v{x}, v{x+1}, v{x+2}")
                if NSPEC == 3:
                    e(f"v_max3_u32 v{x}, v{x}, v{x+4}, v{x+5}")
                e(f"v_max_u32 v{x}, v{x}, v{x+3}")
                e(f"v_mov_b32 v{nxt}, v{vP+2}")
                e(f"v_mov_b32 v{nxt+1}, v{vP+3}")
                e(f"v_cmp_gt_u32 vcc, 0x3ff, v{x}")
                e("s_cbranch_vccnz L_cspec_ok")
                e("s_waitcnt lgkmcnt(0)")
                e("s_barrier")
                k_reads()
                e("s_waitcnt lgkmcnt(0)")
                lab("L_cspec_ok")
                masks(vP)
                e(f"s_cmp_eq_u32 s{sZ}, 0")
                e("s_cbranch_scc1 L_q_ok")
                e("s_waitcnt lgkmcnt(8)")
                for k in range(16):
                    e(f"v_cndmask_b32 v{vQ+k}, v{vQ+k}, 0, s[{sZ}:{sZ+1}]")
                e("s_nop 1")
                lab("L_q_ok")
            else:
                if not self.nocompute:
                    pv_reads((r + 3) % 4)
                    k_reads()
                e(f"ds_read_b64 v[{nxt}:{nxt+1}], v{vList} offset:{8*(r+1)}")
                if K and not self.sat:
                    request()
            if not self.nocompute:
                if not first:
                    e("s_waitcnt lgkmcnt(11)")
                    pv_mfma(0)
                    e("s_waitcnt lgkmcnt(9)")
                    pv_mfma(1)
                for c in range(4):
                    for u in range(2):
                        e(f"s_waitcnt lgkmcnt({(7 if first else 8)-2*c-u})")
                        e(f"v_mfma_f32_16x16x32_bf16 v[{vS+4*u}:{vS+4*u+3}], v[{vKf+16*u+4*c}:{vKf+16*u+4*c+3}], v[{vQ+4*c}:{vQ+4*c+3}], v[{vS+4*u}:{vS+4*u+3}]")
                e("s_nop 7")
                e(f"v_max3_f32 v{vT0}, v{vS}, v{vS+1}, v{vS+2}")
                e(f"v_max3_f32 v{vT1}, v{vS+4}, v{vS+5}, v{vS+6}")
                e(f"v_max3_f32 v{vT0}, v{vT0}, v{vS+3}, v{vM}")
                e(f"v_max3_f32 v{vT0}, v{vT0}, v{vT1}, v{vS+7}")
                e(f"v_cmp_gt_f32 vcc, v{vT0}, v{vM}")
                e(f"s_cbranch_vccz L_skip{tag}")
                e(f"v_mov_b32 v{vT1}, v{vT0}")
                e("s_nop 1")
                e(f"v_permlane32_swap_b32 v{vT0}, v{vT1}")
                e("s_nop 0")
                e(f"v_max_f32 v{vT0}, v{vT0}, v{vT1}")
                e(f"v_mov_b32 v{vT1}, v{vT0}")
                e("s_nop 1")
                e(f"v_permlane16_swap_b32 v{vT0}, v{vT1}")
                e("s_nop 0")
                e(f"v_max_f32 v{vT0}, v{vT0}, v{vT1}")
                e(f"v_sub_f32 v{vA}, v{vM}, v{vT0}")
                e(f"v_mul_f32 v{vA}, s{sCs}, v{vA}")
                e(f"v_exp_f32 v{vA}, v{vA}")
                e(f"v_mov_b32 v{vM}, v{vT0}")
                e(f"v_mul_f32 v{vNm}, s{sCs}, v{vT0}")
                e(f"v_mul_f32 v{vL}, v{vL}, v{vA}")
                for k in range(8):
                    e(f"v_mul_f32 v{vO+k}, v{vO+k}, v{vA}")
                lab(f"L_skip{tag}")
                for k in range(8):
                    e(f"v_fma_f32 v{vS+k}, v{vS+k}, s{sCs}, -v{vNm}")
                for k in range(8):
                    e(f"v_exp_f32 v{vS+k}, v{vS+k}")
                e("s_nop 0")
                for k in range(4):
                    e(f"v_cvt_pk_bf16_f32 v{vP+k}, v{vS+2*k}, v{vS+2*k+1}")
                e(f"v_pk_add_f32 v[{vS}:{vS+1}], v[{vS}:{vS+1}], v[{vS+2}:{vS+3}]")
                e(f"v_pk_add_f32 v[{vS+4}:{vS+5}], v[{vS+4}:{vS+5}], v[{vS+6}:{vS+7}]")
                e(f"v_pk_add_f32 v[{vS}:{vS+1}], v[{vS}:{vS+1}], v[{vS+4}:{vS+5}]")
                e(f"v_add_f32 v{vL}, v{vL}, v{vS}")
                e(f"v_add_f32 v{vL}, v{vL}, v{vS+1}")
            if K and first and self.tkx and not self.sat:
                request()
            if K and first and not self.tkx:
                e(f"s_cmp_lg_u32 s{sW}, 0")
                e("s_cbranch_scc1 L_claimed")
                e("s_waitcnt vmcnt(0)")
                e(f"v_readfirstlane_b32 s{sT}, v{vCS+3}")
                e(f"s_cmp_eq_u32 s{sT}, s{sTag}")
                e("s_cbranch_scc1 L_claimed")
                e("s_mov_b64 exec, 1")
                e(f"buffer_atomic_cmpswap_x2 v[{vCS}:{vCS+3}], v{vZero}, s[{SWS}:{SWS+3}], s{sCt} offen sc1")
                e("s_mov_b64 exec, -1")
                lab("L_claimed")
                request()
            if K and self.sat:
                e(f"s_cmp_lt_u32 s{sR}, s{sFirst}")
                e("s_waitcnt lgkmcnt(0)")
                e(f"s_cbranch_scc1 L_noproc{tag}")
                e(f"s_cmp_lt_u32 s{sR}, s{sFirstD}")
                e(f"s_cbranch_scc1 L_req{tag}")
                e(f"s_xor_b32 s{sX}, s{sTk}, s{sTg24}")
                e(f"s_and_b32 s{sT}, s{sX}, 0xffffff")
                e(f"s_cbranch_scc1 L_done{tag}")
                e(f"s_lshr_b32 s{sX}, s{sX}, 24")
                if self.trace in (1, 2):
                    e(f"s_lshl_b64 exec, 1, s{sR}")
                    e(f"v_mov_b32 v121, s{sX}")
                    e("s_mov_b64 exec, -1")
                e(f"s_lshl_b32 s{sT}, s{sX}, 1")
                e(f"s_cmp_ge_u32 s{sT}, s{sNp}")
                e(f"s_cbranch_scc1 L_done{tag}")
                e(f"s_lshl_b64 exec, 1, s{sX}")
                e(f"ds_write2_b32 v{vTail}, v{vPool}, v{vPool+1} offset0:0 offset1:1")
                e("s_mov_b64 exec, -1")
                e(f"v_add_u32 v{vTail}, 8, v{vTail}")
                e(f"s_add_u32 s{sT}, s{sT}, 2")
                e(f"s_cmp_lt_u32 s{sT}, s{sNp}")
                e("s_waitcnt lgkmcnt(0)")
                e(f"s_cbranch_scc0 L_done{tag}")
                lab(f"L_req{tag}")
                e(f"s_mov_b32 s{sTk}, 0x1000000")
                e("s_waitcnt vmcnt(0)")
                if self.trace == 3:
                    e("s_memrealtime s[84:85]")
                    e("s_waitcnt lgkmcnt(0)")
                e(f"s_atomic_add s{sTk}, s[22:23], s{sCt} glc")
                if self.trace == 3:
                    e("s_waitcnt lgkmcnt(0)")
                    e("s_memrealtime s[86:87]")
                    e("s_waitcnt lgkmcnt(0)")
                    e("s_sub_u32 s86, s86, s84")
                    e("s_lshl_b32 s84, s84, 8")
                    e("s_and_b32 s84, s84, 0x7fffff00")
                    e("s_min_u32 s86, s86, 255")
                    e("s_or_b32 s86, s86, s84")
                    e(f"s_lshl_b64 exec, 1, s{sR}")
                    e(f"v_mov_b32 v121, s86")
                    e("s_mov_b64 exec, -1")
                e(f"s_branch L_noproc{tag}")
                lab(f"L_done{tag}")
                e(f"s_mov_b32 s{sFirst}, {BIG}")
                lab(f"L_noproc{tag}")
            if K and not self.sat:
                e(f"s_cmp_lt_u32 s{sR}, s{sFirstD}")
                e(f"s_cbranch_scc1 L_noproc{tag}")
                e(f"s_waitcnt vmcnt({D})")
                e(f"v_readfirstlane_b32 s{sX}, v{vTk+2*((r-D)%4)+1}")
                if self.tkx:
                    e(f"v_readfirstlane_b32 s{sT}, v{vTk+2*((r-D)%4)}")
                    e(f"s_cmp_lg_u32 s{sT}, s{sTag}")
                    e(f"s_cbranch_scc1 L_done{tag}")
                if self.trace:
                    e(f"s_lshl_b64 exec, 1, s{sR}")
                    e(f"v_mov_b32 v121, s{sX}")
                    e("s_mov_b64 exec, -1")
                e(f"s_lshl_b32 s{sT}, s{sX}, 1")
                e(f"s_cmp_ge_u32 s{sT}, s{sNp}")
                e(f"s_cbranch_scc1 L_done{tag}")
                e(f"s_lshl_b64 exec, 1, s{sX}")
                e(f"ds_write2_b32 v{vTail}, v{vPool}, v{vPool+1} offset0:0 offset1:1")
                e("s_mov_b64 exec, -1")
                e(f"v_add_u32 v{vTail}, 8, v{vTail}")
                e(f"s_add_u32 s{sT}, s{sT}, 2")
                e(f"s_cmp_lt_u32 s{sT}, s{sNp}")
                e(f"s_cbranch_scc1 L_noproc{tag}")
                lab(f"L_done{tag}")
                e(f"s_mov_b32 s{sFirst}, {BIG}")
                e(f"s_mov_b32 s{sFirstD}, {BIG}")
                lab(f"L_noproc{tag}")
            if not (K and self.sat):
                e("s_waitcnt lgkmcnt(0)")
            e(f"v_readfirstlane_b32 s{sX}, v{nxt}")
            e(f"s_add_u32 s{sR}, s{sR}, 1")
            if r == 3:
                e(f"v_add_u32 v{vList}, 32, v{vList}")
            e(f"s_mov_b32 s{sT2}, {so}")
            e(f"s_cmp_eq_u32 s{sX}, 0")

        round_(0, True, "f")
        e("s_branch L_r1")
        lab("L_r0")
        for r in range(4):
            if r == 1:
                lab("L_r1")
            round_(r, False, str(r))
            if r < 3:
                e("s_cbranch_scc1 L_fin")
            else:
                e("s_cbranch_scc0 L_r0")
        lab("L_fin")
        e(f"v_add_u32 v{vLV}, s{sT2}, v{vLV}")
        e(f"v_add_u32 v{vLV+1}, s{sT2}, v{vLV+1}")
        e(f"v_mov_b32 v{vT1}, v{vL}")
        e(f"s_mov_b32 s{sMk[0]}, 0xff00ff00")
        e(f"s_mov_b32 s{sMk[0]+1}, 0xff00ff00")
        e(f"v_permlane32_swap_b32 v{vL}, v{vT1}")
        e("s_nop 0")
        e(f"v_add_f32 v{vL}, v{vL}, v{vT1}")
        e(f"v_mov_b32 v{vT1}, v{vL}")
        e("s_nop 1")
        e(f"v_permlane16_swap_b32 v{vL}, v{vT1}")
        e("s_nop 0")
        e(f"v_add_f32 v{vL}, v{vL}, v{vT1}")
        e(f"v_max_f32 v{vL}, {hex(f2u(1e-30))}, v{vL}")
        e(f"v_rcp_f32 v{vA}, v{vL}")
        e(f"v_log_f32 v{vL}, v{vL}")
        e(f"v_mov_b32 v{vS+3}, s{sTag}")
        e(f"v_add_f32 v{vS+2}, v{vNm}, v{vL}")
        if self.stamps:
            e(f"v_mov_b32 v{self.vSt[6]}, s{sR}")
        e("s_barrier")
        self.stamp(2)
        pv_reads(0)
        e("s_waitcnt lgkmcnt(2)")
        pv_mfma(0)
        e("s_waitcnt lgkmcnt(0)")
        pv_mfma(1)
        e("s_nop 7")
        for k in range(4):
            e(f"v_cndmask_b32 v{vO+k}, v{vO+k}, v{vO+4+k}, s[{sMk[0]}:{sMk[0]+1}]")
        for k in range(4):
            e(f"v_mul_f32 v{vO+k}, v{vO+k}, v{vA}")
        e(f"v_cvt_pk_bf16_f32 v{vS}, v{vO}, v{vO+1}")
        e(f"v_cvt_pk_bf16_f32 v{vS+1}, v{vO+2}, v{vO+3}")
        e(f"buffer_store_dwordx4 v[{vS}:{vS+3}], v{vMA}, s[{SWS}:{SWS+3}], s{sMsg} offen {FL[self.msgf]}")
        self.stamp(3)
        if self.stamps:
            e("s_waitcnt vmcnt(0)")
            self.stamp(4)
        if self.trace:
            e(f"s_cmp_lg_u32 s{sW}, 0")
            e("s_cbranch_scc1 L_notr")
            e("s_lshl_b32 s88, s2, 9")
            e(f"s_add_u32 s88, s88, {STAMP_OFF + 0x10000 + 256}")
            e(f"buffer_store_dword v121, v122, s[{SWS}:{SWS+3}], s88 offen")
            lab("L_notr")
        self.flush_stamps()
        e("s_endpgm")

        nvg = 128 if self.stamps else (max(self.nv, 100) + 7) // 8 * 8
        out = HEADER
        out += f"; @launch grid=(256,1,1) block=(320,1,1) lds={lds}\n"
        out += '.amdgcn_target "amdgcn-amd-amdhsa--gfx950"\n.text\n'
        out += f".globl {NAME}_kernel\n.p2align 8\n.type {NAME}_kernel,@function\n{NAME}_kernel:\n"
        out += "\n".join(self.lines) + "\n"
        out += f""".section .rodata,"a"
.p2align 6
.amdhsa_kernel {NAME}_kernel
  .amdhsa_next_free_vgpr {nvg}
  .amdhsa_next_free_sgpr 96
  .amdhsa_accum_offset {nvg}
  .amdhsa_group_segment_fixed_size 0
  .amdhsa_kernarg_size 64
  .amdhsa_user_sgpr_count 2
  .amdhsa_user_sgpr_kernarg_segment_ptr 1
  .amdhsa_system_sgpr_workgroup_id_x 1
.end_amdhsa_kernel
"""
        return out


if __name__ == "__main__":
    path = sys.argv[1]
    kw = {}
    for a in sys.argv[2:]:
        k, v = a.split("=")
        kw[k] = int(v)
    open(path, "w").write(Gen(**kw).build())
```

```python
import sys, math, struct
from gen import NAME, HEADER, f2u, KVBYTES, CSCALE

EP_OFF = 0x100000
CT_OFF = 0x101000
STAMP_OFF = 0x400000
WS_REC = 0x800000
POLL_MAX = 200000
LIST = 65536
BIG = 0x7fffffff
FL = ['', 'sc1', 'sc0 sc1', 'sc1 nt', 'sc0 sc1 nt', 'nt', 'sc0', 'sc0 nt']


class Gen:
    def __init__(self, NF=20, D=1, J0=192, K=96, stamps=0, prio=3, nocompute=0, slp=1, dom=2, nopoll=0, probe=0, st2=0, msgf=1, pollf=1, outf=0,
                 NF0=32, NS=2, stag=7, NF2=0, FT=32, qw=3, eb=0, W0=64, trace=0, tkx=0, apoll=0, pd=0, sat=0, pa=88, pb=82, psh=0, pw=-1, kvf=5):
        self.kvf = kvf
        self.pa, self.pb, self.psh, self.pw = pa, pb, psh, pw
        self.NF, self.D, self.J0, self.K = NF, D, J0, K
        self.stamps, self.prio, self.nocompute, self.slp, self.dom, self.nopoll = stamps, prio, nocompute, slp, dom, nopoll
        self.probe = probe
        self.eb = eb
        self.sat = sat
        assert not sat or (tkx and D == 1)
        self.tkx, self.apoll, self.pd = tkx, apoll, pd
        self.trace = trace
        self.W0 = W0
        self.NF0, self.NS, self.stag, self.NF2, self.FT, self.qw = NF0, NS, stag, NF2, FT, qw
        self.st2, self.msgf, self.pollf, self.outf = st2, msgf, pollf, outf
        assert 16 <= NF <= 24 and 0 <= D <= 3
        assert K <= 128 and K % 2 == 0 and J0 % 32 == 0 and (dom * K) % 32 == 0 and J0 >= 128
        assert dom in (1, 2, 4)
        self.lines = []
        self.nv = 0

    def e(self, s):
        self.lines.append("    " + s)

    def lab(self, s):
        self.lines.append(s + ":")

    def valloc(self, n=1, align=1):
        self.nv = (self.nv + align - 1) // align * align
        r = self.nv
        self.nv += n
        return r

    def stamp(self, idx):
        if not self.stamps:
            return
        e = self.e
        e("s_memrealtime s[90:91]")
        e("s_waitcnt lgkmcnt(0)")
        e(f"v_mov_b32 v{self.vSt[idx]}, s90")

    def flush_stamps(self):
        if not self.stamps:
            return
        e = self.e
        e("s_mov_b64 exec, 1")
        e("s_lshl_b32 s90, s2, 3")
        e("s_add_u32 s90, s90, s3")
        e("s_lshl_b32 s90, s90, 5")
        e(f"s_add_u32 s90, s90, {STAMP_OFF}")
        e(f"v_mov_b32 v{self.vStT}, 0")
        for i in range(8):
            e(f"buffer_store_dword v{self.vSt[i]}, v{self.vStT}, s[44:47], s90 offen offset:{4*i}")
        e("s_mov_b64 exec, -1")

    def srd(self, d, p, size):
        e = self.e
        e(f"s_mov_b32 s{d}, s{p}")
        e(f"s_mov_b32 s{d+1}, s{p+1}")
        e(f"s_mov_b32 s{d+2}, {size}")
        e(f"s_mov_b32 s{d+3}, 0x00020000")

    def build(self):
        NF, D, J0, K, dom = self.NF, self.D, self.J0, self.K, self.dom
        e, lab, srd = self.e, self.lab, self.srd
        kk = (7 + NF) // 16
        ib = (7 + NF) % 16
        LA = kk + 2
        NF0, NS, NF2 = self.NF0, self.NS, self.NF2
        assert kk == 1 and 16 + ib <= NF0 <= 32 + ib
        NSPEC = (NF0 + 15) // 16
        assert J0 >= 64 * NSPEC
        QL = 49152
        NMIN2 = (2 * (D + LA) + 3) // 4 * 4
        assert NMIN2 >= 2 * (kk + 1)
        lds = LIST + 1280
        sKVH, sC, sT, sT2, sTag = 4, 5, 6, 7, 42
        SWS = 44
        if self.stamps:
            self.vSt = list(range(112, 120))
            self.vStT = 120

        e("s_cmp_ge_u32 s2, 256")
        e("s_cbranch_scc1 L_exit")
        if self.stamps:
            for i in range(8):
                e(f"v_mov_b32 v{self.vSt[i]}, 0")
            self.stamp(7)
        if self.probe:
            e("s_memrealtime s[82:83]")
        e("s_load_dwordx16 s[8:23], s[0:1], 0")
        e("v_lshrrev_b32 v1, 6, v0")
        e(f"s_lshr_b32 s{sT}, s2, 5")
        e(f"s_xor_b32 s{sT}, s{sT}, s2")
        e("v_readfirstlane_b32 s3, v1")
        e(f"s_and_b32 s{sKVH}, s{sT}, 7")
        e(f"s_lshr_b32 s{sC}, s2, 3")
        e("s_cmp_lg_u32 s3, 0")
        e("s_cbranch_scc1 L_consumer")

        vOffK, vOffV = 4, 8
        vL_, vD = 12, 16
        SKA, SKB, SVA, SVB, SO = 24, 28, 32, 36, 48
        sA, sB, sBuf, sFull = 52, 53, 54, 55
        sE = [56, 57, 58, 59, 60, 61]
        sP = [62, 63, 64, 65, 66, 67]
        if self.prio:
            e(f"s_setprio {self.prio}")
        e("v_lshrrev_b32 v1, 4, v0")
        e("v_and_b32 v2, 15, v0")
        e(f"s_lshl_b32 s{sT}, s{sKVH}, 8")
        e(f"v_lshlrev_b32 v3, 11, v1")
        e(f"v_add_u32 v3, s{sT}, v3")
        e(f"v_xor_b32 v{vOffK}, v1, v2")
        e(f"v_lshl_add_u32 v{vOffK}, v{vOffK}, 4, v3")
        e("v_lshlrev_b32 v1, 1, v1")
        e(f"v_xor_b32 v{vOffV}, v1, v2")
        e(f"v_lshl_add_u32 v{vOffV}, v{vOffV}, 4, v3")
        for i in range(1, 4):
            e(f"v_xor_b32 v{vOffK+i}, {64*i}, v{vOffK}")
            e(f"v_add_u32 v{vOffK+i}, {7168*i}, v{vOffK+i}")
        e(f"v_xor_b32 v{vOffV+1}, 128, v{vOffV}")
        e(f"v_add_u32 v{vOffV+2}, {7168*2}, v{vOffV}")
        e(f"v_add_u32 v{vOffV+3}, {7168*3}, v{vOffV+1}")
        e(f"v_add_u32 v{vOffV+1}, {7168}, v{vOffV+1}")
        for k in range(2 * NSPEC):
            e(f"s_add_u32 s{sP[k]}, s{sC}, {32*k}")
            e(f"s_lshl_b32 s{sP[k]}, s{sP[k]}, 15")
        e(f"s_mov_b32 s{sFull}, {KVBYTES}")
        for S in (SKA, SKB, SVA, SVB):
            e(f"s_mov_b32 s{S+2}, s{sFull}")
            e(f"s_mov_b32 s{S+3}, 0x00020000")
        e(f"s_add_u32 s{sT}, s{sT}, {EP_OFF}")
        if self.st2:
            self.stamp(2)
        e("s_waitcnt lgkmcnt(0)")
        if self.st2:
            self.stamp(3)
        e(f"s_mov_b64 s[{SKA}:{SKA+1}], s[10:11]")
        e(f"s_mov_b64 s[{SKB}:{SKB+1}], s[10:11]")
        if self.eb:
            e("s_barrier")

        def issue(p, sa, sb, m0const=None):
            grp, i = p // 4, p % 4
            if i == 0 or self.force_m0:
                if m0const is None:
                    e(f"s_add_u32 m0, s{sBuf}, {4096*grp}")
                else:
                    e(f"s_mov_b32 m0, {m0const + 4096*grp}")
                e("s_nop 0")
                self.force_m0 = False
            S = (SKA, SKB, SVA, SVB)[grp]
            so = (sa, sb)[grp & 1]
            vo = (vOffK if grp < 2 else vOffV) + i
            e(f"buffer_load_dwordx4 v{vo}, s[{S}:{S+3}], s{so} offen offset:{1024*i} {FL[self.kvf]} lds")
        self.force_m0 = False
        for p in range(NF0):
            r = p // 16
            if p == 8:
                if self.st2:
                    self.stamp(4)
                e(f"s_mov_b64 s[{SVA}:{SVA+1}], s[12:13]")
                e(f"s_mov_b64 s[{SVB}:{SVB+1}], s[12:13]")
            if p >= self.W0:
                e(f"s_waitcnt vmcnt({self.W0-1})")
            issue(p % 16, sP[2*r], sP[2*r+1], 16384 * r)
        self.stamp(0)
        e(f"s_load_dword s{sTag}, s[22:23], s{sT}")
        srd(SWS, 22, WS_REC)
        srd(SO, 18, 16384)
        e(f"v_mov_b32 v{vL_}, {LIST}")
        vPA, vOA = 13, 14
        sMB, sEP, sOO = 68, 69, 70
        e(f"s_mov_b32 s{sEP}, s{sT}")
        e(f"v_lshlrev_b32 v{vPA}, 4, v0")
        e(f"s_lshl_b32 s{sMB}, s{sKVH}, 5")
        e(f"s_add_u32 s{sMB}, s{sMB}, s{sC}")
        e(f"s_lshl_b32 s{sMB}, s{sMB}, 12")
        e("v_bfe_u32 v1, v0, 2, 1")
        e("v_and_b32 v2, 3, v0")
        e("v_lshlrev_b32 v1, 13, v1")
        e(f"v_lshl_add_u32 v{vOA}, v2, 8, v1")
        e("v_bfe_u32 v1, v0, 4, 1")
        e(f"v_lshl_add_u32 v{vOA}, v1, 2, v{vOA}")
        e("v_bfe_u32 v1, v0, 5, 1")
        e(f"v_lshl_add_u32 v{vOA}, v1, 1, v{vOA}")
        sXM = 40
        e(f"s_mov_b32 s{sXM}, 0x00ff00ff")
        e(f"s_mov_b32 s{sXM+1}, 0x00ff00ff")
        e(f"s_lshl_b32 s{sOO}, s{sKVH}, 10")
        e(f"s_lshl_b32 s{sT}, s{sC}, 3")
        e(f"s_add_u32 s{sOO}, s{sOO}, s{sT}")
        e("s_waitcnt lgkmcnt(0)")
        e(f"s_add_u32 s{sTag}, s{sTag}, 1")
        e(f"s_waitcnt vmcnt({NF0-8})")
        e("s_barrier")
        nrd = 6
        e(f"ds_read_b128 v[{vD}:{vD+3}], v{vL_}")
        e(f"ds_read_b64 v[{vD+4}:{vD+5}], v{vL_} offset:16")
        e(f"v_add_u32 v{vL_}, {4*nrd}, v{vL_}")
        e("s_waitcnt lgkmcnt(0)")
        for k in range(nrd):
            e(f"v_readfirstlane_b32 s{sE[k]}, v{vD+k}")
        for k in range(2 * NSPEC):
            d = sT if k == 0 else sT2
            e(f"s_xor_b32 s{d}, s{sE[k]}, s{sP[k]}")
            e(f"s_sub_u32 s{d}, s{d}, 1")
            if k:
                e(f"s_max_u32 s{sT}, s{sT}, s{sT2}")

        def setround(ea, eb):
            e(f"s_and_b32 s{sA}, s{ea}, 0xffff8000")
            e(f"s_and_b32 s{sB}, s{eb}, 0xffff8000")
            e(f"s_and_b32 s{sT2}, s{ea}, 0x3ff")
            e(f"s_cselect_b32 s{SKA+2}, s{sFull}, 0")
            e(f"s_cselect_b32 s{SVA+2}, s{sFull}, 0")
            e(f"s_and_b32 s{sT2}, s{eb}, 0x3ff")
            e(f"s_cselect_b32 s{SKB+2}, s{sFull}, 0")
            e(f"s_cselect_b32 s{SVB+2}, s{sFull}, 0")
        e(f"s_cmp_lt_u32 s{sT}, 0x3ff")
        e("s_cbranch_scc1 L_spec_ok")
        e("s_waitcnt vmcnt(0)")
        for p in range(NF0):
            r = p // 16
            if p % 16 == 0:
                setround(sE[2*r], sE[2*r+1])
            issue(p % 16, sA, sB, 16384 * r)
        e(f"s_waitcnt vmcnt({NF0-8})")
        e("s_barrier")
        lab("L_spec_ok")
        self.stamp(1)
        if self.trace:
            e("v_mov_b32 v121, 0")
            e("s_mov_b32 s81, 1")
        if self.probe:
            e("s_memrealtime s[84:85]")
        p0 = NF0
        while p0 < 32:
            if p0 == NF0:
                setround(sE[2], sE[3])
                self.force_m0 = True
            e(f"s_waitcnt vmcnt({NF-1})")
            issue(p0 % 16, sA, sB, 16384)
            p0 += 1
        setround(sE[4], sE[5])
        e(f"s_mov_b32 s{sBuf}, {16384*2}")
        pe = p0 % 16
        assert pe <= ib
        if pe % 4:
            e(f"s_add_u32 m0, s{sBuf}, {4096*(pe//4)}")
        if pe:
            e("s_branch L_enter")
        lab("L_round")
        for p in range(16):
            if p == pe and pe:
                lab("L_enter")
            e(f"s_waitcnt vmcnt({NF-1})")
            if p == ib:
                if self.trace == 2:
                    e("s_memrealtime s[88:89]")
                e("s_barrier")
                if self.trace in (1, 3):
                    e("s_memrealtime s[88:89]")
                e(f"ds_read_b64 v[{vD}:{vD+1}], v{vL_}")
                e(f"v_add_u32 v{vL_}, 8, v{vL_}")
            issue(p, sA, sB)
        lab("L_next")
        e(f"s_add_u32 s{sBuf}, s{sBuf}, 16384")
        e(f"s_and_b32 s{sBuf}, s{sBuf}, 0xffff")
        e("s_waitcnt lgkmcnt(0)")
        if self.trace:
            e("s_lshl_b64 exec, 1, s81")
            e("v_mov_b32 v121, s88")
            e("s_mov_b64 exec, -1")
            e("s_add_u32 s81, s81, 1")
        e(f"v_readfirstlane_b32 s{sE[0]}, v{vD}")
        e(f"v_readfirstlane_b32 s{sE[1]}, v{vD+1}")
        setround(sE[0], sE[1])
        if NF2:
            e(f"s_bitcmp1_b32 s{sE[0]}, 11")
            e("s_cbranch_scc1 L_fast")
        e(f"s_cmp_lg_u32 s{sE[0]}, 0")
        e("s_cbranch_scc1 L_round")
        if NF2:
            e("s_branch L_drain")
            lab("L_fast")
            for p in range(16):
                if NF2 < 40:
                    e(f"s_waitcnt vmcnt({NF2-1})")
                issue(p, sA, sB)
            e("s_waitcnt vmcnt(24)")
            e("s_barrier")
            e(f"ds_read_b64 v[{vD}:{vD+1}], v{vL_}")
            e(f"v_add_u32 v{vL_}, 8, v{vL_}")
            e("s_branch L_next")
            lab("L_drain")
        if not self.st2:
            self.stamp(2)
        for k in range(kk - 1, -1, -1):
            e(f"s_waitcnt vmcnt({8+16*k})")
            e("s_barrier")
        e("s_waitcnt vmcnt(0)")
        e("s_barrier")
        if not self.st2:
            self.stamp(3)
        if self.trace:
            e("v_lshlrev_b32 v122, 2, v0")
            e("s_lshl_b32 s88, s2, 9")
            e(f"s_add_u32 s88, s88, {STAMP_OFF + 0x10000}")
            e(f"buffer_store_dword v121, v122, s[{SWS}:{SWS+3}], s88 offen")
            e("s_waitcnt vmcnt(0)")
        if self.probe:
            e("s_memrealtime s[86:87]")
        RS = [24 + 16 * k for k in range(NS)]
        sM = [[52 + 8 * k + 2 * i for i in range(4)] for k in range(2)] + [[72, 74, 76, 78]]
        sN = 80
        if self.nopoll:
            self.flush_stamps()
            e("s_endpgm")

        ap = self.apoll

        def poll(k, masked):
            for i in range(4):
                if masked:
                    e(f"s_mov_b64 exec, s[{sM[k][i]}:{sM[k][i]+1}]")
                r = RS[k] + 4 * i
                if ap == 2 or (ap and masked):
                    for q in range(4):
                        e(f"v_mov_b32 v{r+q}, 0")
                    e(f"buffer_atomic_add_x2 v[{r+2}:{r+3}], v{vPA}, s[{SWS}:{SWS+3}], s{sMB} offen offset:{1024*i+8} sc0 sc1")
                    e(f"buffer_atomic_add_x2 v[{r}:{r+1}], v{vPA}, s[{SWS}:{SWS+3}], s{sMB} offen offset:{1024*i} sc0 sc1")
                else:
                    e(f"buffer_load_dwordx4 v[{r}:{r+3}], v{vPA}, s[{SWS}:{SWS+3}], s{sMB} offen offset:{1024*i} {FL[self.pollf]}")
            if masked:
                e("s_mov_b64 exec, -1")
        e(f"s_mov_b32 s{sN}, {POLL_MAX}")
        if self.pd:
            e(f"s_sleep {self.pd}")
        assert not ap or NS == 1
        for k in range(NS):
            if k:
                e(f"s_sleep {self.stag}")
            poll(k, False)
        lab("L_poll")
        for k in range(NS):
            e(f"s_waitcnt vmcnt({4*(NS-1)})")
            for i in range(4):
                e(f"v_cmp_ne_u32 s[{sM[k][i]}:{sM[k][i]+1}], s{sTag}, v{RS[k]+4*i+3}")
            e(f"s_or_b64 vcc, s[{sM[k][0]}:{sM[k][0]+1}], s[{sM[k][1]}:{sM[k][1]+1}]")
            e(f"s_or_b64 vcc, vcc, s[{sM[k][2]}:{sM[k][2]+1}]")
            e(f"s_or_b64 vcc, vcc, s[{sM[k][3]}:{sM[k][3]+1}]")
            e(f"s_cbranch_scc0 L_ready{k}")
            if self.slp:
                e(f"s_sleep {self.slp}")
            poll(k, True)
        e(f"s_sub_u32 s{sN}, s{sN}, 1")
        e(f"s_cmp_lg_u32 s{sN}, 0")
        e("s_cbranch_scc1 L_poll")
        mx, tm, den, t5 = 72, 73, 74, 76
        U, acc = 80, 96
        for k in range(NS):
            R = RS[k]
            lab(f"L_ready{k}")
            if self.probe == 20:
                e("s_memrealtime s[90:91]")
            if not self.st2:
                self.stamp(4)

            def unp(j):
                src = R + 4 * (j // 4) + (j // 2) % 2
                if j % 2:
                    e(f"v_and_b32 v{U+j}, 0xffff0000, v{src}")
                else:
                    e(f"v_lshlrev_b32 v{U+j}, 16, v{src}")
            e(f"v_max3_f32 v{mx}, v{R+2}, v{R+6}, v{R+10}")
            e(f"v_max_f32 v{mx}, v{mx}, v{R+14}")
            unp(0); unp(1)
            e(f"v_max_f32_dpp v{mx}, v{mx}, v{mx} row_ror:8 row_mask:0xf bank_mask:0xf")
            e(f"v_mov_b32 v{tm}, v{mx}")
            unp(2); unp(3)
            e(f"v_permlane16_swap_b32 v{mx}, v{tm}")
            unp(4)
            e(f"v_max_f32 v{mx}, v{mx}, v{tm}")
            e(f"v_mov_b32 v{tm}, v{mx}")
            unp(5); unp(6)
            e(f"v_permlane32_swap_b32 v{mx}, v{tm}")
            unp(7)
            e(f"v_max_f32 v{mx}, v{mx}, v{tm}")
            for i in range(4):
                e(f"v_sub_f32 v{R+4*i+2}, v{R+4*i+2}, v{mx}")
            for i in range(4):
                e(f"v_exp_f32 v{R+4*i+2}, v{R+4*i+2}")
                unp(8 + 2 * i); unp(9 + 2 * i)

            def pk(i, h):
                w = R + 4 * i + 2
                a = acc + 2 * h
                if i == 0:
                    e(f"v_pk_mul_f32 v[{a}:{a+1}], v[{U+2*h}:{U+2*h+1}], v[{w}:{w+1}] op_sel_hi:[1,0]")
                else:
                    e(f"v_pk_fma_f32 v[{a}:{a+1}], v[{U+4*i+2*h}:{U+4*i+2*h+1}], v[{w}:{w+1}], v[{a}:{a+1}] op_sel_hi:[1,0,1]")
            e(f"v_add_f32 v{den}, v{R+2}, v{R+6}")
            e(f"v_add_f32 v{tm}, v{R+10}, v{R+14}")
            pk(0, 0)
            e(f"v_add_f32 v{den}, v{den}, v{tm}")
            pk(0, 1); pk(1, 0)
            e(f"v_add_f32_dpp v{den}, v{den}, v{den} row_ror:8 row_mask:0xf bank_mask:0xf")
            e(f"v_mov_b32 v{tm}, v{den}")
            pk(1, 1); pk(2, 0)
            e(f"v_permlane16_swap_b32 v{den}, v{tm}")
            pk(2, 1)
            e(f"v_add_f32 v{den}, v{den}, v{tm}")
            e(f"v_mov_b32 v{tm}, v{den}")
            pk(3, 0); pk(3, 1)
            e(f"v_permlane32_swap_b32 v{den}, v{tm}")
            e(f"v_permlane32_swap_b32 v{acc}, v{acc+1}")
            e(f"v_permlane32_swap_b32 v{acc+2}, v{acc+3}")
            e(f"v_add_f32 v{den}, v{den}, v{tm}")
            e(f"v_add_f32 v{acc}, v{acc}, v{acc+1}")
            e(f"v_add_f32 v{acc+2}, v{acc+2}, v{acc+3}")
            e(f"v_rcp_f32 v{den}, v{den}")
            e("s_nop 0")
            e(f"v_permlane16_swap_b32 v{acc}, v{acc+2}")
            e(f"v_mov_b32 v{t5+2}, s{sTag}")
            e(f"v_add_f32 v{acc}, v{acc}, v{acc+2}")
            e(f"v_mov_b32 v{t5+3}, 0")
            e("s_nop 0")
            e(f"v_add_f32_dpp v{acc}, v{acc}, v{acc} row_ror:8 row_mask:0xf bank_mask:0xf")
            e(f"v_mul_f32 v{acc}, v{acc}, v{den}")
            if k < NS - 1:
                e("s_branch L_out")
        lab("L_out")
        e(f"v_cvt_pk_bf16_f32 v{t5}, v{acc}, v{acc}")
        e(f"s_mov_b64 exec, s[{sXM}:{sXM+1}]")
        e(f"buffer_store_short v{t5}, v{vOA}, s[{SO}:{SO+3}], s{sOO} offen {FL[self.outf]}")
        e(f"s_cmp_lg_u32 s{sC}, 0")
        e("s_cbranch_scc1 L_noep")
        e("s_mov_b64 exec, 1")
        e(f"buffer_store_dword v{t5+2}, v{t5+3}, s[{SWS}:{SWS+3}], s{sEP} offen")
        lab("L_noep")
        if self.probe == 20:
            e("s_mov_b64 exec, -1")
            e("s_waitcnt vmcnt(0)")
            e("s_memrealtime s[88:89]")
            e("s_waitcnt lgkmcnt(0)")
            e(f"s_sub_u32 s93, s{self.pa}, s{self.pb}")
            e(f"s_lshl_b32 s93, s93, {self.psh}")
            e("s_min_u32 s93, s93, 20000")
            if self.pw >= 0:
                e(f"s_cmp_eq_u32 s2, {self.pw}")
                e("s_cselect_b32 s93, s93, 0")
            lab("L_spin")
            e("s_memrealtime s[94:95]")
            e("s_waitcnt lgkmcnt(0)")
            e("s_sub_u32 s94, s94, s88")
            e("s_cmp_lt_u32 s94, s93")
            e("s_cbranch_scc1 L_spin")
        elif self.probe:
            e("s_mov_b64 exec, -1")
            e("s_waitcnt vmcnt(0)")
            e("s_memrealtime s[88:89]")
            srd(48, 20, 256)
            e("v_mov_b32 v1, 0")
            e("buffer_load_dword v2, v1, s[48:51], 0 offen sc0 sc1")
            e("s_waitcnt vmcnt(0) lgkmcnt(0)")
            e("v_readfirstlane_b32 s92, v2")
            e("s_not_b32 s92, s92")
            a, b, sh = {1: (88, 92, 0), 2: (84, 92, 2), 3: (88, 86, 2), 5: (82, 92, 3), 6: (88, 88, 0), 7: (84, 82, 2)}[self.probe]
            e(f"s_sub_u32 s93, s{a}, s{b}")
            e(f"s_lshl_b32 s93, s93, {sh}")
            e("s_min_u32 s93, s93, 20000")
            lab("L_spin")
            e("s_memrealtime s[94:95]")
            e("s_waitcnt lgkmcnt(0)")
            e("s_sub_u32 s94, s94, s88")
            e("s_cmp_lt_u32 s94, s93")
            e("s_cbranch_scc1 L_spin")
        if self.stamps:
            e("s_mov_b64 exec, -1")
            self.stamp(5)
            e("s_waitcnt vmcnt(0)")
            self.stamp(6)
        self.flush_stamps()
        lab("L_exit")
        e("s_endpgm")

        lab("L_consumer")
        self.nv = 1
        vLane = self.valloc()
        vT0 = self.valloc(); vT1 = self.valloc(); vT2 = self.valloc(); vT3 = self.valloc()
        vM = self.valloc(); vL = self.valloc(); vNm = self.valloc()
        vShift = self.valloc(); v4g = self.valloc(); vNeg = self.valloc()
        vA = self.valloc(); vList = self.valloc(); vTail = self.valloc(); vZero = self.valloc()
        vPool = self.valloc(2, 2)
        vE = [self.valloc(2, 2), self.valloc(2, 2)]
        vTk = self.valloc(8, 2)
        vCS = vTk + 4
        vLK = self.valloc(4); vLV = self.valloc(2)
        vS = self.valloc(8, 4)
        vP = self.valloc(4, 4)
        vQ = self.valloc(16, 4)
        vKf = self.valloc(32, 4)
        vVf = self.valloc(8, 4)
        vO = self.valloc(8, 4)
        assert self.nv <= 112
        SQ, SB = 24, 28
        sCtx0, sCtx1 = 40, 41
        sW, sCs, sR, sFirst, sFirstD, sNp, sCt, sX = 52, 53, 54, 55, 56, 57, 58, 59
        sMk = [60, 62, 64, 66, 68, 70, 72, 74]
        sZ = 76
        sMsg = 78
        sK8 = 79
        sSp = [32, 33, 34, 35, 36, 37]
        sTg24, sTk = 80, 81

        e(f"v_and_b32 v{vLane}, 63, v0")
        e(f"s_sub_u32 s{sW}, s3, 1")
        e(f"v_lshrrev_b32 v{vT0}, 4, v{vLane}")
        e(f"v_and_b32 v{vT1}, 15, v{vLane}")
        e(f"s_lshl_b32 s{sT}, s{sC}, 2")
        e(f"v_lshlrev_b32 v{vA}, 7, v{vLane}")
        e(f"v_add_u32 v{vA}, s{sT}, v{vA}")
        e(f"s_and_b32 s{sT2}, s{sC}, {dom-1}")
        e(f"s_lshl_b32 s{sT}, s{sT2}, 2")
        e(f"s_add_u32 s{sT}, s{sT}, {4*J0}")
        e(f"v_mul_u32_u24 v{vTail}, {8*dom}, v{vLane}")
        e(f"v_add_u32 v{vTail}, s{sT}, v{vTail}")
        e(f"s_mul_i32 s{sCt}, s{sKVH}, {dom}")
        e(f"s_add_u32 s{sCt}, s{sCt}, s{sT2}")
        e(f"s_lshl_b32 s{sCt}, s{sCt}, 8")
        e(f"s_add_u32 s{sCt}, s{sCt}, {CT_OFF}")
        e(f"v_bfe_u32 v{vT2}, v{vLane}, 2, 1")
        e(f"v_mul_u32_u24 v{vShift}, 5, v{vT2}")
        e(f"v_lshlrev_b32 v{vT2}, 1, v{vT0}")
        e(f"v_xor_b32 v{vT2}, v{vT2}, v{vT1}")
        e(f"v_lshlrev_b32 v{vT2}, 4, v{vT2}")
        e(f"v_lshl_add_u32 v{vT2}, v{vT0}, 8, v{vT2}")
        e(f"s_lshl_b32 s{sT}, s{sKVH}, 10")
        e(f"v_add_u32 v{vNm}, s{sT}, v{vT2}")
        e(f"v_xor_b32 v{vM}, 128, v{vNm}")
        e(f"s_mov_b32 m0, {QL}")
        e(f"s_mov_b32 s{sK8}, 8192")
        e(f"s_lshl_b32 s{sT}, s{sKVH}, 8")
        e(f"s_add_u32 s{sT}, s{sT}, {EP_OFF}")
        e(f"v_mov_b32 v{vZero}, 0")
        e("s_waitcnt lgkmcnt(0)")
        e(f"s_load_dwordx2 s[{sCtx0}:{sCtx1}], s[16:17], 0")
        e(f"s_load_dword s{sTag}, s[22:23], s{sT}")
        srd(SB, 14, 16384)
        srd(SQ, 8, 16384)
        srd(SWS, 22, WS_REC)
        tb = vKf
        e(f"s_cmp_lg_u32 s{sW}, 0")
        e("s_cbranch_scc1 L_notab")
        e(f"buffer_load_dword v{tb}, v{vA}, s[{SB}:{SB+3}], 0 offen")
        e(f"buffer_load_dword v{tb+1}, v{vA}, s[{SB}:{SB+3}], s{sK8} offen")
        if K:
            e(f"buffer_load_dword v{tb+2}, v{vTail}, s[{SB}:{SB+3}], 0 offen")
            e(f"buffer_load_dword v{tb+3}, v{vTail}, s[{SB}:{SB+3}], 0 offen offset:{4*dom}")
            e(f"buffer_load_dword v{tb+4}, v{vTail}, s[{SB}:{SB+3}], s{sK8} offen")
            e(f"buffer_load_dword v{tb+5}, v{vTail}, s[{SB}:{SB+3}], s{sK8} offen offset:{4*dom}")
        lab("L_notab")
        e(f"s_cmp_lg_u32 s{sW}, {self.qw}")
        e("s_cbranch_scc1 L_noq")
        e(f"s_mov_b32 s{sT}, {8192-1024}")
        e(f"buffer_load_dwordx4 v{vNm}, s[{SQ}:{SQ+3}], 0 offen lds")
        e(f"buffer_load_dwordx4 v{vM}, s[{SQ}:{SQ+3}], s{sT} offen offset:1024 lds")
        lab("L_noq")
        if self.eb:
            e("s_barrier")
        vQA = vS + 4
        e(f"v_and_b32 v{vT3}, 7, v{vT1}")
        e(f"v_lshlrev_b32 v{vT2}, 1, v{vT3}")
        e(f"v_xor_b32 v{vT2}, v{vT2}, v{vT0}")
        e(f"v_lshlrev_b32 v{vT2}, 4, v{vT2}")
        e(f"v_lshl_add_u32 v{vQA}, v{vT3}, 8, v{vT2}")
        for c in range(1, 4):
            e(f"v_xor_b32 v{vQA+c}, {64*c}, v{vQA}")
        for k in range(2 * NSPEC):
            e(f"s_add_u32 s{sSp[k]}, s{sC}, {32*k}")
            e(f"s_lshl_b32 s{sSp[k]}, s{sSp[k]}, 15")
        e(f"v_xor_b32 v{vT2}, v{vT0}, v{vT1}")
        e(f"v_lshlrev_b32 v{vT2}, 4, v{vT2}")
        e(f"v_lshl_add_u32 v{vLK}, v{vT1}, 8, v{vT2}")
        for c in range(1, 4):
            e(f"v_xor_b32 v{vLK+c}, {64*c}, v{vLK}")
        e(f"v_lshlrev_b32 v{v4g}, 2, v{vT0}")
        e(f"v_lshrrev_b32 v{vT2}, 2, v{vLane}")
        e(f"v_and_b32 v{vT3}, 3, v{vLane}")
        e(f"v_lshlrev_b32 v{vT3}, 3, v{vT3}")
        e(f"v_lshl_add_u32 v{vT3}, v{vT2}, 8, v{vT3}")
        e(f"v_and_b32 v{vT2}, 7, v{vT2}")
        e(f"s_lshl_b32 s{sT}, s{sW}, 1")
        e(f"v_xor_b32 v{vT2}, s{sT}, v{vT2}")
        e(f"v_lshl_add_u32 v{vLV}, v{vT2}, 5, v{vT3}")
        e(f"v_xor_b32 v{vLV+1}, 32, v{vLV}")
        e(f"v_mov_b32 v{vNeg}, {hex(f2u(-2e30))}")
        e(f"v_mov_b32 v{vM}, {hex(f2u(-1e30))}")
        e(f"s_mov_b32 s{sCs}, {hex(f2u(CSCALE))}")
        e(f"v_mov_b32 v{vL}, 0")
        for k in range(8):
            e(f"v_mov_b32 v{vO+k}, 0")
        e(f"v_mov_b32 v{vList}, {LIST}")
        e(f"s_mov_b32 s{sR}, 0")
        if self.trace:
            e("v_mov_b32 v121, -1")
            e(f"v_lshlrev_b32 v122, 2, v{vLane}")
        e(f"s_mov_b32 s{sFirst}, {BIG}")
        e(f"s_mov_b32 s{sFirstD}, {BIG}")
        vMA = vLane
        e(f"s_lshl_b32 s{sMsg}, s{sKVH}, 17")
        e(f"s_lshl_b32 s{sT}, s{sC}, 7")
        e(f"s_add_u32 s{sMsg}, s{sMsg}, s{sT}")
        e(f"s_lshl_b32 s{sT}, s{sW}, 15")
        e(f"s_add_u32 s{sMsg}, s{sMsg}, s{sT}")
        e("s_waitcnt lgkmcnt(0)")
        e(f"s_add_u32 s{sTag}, s{sTag}, 1")
        e(f"s_cmp_gt_i32 s{sCtx0}, 0")
        e(f"s_cselect_b32 s{sZ}, 0, 0x0f0f0f0f")
        e(f"s_cselect_b32 s{sCtx0}, s{sCtx0}, 32768")
        e(f"s_cmp_gt_i32 s{sCtx1}, 0")
        e(f"s_cselect_b32 s{sZ+1}, 0, 0xf0f0f0f0")
        e(f"s_cselect_b32 s{sCtx1}, s{sCtx1}, 32768")
        e(f"s_or_b32 s{sZ}, s{sZ}, s{sZ+1}")
        e(f"s_mov_b32 s{sZ+1}, s{sZ}")
        e(f"s_min_i32 s{sCtx0}, s{sCtx0}, 32768")
        e(f"s_min_i32 s{sCtx1}, s{sCtx1}, 32768")
        e(f"s_cmp_lg_u32 s{sW}, 0")
        e("s_cbranch_scc1 L_nobuild")
        f0 = vS
        l0, l1, dp, ds_, px = vVf, vVf + 1, vVf + 2, vVf + 3, vVf + 4
        if K and not self.tkx:
            e("s_mov_b64 exec, 1")
            e(f"buffer_load_dwordx2 v[{vCS+2}:{vCS+3}], v{vZero}, s[{SWS}:{SWS+3}], s{sCt} offen sc1")
            e("s_mov_b64 exec, -1")
        if K and self.tkx:
            if self.sat:
                e(f"s_and_b32 s{sTg24}, s{sTag}, 0xffffff")
                e(f"v_mov_b32 v{vCS}, s{sTg24}")
            else:
                e(f"v_mov_b32 v{vCS}, s{sTag}")
                e(f"v_mov_b32 v{vCS+1}, 0")
            e(f"s_cmp_lt_u32 s{sC}, {dom}")
            e(f"s_cselect_b32 s{SWS+2}, s{SWS+2}, 0")
            e("s_mov_b64 exec, 1")
            if self.sat:
                e(f"buffer_atomic_swap v{vCS}, v{vZero}, s[{SWS}:{SWS+3}], s{sCt} offen sc0 sc1")
            else:
                e(f"buffer_atomic_swap_x2 v[{vCS}:{vCS+1}], v{vZero}, s[{SWS}:{SWS+3}], s{sCt} offen sc1")
            e("s_mov_b64 exec, -1")
            e(f"s_mov_b32 s{SWS+2}, {WS_REC}")
        e(f"v_cmp_gt_u32 vcc, {NMIN2//4}, v{vLane}")
        e(f"v_mov_b32 v{f0+1}, 0x400")
        e(f"v_lshlrev_b32 v{vT2}, 4, v{vLane}")
        e(f"v_cndmask_b32 v{f0}, 0, v{f0+1}, vcc")
        e(f"v_lshlrev_b32 v{vT3}, 2, v{vLane}")
        e(f"v_add_u32 v{vT2}, v{vList}, v{vT2}")
        e(f"v_add_u32 v{vT3}, v{vList}, v{vT3}")
        for k in range(1, 4):
            e(f"v_mov_b32 v{f0+k}, v{f0}")
        e(f"ds_write_b128 v{vT2}, v[{f0}:{f0+3}]")
        e(f"ds_write_b32 v{vT3}, v{vZero} offset:1024")
        e(f"v_lshlrev_b32 v{vT2}, 2, v{vA}")
        e(f"v_sub_u32 v{l0}, s{sCtx0}, v{vT2}")
        e(f"v_sub_u32 v{l1}, s{sCtx1}, v{vT2}")
        e(f"v_med3_i32 v{l0}, v{l0}, 0, 16")
        e(f"v_med3_i32 v{l1}, v{l1}, 0, 16")
        e(f"v_cmp_lt_u32 s[{sMk[0]}:{sMk[0]+1}], 0, v{l0}")
        e(f"v_cmp_lt_u32 s[{sMk[1]}:{sMk[1]+1}], 0, v{l1}")
        e(f"v_lshlrev_b32 v{l1}, 5, v{l1}")
        pm = 0
        for i in range(J0 // 32, (J0 + dom * K) // 32):
            pm |= 1 << i
        pm = ~pm & ((1 << 64) - 1)
        e(f"s_mov_b32 s{sMk[2]}, {hex(pm & 0xffffffff)}")
        e(f"s_mov_b32 s{sMk[2]+1}, {hex(pm >> 32)}")
        e(f"s_and_b64 s[{sMk[2]}:{sMk[2]+1}], s[{sMk[2]}:{sMk[2]+1}], s[{sMk[0]}:{sMk[0]+1}]")
        e(f"s_bcnt1_i32_b64 s{sT}, s[{sMk[2]}:{sMk[2]+1}]")
        e(f"v_mbcnt_lo_u32_b32 v{vT2}, s{sMk[2]}, 0")
        e(f"v_mbcnt_hi_u32_b32 v{vT2}, s{sMk[2]+1}, v{vT2}")
        e(f"v_lshl_add_u32 v{vT2}, v{vT2}, 2, v{vList}")
        nq = 2 if self.qw == 0 else 0
        e(f"s_waitcnt vmcnt({(5 if K else 0) + nq})")
        e(f"v_cmp_eq_u32 vcc, v{tb}, v{tb+1}")
        e(f"v_lshl_or_b32 v{dp}, v{tb}, 15, v{l0}")
        e(f"v_lshl_or_b32 v{ds_}, v{tb+1}, 15, v{l1}")
        e(f"s_and_b64 vcc, vcc, s[{sMk[0]}:{sMk[0]+1}]")
        e(f"s_andn2_b64 s[{sMk[3]}:{sMk[3]+1}], s[{sMk[1]}:{sMk[1]+1}], vcc")
        e(f"v_cndmask_b32 v{px}, 0, v{l1}, vcc")
        e(f"v_mov_b32 v{vT3}, s{sT}")
        e(f"v_or_b32 v{dp}, v{dp}, v{px}")
        e(f"v_mbcnt_lo_u32_b32 v{vT3}, s{sMk[3]}, v{vT3}")
        e(f"v_mbcnt_hi_u32_b32 v{vT3}, s{sMk[3]+1}, v{vT3}")
        e(f"v_lshl_add_u32 v{vT3}, v{vT3}, 2, v{vList}")
        e(f"s_mov_b64 exec, s[{sMk[2]}:{sMk[2]+1}]")
        e(f"ds_write_b32 v{vT2}, v{dp}")
        e(f"s_mov_b64 exec, s[{sMk[3]}:{sMk[3]+1}]")
        e(f"ds_write_b32 v{vT3}, v{ds_}")
        e("s_mov_b64 exec, -1")
        e(f"s_bcnt1_i32_b64 s{sT2}, s[{sMk[3]}:{sMk[3]+1}]")
        e(f"s_add_u32 s{sX}, s{sT}, s{sT2}")
        e(f"s_max_u32 s{sX}, s{sX}, {NMIN2}")
        if K:
            e(f"v_lshlrev_b32 v{vT2}, 2, v{vTail}")
            e(f"v_cmp_gt_u32 s[{sMk[2]}:{sMk[2]+1}], {K//2}, v{vLane}")
            e(f"s_mov_b32 s{sNp}, 0")
            e(f"s_waitcnt vmcnt({1 + nq})")
            for h in range(2):
                e(f"v_sub_u32 v{l0}, s{sCtx0}, v{vT2}")
                e(f"v_sub_u32 v{l1}, s{sCtx1}, v{vT2}")
                e(f"v_med3_i32 v{l0}, v{l0}, 0, 16")
                e(f"v_med3_i32 v{l1}, v{l1}, 0, 16")
                e(f"v_cmp_lt_u32 s[{sMk[0]}:{sMk[0]+1}], 0, v{l0}")
                e(f"v_cmp_eq_u32 vcc, v{tb+2+h}, v{tb+4+h}")
                e(f"v_lshl_or_b32 v{dp}, v{tb+2+h}, 15, v{l0}")
                e(f"s_and_b64 s[{sMk[0]}:{sMk[0]+1}], s[{sMk[0]}:{sMk[0]+1}], s[{sMk[2]}:{sMk[2]+1}]")
                e(f"v_cndmask_b32 v{l1}, 0, v{l1}, vcc")
                e(f"s_bcnt1_i32_b64 s{sT}, s[{sMk[0]}:{sMk[0]+1}]")
                e(f"v_lshl_or_b32 v{dp}, v{l1}, 5, v{dp}")
                e(f"s_add_u32 s{sNp}, s{sNp}, s{sT}")
                e(f"v_cndmask_b32 v{vPool+h}, 0, v{dp}, s[{sMk[0]}:{sMk[0]+1}]")
                if h == 0:
                    e(f"v_add_u32 v{vT2}, {16*dom}, v{vT2}")
            if NF2:
                e(f"s_sub_i32 s{sT}, s{sNp}, {self.FT}")
                e(f"v_lshlrev_b32 v{l0}, 1, v{vLane}")
                e(f"v_cmp_le_i32 vcc, s{sT}, v{l0}")
                e(f"v_mov_b32 v{l1}, 0x800")
                e(f"v_cmp_ne_u32 s[{sMk[0]}:{sMk[0]+1}], 0, v{vPool+1}")
                e(f"v_cndmask_b32 v{l1}, 0, v{l1}, vcc")
                e(f"v_or_b32 v{vPool}, v{vPool}, v{l1}")
                e(f"v_cndmask_b32 v{l1}, 0, v{l1}, s[{sMk[0]}:{sMk[0]+1}]")
                e(f"v_or_b32 v{vPool+1}, v{vPool+1}, v{l1}")
            e(f"s_lshl_b32 s{sT}, s{sX}, 2")
            e(f"v_add_u32 v{vTail}, s{sT}, v{vList}")
            e(f"s_lshr_b32 s{sT}, s{sX}, 1")
            e(f"s_sub_u32 s{sT}, s{sT}, {D+LA}")
            e(f"s_add_u32 s{sT2}, s{sT}, {D}")
            e(f"s_cmp_lg_u32 s{sNp}, 0")
            e(f"s_cselect_b32 s{sFirst}, s{sT}, s{sFirst}")
            e(f"s_cselect_b32 s{sFirstD}, s{sT2}, s{sFirstD}")
            if not self.tkx:
                e(f"v_mov_b32 v{vCS}, 0")
                e(f"v_mov_b32 v{vCS+1}, s{sTag}")
        if nq:
            e(f"s_waitcnt vmcnt({1 if K else 0})")
        e("s_branch L_built")
        lab("L_nobuild")
        e("s_waitcnt vmcnt(0)")
        lab("L_built")
        e(f"v_lshrrev_b32 v{vT2}, 3, v{vT1}")
        e(f"v_lshl_add_u32 v{vT2}, v{vT2}, 2, v{vT0}")
        e(f"v_and_b32 v{vT3}, 7, v{vT1}")
        e(f"v_lshlrev_b32 v{vT3}, 4, v{vT3}")
        e(f"v_lshl_add_u32 v{vMA}, v{vT2}, 12, v{vT3}")
        e(f"v_mul_f32 v{vNm}, s{sCs}, v{vM}")
        if self.probe and self.probe != 20:
            e(f"s_cmp_lg_u32 s{sW}, 3")
            e("s_cbranch_scc1 L_nopost")
            srd(48, 20, 256)
            e("s_not_b32 s82, s82")
            e(f"v_mov_b32 v{vT3}, s82")
            e("s_mov_b64 exec, 1")
            e(f"buffer_atomic_umax v{vT3}, v{vZero}, s[48:51], 0 offen sc1")
            e("s_mov_b64 exec, -1")
            lab("L_nopost")
        e("s_waitcnt lgkmcnt(0)")
        self.stamp(0)

        def pv_reads(buf, extra=0):
            o = buf * 16384 + 8192
            for jj in range(2):
                e(f"ds_read_b64_tr_b16 v[{vVf+4*jj}:{vVf+4*jj+1}], v{vLV+jj} offset:{o}")
                e(f"ds_read_b64_tr_b16 v[{vVf+4*jj+2}:{vVf+4*jj+3}], v{vLV+jj} offset:{o+4096}")

        def pv_mfma(jj):
            e(f"v_mfma_f32_16x16x32_bf16 v[{vO+4*jj}:{vO+4*jj+3}], v[{vVf+4*jj}:{vVf+4*jj+3}], v[{vP}:{vP+3}], v[{vO+4*jj}:{vO+4*jj+3}]")

        def round_(r, first, tag):
            cur, nxt = vE[r & 1], vE[(r + 1) & 1]
            so = r * 16384
            def masks(cur):
                for u in range(2):
                    e(f"v_bfe_u32 v{vT0+u}, v{cur+u}, v{vShift}, 5")
                    e(f"v_sub_u32 v{vT0+u}, v{vT0+u}, v{v4g}")
                for u in range(2):
                    for k in range(4):
                        e(f"v_cmp_lt_i32 s[{sMk[4*u+k]}:{sMk[4*u+k]+1}], {k}, v{vT0+u}")
                for k in range(8):
                    e(f"v_cndmask_b32 v{vS+k}, v{vNeg}, 0, s[{sMk[k]}:{sMk[k]+1}]")

            def k_reads():
                for c in range(4):
                    e(f"ds_read_b128 v[{vKf+4*c}:{vKf+4*c+3}], v{vLK+c} offset:{so}")
                    e(f"ds_read_b128 v[{vKf+16+4*c}:{vKf+16+4*c+3}], v{vLK+c} offset:{so+4096}")

            def request():
                e(f"s_cmp_lt_u32 s{sR}, s{sFirst}")
                e(f"s_cbranch_scc1 L_noreq{tag}")
                e("s_mov_b64 exec, 1")
                e(f"v_mov_b32 v{vTk+2*r+1}, 1")
                if self.tkx:
                    e(f"v_mov_b32 v{vTk+2*r}, 0")
                    e(f"buffer_atomic_add_x2 v[{vTk+2*r}:{vTk+2*r+1}], v{vZero}, s[{SWS}:{SWS+3}], s{sCt} offen sc0 sc1")
                else:
                    e(f"buffer_atomic_add v{vTk+2*r+1}, v{vZero}, s[{SWS}:{SWS+3}], s{sCt} offen sc0 sc1")
                e("s_mov_b64 exec, -1")
                lab(f"L_noreq{tag}")
            if not self.nocompute and not first:
                masks(cur)
            e("s_barrier")
            if first:
                self.stamp(1)
                e(f"ds_read_b128 v[{vP}:{vP+3}], v{vList}")
                if NSPEC == 3:
                    e(f"ds_read_b64 v[{vVf}:{vVf+1}], v{vList} offset:16")
                for c in range(4):
                    e(f"ds_read_b128 v[{vQ+4*c}:{vQ+4*c+3}], v{vQA+c} offset:{QL}")
                k_reads()
                e("s_waitcnt lgkmcnt(12)")
                ent = [vP, vP + 1, vP + 2, vP + 3, vVf, vVf + 1]
                x = vVf + 2
                for k in range(2 * NSPEC):
                    e(f"v_xor_b32 v{x+k}, s{sSp[k]}, v{ent[k]}")
                    e(f"v_subrev_u32 v{x+k}, 1, v{x+k}")
                e(f"v_max3_u32 v{x}, v{x}, v{x+1}, v{x+2}")
                if NSPEC == 3:
                    e(f"v_max3_u32 v{x}, v{x}, v{x+4}, v{x+5}")
                e(f"v_max_u32 v{x}, v{x}, v{x+3}")
                e(f"v_mov_b32 v{nxt}, v{vP+2}")
                e(f"v_mov_b32 v{nxt+1}, v{vP+3}")
                e(f"v_cmp_gt_u32 vcc, 0x3ff, v{x}")
                e("s_cbranch_vccnz L_cspec_ok")
                e("s_waitcnt lgkmcnt(0)")
                e("s_barrier")
                k_reads()
                e("s_waitcnt lgkmcnt(0)")
                lab("L_cspec_ok")
                masks(vP)
                e(f"s_cmp_eq_u32 s{sZ}, 0")
                e("s_cbranch_scc1 L_q_ok")
                e("s_waitcnt lgkmcnt(8)")
                for k in range(16):
                    e(f"v_cndmask_b32 v{vQ+k}, v{vQ+k}, 0, s[{sZ}:{sZ+1}]")
                e("s_nop 1")
                lab("L_q_ok")
            else:
                if not self.nocompute:
                    pv_reads((r + 3) % 4)
                    k_reads()
                e(f"ds_read_b64 v[{nxt}:{nxt+1}], v{vList} offset:{8*(r+1)}")
                if K and not self.sat:
                    request()
            if not self.nocompute:
                if not first:
                    e("s_waitcnt lgkmcnt(11)")
                    pv_mfma(0)
                    e("s_waitcnt lgkmcnt(9)")
                    pv_mfma(1)
                for c in range(4):
                    for u in range(2):
                        e(f"s_waitcnt lgkmcnt({(7 if first else 8)-2*c-u})")
                        e(f"v_mfma_f32_16x16x32_bf16 v[{vS+4*u}:{vS+4*u+3}], v[{vKf+16*u+4*c}:{vKf+16*u+4*c+3}], v[{vQ+4*c}:{vQ+4*c+3}], v[{vS+4*u}:{vS+4*u+3}]")
                e("s_nop 7")
                e(f"v_max3_f32 v{vT0}, v{vS}, v{vS+1}, v{vS+2}")
                e(f"v_max3_f32 v{vT1}, v{vS+4}, v{vS+5}, v{vS+6}")
                e(f"v_max3_f32 v{vT0}, v{vT0}, v{vS+3}, v{vM}")
                e(f"v_max3_f32 v{vT0}, v{vT0}, v{vT1}, v{vS+7}")
                e(f"v_cmp_gt_f32 vcc, v{vT0}, v{vM}")
                e(f"s_cbranch_vccz L_skip{tag}")
                e(f"v_mov_b32 v{vT1}, v{vT0}")
                e("s_nop 1")
                e(f"v_permlane32_swap_b32 v{vT0}, v{vT1}")
                e("s_nop 0")
                e(f"v_max_f32 v{vT0}, v{vT0}, v{vT1}")
                e(f"v_mov_b32 v{vT1}, v{vT0}")
                e("s_nop 1")
                e(f"v_permlane16_swap_b32 v{vT0}, v{vT1}")
                e("s_nop 0")
                e(f"v_max_f32 v{vT0}, v{vT0}, v{vT1}")
                e(f"v_sub_f32 v{vA}, v{vM}, v{vT0}")
                e(f"v_mul_f32 v{vA}, s{sCs}, v{vA}")
                e(f"v_exp_f32 v{vA}, v{vA}")
                e(f"v_mov_b32 v{vM}, v{vT0}")
                e(f"v_mul_f32 v{vNm}, s{sCs}, v{vT0}")
                e(f"v_mul_f32 v{vL}, v{vL}, v{vA}")
                for k in range(8):
                    e(f"v_mul_f32 v{vO+k}, v{vO+k}, v{vA}")
                lab(f"L_skip{tag}")
                for k in range(8):
                    e(f"v_fma_f32 v{vS+k}, v{vS+k}, s{sCs}, -v{vNm}")
                for k in range(8):
                    e(f"v_exp_f32 v{vS+k}, v{vS+k}")
                e("s_nop 0")
                for k in range(4):
                    e(f"v_cvt_pk_bf16_f32 v{vP+k}, v{vS+2*k}, v{vS+2*k+1}")
                e(f"v_pk_add_f32 v[{vS}:{vS+1}], v[{vS}:{vS+1}], v[{vS+2}:{vS+3}]")
                e(f"v_pk_add_f32 v[{vS+4}:{vS+5}], v[{vS+4}:{vS+5}], v[{vS+6}:{vS+7}]")
                e(f"v_pk_add_f32 v[{vS}:{vS+1}], v[{vS}:{vS+1}], v[{vS+4}:{vS+5}]")
                e(f"v_add_f32 v{vL}, v{vL}, v{vS}")
                e(f"v_add_f32 v{vL}, v{vL}, v{vS+1}")
            if K and first and self.tkx and not self.sat:
                request()
            if K and first and not self.tkx:
                e(f"s_cmp_lg_u32 s{sW}, 0")
                e("s_cbranch_scc1 L_claimed")
                e("s_waitcnt vmcnt(0)")
                e(f"v_readfirstlane_b32 s{sT}, v{vCS+3}")
                e(f"s_cmp_eq_u32 s{sT}, s{sTag}")
                e("s_cbranch_scc1 L_claimed")
                e("s_mov_b64 exec, 1")
                e(f"buffer_atomic_cmpswap_x2 v[{vCS}:{vCS+3}], v{vZero}, s[{SWS}:{SWS+3}], s{sCt} offen sc1")
                e("s_mov_b64 exec, -1")
                lab("L_claimed")
                request()
            if K and self.sat:
                e(f"s_cmp_lt_u32 s{sR}, s{sFirst}")
                e("s_waitcnt lgkmcnt(0)")
                e(f"s_cbranch_scc1 L_noproc{tag}")
                e(f"s_cmp_lt_u32 s{sR}, s{sFirstD}")
                e(f"s_cbranch_scc1 L_req{tag}")
                e(f"s_xor_b32 s{sX}, s{sTk}, s{sTg24}")
                e(f"s_and_b32 s{sT}, s{sX}, 0xffffff")
                e(f"s_cbranch_scc1 L_done{tag}")
                e(f"s_lshr_b32 s{sX}, s{sX}, 24")
                if self.trace in (1, 2):
                    e(f"s_lshl_b64 exec, 1, s{sR}")
                    e(f"v_mov_b32 v121, s{sX}")
                    e("s_mov_b64 exec, -1")
                e(f"s_lshl_b32 s{sT}, s{sX}, 1")
                e(f"s_cmp_ge_u32 s{sT}, s{sNp}")
                e(f"s_cbranch_scc1 L_done{tag}")
                e(f"s_lshl_b64 exec, 1, s{sX}")
                e(f"ds_write2_b32 v{vTail}, v{vPool}, v{vPool+1} offset0:0 offset1:1")
                e("s_mov_b64 exec, -1")
                e(f"v_add_u32 v{vTail}, 8, v{vTail}")
                e(f"s_add_u32 s{sT}, s{sT}, 2")
                e(f"s_cmp_lt_u32 s{sT}, s{sNp}")
                e("s_waitcnt lgkmcnt(0)")
                e(f"s_cbranch_scc0 L_done{tag}")
                lab(f"L_req{tag}")
                e(f"s_mov_b32 s{sTk}, 0x1000000")
                e("s_waitcnt vmcnt(0)")
                if self.trace == 3:
                    e("s_memrealtime s[84:85]")
                    e("s_waitcnt lgkmcnt(0)")
                e(f"s_atomic_add s{sTk}, s[22:23], s{sCt} glc")
                if self.trace == 3:
                    e("s_waitcnt lgkmcnt(0)")
                    e("s_memrealtime s[86:87]")
                    e("s_waitcnt lgkmcnt(0)")
                    e("s_sub_u32 s86, s86, s84")
                    e("s_lshl_b32 s84, s84, 8")
                    e("s_and_b32 s84, s84, 0x7fffff00")
                    e("s_min_u32 s86, s86, 255")
                    e("s_or_b32 s86, s86, s84")
                    e(f"s_lshl_b64 exec, 1, s{sR}")
                    e(f"v_mov_b32 v121, s86")
                    e("s_mov_b64 exec, -1")
                e(f"s_branch L_noproc{tag}")
                lab(f"L_done{tag}")
                e(f"s_mov_b32 s{sFirst}, {BIG}")
                lab(f"L_noproc{tag}")
            if K and not self.sat:
                e(f"s_cmp_lt_u32 s{sR}, s{sFirstD}")
                e(f"s_cbranch_scc1 L_noproc{tag}")
                e(f"s_waitcnt vmcnt({D})")
                e(f"v_readfirstlane_b32 s{sX}, v{vTk+2*((r-D)%4)+1}")
                if self.tkx:
                    e(f"v_readfirstlane_b32 s{sT}, v{vTk+2*((r-D)%4)}")
                    e(f"s_cmp_lg_u32 s{sT}, s{sTag}")
                    e(f"s_cbranch_scc1 L_done{tag}")
                if self.trace:
                    e(f"s_lshl_b64 exec, 1, s{sR}")
                    e(f"v_mov_b32 v121, s{sX}")
                    e("s_mov_b64 exec, -1")
                e(f"s_lshl_b32 s{sT}, s{sX}, 1")
                e(f"s_cmp_ge_u32 s{sT}, s{sNp}")
                e(f"s_cbranch_scc1 L_done{tag}")
                e(f"s_lshl_b64 exec, 1, s{sX}")
                e(f"ds_write2_b32 v{vTail}, v{vPool}, v{vPool+1} offset0:0 offset1:1")
                e("s_mov_b64 exec, -1")
                e(f"v_add_u32 v{vTail}, 8, v{vTail}")
                e(f"s_add_u32 s{sT}, s{sT}, 2")
                e(f"s_cmp_lt_u32 s{sT}, s{sNp}")
                e(f"s_cbranch_scc1 L_noproc{tag}")
                lab(f"L_done{tag}")
                e(f"s_mov_b32 s{sFirst}, {BIG}")
                e(f"s_mov_b32 s{sFirstD}, {BIG}")
                lab(f"L_noproc{tag}")
            if not (K and self.sat):
                e("s_waitcnt lgkmcnt(0)")
            e(f"v_readfirstlane_b32 s{sX}, v{nxt}")
            e(f"s_add_u32 s{sR}, s{sR}, 1")
            if r == 3:
                e(f"v_add_u32 v{vList}, 32, v{vList}")
            e(f"s_mov_b32 s{sT2}, {so}")
            e(f"s_cmp_eq_u32 s{sX}, 0")

        round_(0, True, "f")
        e("s_branch L_r1")
        lab("L_r0")
        for r in range(4):
            if r == 1:
                lab("L_r1")
            round_(r, False, str(r))
            if r < 3:
                e("s_cbranch_scc1 L_fin")
            else:
                e("s_cbranch_scc0 L_r0")
        lab("L_fin")
        e(f"v_add_u32 v{vLV}, s{sT2}, v{vLV}")
        e(f"v_add_u32 v{vLV+1}, s{sT2}, v{vLV+1}")
        e(f"v_mov_b32 v{vT1}, v{vL}")
        e(f"s_mov_b32 s{sMk[0]}, 0xff00ff00")
        e(f"s_mov_b32 s{sMk[0]+1}, 0xff00ff00")
        e(f"v_permlane32_swap_b32 v{vL}, v{vT1}")
        e("s_nop 0")
        e(f"v_add_f32 v{vL}, v{vL}, v{vT1}")
        e(f"v_mov_b32 v{vT1}, v{vL}")
        e("s_nop 1")
        e(f"v_permlane16_swap_b32 v{vL}, v{vT1}")
        e("s_nop 0")
        e(f"v_add_f32 v{vL}, v{vL}, v{vT1}")
        e(f"v_max_f32 v{vL}, {hex(f2u(1e-30))}, v{vL}")
        e(f"v_rcp_f32 v{vA}, v{vL}")
        e(f"v_log_f32 v{vL}, v{vL}")
        e(f"v_mov_b32 v{vS+3}, s{sTag}")
        e(f"v_add_f32 v{vS+2}, v{vNm}, v{vL}")
        if self.stamps:
            e(f"v_mov_b32 v{self.vSt[6]}, s{sR}")
        e("s_barrier")
        self.stamp(2)
        pv_reads(0)
        e("s_waitcnt lgkmcnt(2)")
        pv_mfma(0)
        e("s_waitcnt lgkmcnt(0)")
        pv_mfma(1)
        e("s_nop 7")
        for k in range(4):
            e(f"v_cndmask_b32 v{vO+k}, v{vO+k}, v{vO+4+k}, s[{sMk[0]}:{sMk[0]+1}]")
        for k in range(4):
            e(f"v_mul_f32 v{vO+k}, v{vO+k}, v{vA}")
        e(f"v_cvt_pk_bf16_f32 v{vS}, v{vO}, v{vO+1}")
        e(f"v_cvt_pk_bf16_f32 v{vS+1}, v{vO+2}, v{vO+3}")
        e(f"buffer_store_dwordx4 v[{vS}:{vS+3}], v{vMA}, s[{SWS}:{SWS+3}], s{sMsg} offen {FL[self.msgf]}")
        self.stamp(3)
        if self.stamps:
            e("s_waitcnt vmcnt(0)")
            self.stamp(4)
        if self.trace:
            e(f"s_cmp_lg_u32 s{sW}, 0")
            e("s_cbranch_scc1 L_notr")
            e("s_lshl_b32 s88, s2, 9")
            e(f"s_add_u32 s88, s88, {STAMP_OFF + 0x10000 + 256}")
            e(f"buffer_store_dword v121, v122, s[{SWS}:{SWS+3}], s88 offen")
            lab("L_notr")
        self.flush_stamps()
        e("s_endpgm")

        nvg = 128 if self.stamps else (max(self.nv, 100) + 7) // 8 * 8
        out = HEADER
        out += f"; @launch grid=(256,1,1) block=(320,1,1) lds={lds}\n"
        out += '.amdgcn_target "amdgcn-amd-amdhsa--gfx950"\n.text\n'
        out += f".globl {NAME}_kernel\n.p2align 8\n.type {NAME}_kernel,@function\n{NAME}_kernel:\n"
        out += "\n".join(self.lines) + "\n"
        out += f""".section .rodata,"a"
.p2align 6
.amdhsa_kernel {NAME}_kernel
  .amdhsa_next_free_vgpr {nvg}
  .amdhsa_next_free_sgpr 96
  .amdhsa_accum_offset {nvg}
  .amdhsa_group_segment_fixed_size 0
  .amdhsa_kernarg_size 64
  .amdhsa_user_sgpr_count 2
  .amdhsa_user_sgpr_kernarg_segment_ptr 1
  .amdhsa_system_sgpr_workgroup_id_x 1
.end_amdhsa_kernel
"""
        return out


if __name__ == "__main__":
    path = sys.argv[1]
    kw = {}
    for a in sys.argv[2:]:
        k, v = a.split("=")
        kw[k] = int(v)
    open(path, "w").write(Gen(**kw).build())
```

```python
import sys, math, struct
from gen import NAME, HEADER, f2u, KVBYTES, CSCALE

EP_OFF = 0x100000
CT_OFF = 0x101000
STAMP_OFF = 0x400000
WS_REC = 0x800000
POLL_MAX = 200000
LIST = 65536
BIG = 0x7fffffff
FL = ['', 'sc1', 'sc0 sc1', 'sc1 nt', 'sc0 sc1 nt', 'nt', 'sc0', 'sc0 nt']


class Gen:
    def __init__(self, NF=20, D=1, J0=192, K=96, stamps=0, prio=3, nocompute=0, slp=1, dom=2, nopoll=0, probe=0, st2=0, msgf=1, pollf=1, outf=0,
                 NF0=32, NS=2, stag=7, NF2=0, FT=32, qw=3, eb=0, W0=64, trace=0, tkx=0, apoll=0, pd=0, sat=0, pa=88, pb=82, psh=0, pw=-1, kvf=5, pc=0, pr=0, vf=-1):
        self.vf = kvf if vf < 0 else vf
        self.pc, self.pr = pc, pr
        self.kvf = kvf
        self.pa, self.pb, self.psh, self.pw = pa, pb, psh, pw
        self.NF, self.D, self.J0, self.K = NF, D, J0, K
        self.stamps, self.prio, self.nocompute, self.slp, self.dom, self.nopoll = stamps, prio, nocompute, slp, dom, nopoll
        self.probe = probe
        self.eb = eb
        self.sat = sat
        assert not sat or (tkx and D == 1)
        self.tkx, self.apoll, self.pd = tkx, apoll, pd
        self.trace = trace
        self.W0 = W0
        self.NF0, self.NS, self.stag, self.NF2, self.FT, self.qw = NF0, NS, stag, NF2, FT, qw
        self.st2, self.msgf, self.pollf, self.outf = st2, msgf, pollf, outf
        assert 16 <= NF <= 24 and 0 <= D <= 3
        assert K <= 128 and K % 2 == 0 and J0 % 32 == 0 and (dom * K) % 32 == 0 and J0 >= 128
        assert dom in (1, 2, 4)
        self.lines = []
        self.nv = 0

    def e(self, s):
        self.lines.append("    " + s)

    def lab(self, s):
        self.lines.append(s + ":")

    def valloc(self, n=1, align=1):
        self.nv = (self.nv + align - 1) // align * align
        r = self.nv
        self.nv += n
        return r

    def stamp(self, idx):
        if not self.stamps:
            return
        e = self.e
        e("s_memrealtime s[90:91]")
        e("s_waitcnt lgkmcnt(0)")
        e(f"v_mov_b32 v{self.vSt[idx]}, s90")

    def flush_stamps(self):
        if not self.stamps:
            return
        e = self.e
        e("s_mov_b64 exec, 1")
        e("s_lshl_b32 s90, s2, 3")
        e("s_add_u32 s90, s90, s3")
        e("s_lshl_b32 s90, s90, 5")
        e(f"s_add_u32 s90, s90, {STAMP_OFF}")
        e(f"v_mov_b32 v{self.vStT}, 0")
        for i in range(8):
            e(f"buffer_store_dword v{self.vSt[i]}, v{self.vStT}, s[44:47], s90 offen offset:{4*i}")
        e("s_mov_b64 exec, -1")

    def srd(self, d, p, size):
        e = self.e
        e(f"s_mov_b32 s{d}, s{p}")
        e(f"s_mov_b32 s{d+1}, s{p+1}")
        e(f"s_mov_b32 s{d+2}, {size}")
        e(f"s_mov_b32 s{d+3}, 0x00020000")

    def build(self):
        NF, D, J0, K, dom = self.NF, self.D, self.J0, self.K, self.dom
        e, lab, srd = self.e, self.lab, self.srd
        kk = (7 + NF) // 16
        ib = (7 + NF) % 16
        LA = kk + 2
        NF0, NS, NF2 = self.NF0, self.NS, self.NF2
        assert kk == 1 and 16 + ib <= NF0 <= 32 + ib
        NSPEC = (NF0 + 15) // 16
        assert J0 >= 64 * NSPEC
        QL = 49152
        NMIN2 = (2 * (D + LA) + 3) // 4 * 4
        assert NMIN2 >= 2 * (kk + 1)
        lds = LIST + 1280
        sKVH, sC, sT, sT2, sTag = 4, 5, 6, 7, 42
        SWS = 44
        if self.stamps:
            self.vSt = list(range(112, 120))
            self.vStT = 120

        e("s_cmp_ge_u32 s2, 256")
        e("s_cbranch_scc1 L_exit")
        if self.stamps:
            for i in range(8):
                e(f"v_mov_b32 v{self.vSt[i]}, 0")
            self.stamp(7)
        if self.probe:
            e("s_memrealtime s[82:83]")
        e("s_load_dwordx16 s[8:23], s[0:1], 0")
        e("v_lshrrev_b32 v1, 6, v0")
        e(f"s_lshr_b32 s{sT}, s2, 5")
        e(f"s_xor_b32 s{sT}, s{sT}, s2")
        e("v_readfirstlane_b32 s3, v1")
        e(f"s_and_b32 s{sKVH}, s{sT}, 7")
        e(f"s_lshr_b32 s{sC}, s2, 3")
        e("s_cmp_lg_u32 s3, 0")
        e("s_cbranch_scc1 L_consumer")

        vOffK, vOffV = 4, 8
        vL_, vD = 12, 16
        SKA, SKB, SVA, SVB, SO = 24, 28, 32, 36, 48
        sA, sB, sBuf, sFull = 52, 53, 54, 55
        sE = [56, 57, 58, 59, 60, 61]
        sP = [62, 63, 64, 65, 66, 67]
        if self.prio:
            e(f"s_setprio {self.prio}")
        e("v_lshrrev_b32 v1, 4, v0")
        e("v_and_b32 v2, 15, v0")
        e(f"s_lshl_b32 s{sT}, s{sKVH}, 8")
        e(f"v_lshlrev_b32 v3, 11, v1")
        e(f"v_add_u32 v3, s{sT}, v3")
        e(f"v_xor_b32 v{vOffK}, v1, v2")
        e(f"v_lshl_add_u32 v{vOffK}, v{vOffK}, 4, v3")
        e("v_lshlrev_b32 v1, 1, v1")
        e(f"v_xor_b32 v{vOffV}, v1, v2")
        e(f"v_lshl_add_u32 v{vOffV}, v{vOffV}, 4, v3")
        for i in range(1, 4):
            e(f"v_xor_b32 v{vOffK+i}, {64*i}, v{vOffK}")
            e(f"v_add_u32 v{vOffK+i}, {7168*i}, v{vOffK+i}")
        e(f"v_xor_b32 v{vOffV+1}, 128, v{vOffV}")
        e(f"v_add_u32 v{vOffV+2}, {7168*2}, v{vOffV}")
        e(f"v_add_u32 v{vOffV+3}, {7168*3}, v{vOffV+1}")
        e(f"v_add_u32 v{vOffV+1}, {7168}, v{vOffV+1}")
        for k in range(2 * NSPEC):
            e(f"s_add_u32 s{sP[k]}, s{sC}, {32*k}")
            e(f"s_lshl_b32 s{sP[k]}, s{sP[k]}, 15")
        e(f"s_mov_b32 s{sFull}, {KVBYTES}")
        for S in (SKA, SKB, SVA, SVB):
            e(f"s_mov_b32 s{S+2}, s{sFull}")
            e(f"s_mov_b32 s{S+3}, 0x00020000")
        e(f"s_add_u32 s{sT}, s{sT}, {EP_OFF}")
        if self.st2:
            self.stamp(2)
        e("s_waitcnt lgkmcnt(0)")
        if self.st2:
            self.stamp(3)
        e(f"s_mov_b64 s[{SKA}:{SKA+1}], s[10:11]")
        e(f"s_mov_b64 s[{SKB}:{SKB+1}], s[10:11]")
        if self.eb:
            e("s_barrier")

        def issue(p, sa, sb, m0const=None):
            grp, i = p // 4, p % 4
            if i == 0 or self.force_m0:
                if m0const is None:
                    e(f"s_add_u32 m0, s{sBuf}, {4096*grp}")
                else:
                    e(f"s_mov_b32 m0, {m0const + 4096*grp}")
                e("s_nop 0")
                self.force_m0 = False
            S = (SKA, SKB, SVA, SVB)[grp]
            so = (sa, sb)[grp & 1]
            vo = (vOffK if grp < 2 else vOffV) + i
            e(f"buffer_load_dwordx4 v{vo}, s[{S}:{S+3}], s{so} offen offset:{1024*i} {FL[self.kvf if grp < 2 else self.vf]} lds")
        self.force_m0 = False
        for p in range(NF0):
            r = p // 16
            if p == 8:
                if self.st2:
                    self.stamp(4)
                e(f"s_mov_b64 s[{SVA}:{SVA+1}], s[12:13]")
                e(f"s_mov_b64 s[{SVB}:{SVB+1}], s[12:13]")
            if p >= self.W0:
                e(f"s_waitcnt vmcnt({self.W0-1})")
            issue(p % 16, sP[2*r], sP[2*r+1], 16384 * r)
        self.stamp(0)
        e(f"s_load_dword s{sTag}, s[22:23], s{sT}")
        srd(SWS, 22, WS_REC)
        srd(SO, 18, 16384)
        e(f"v_mov_b32 v{vL_}, {LIST}")
        vPA, vOA = 13, 14
        sMB, sEP, sOO = 68, 69, 70
        e(f"s_mov_b32 s{sEP}, s{sT}")
        e(f"v_lshlrev_b32 v{vPA}, 4, v0")
        e(f"s_lshl_b32 s{sMB}, s{sKVH}, 5")
        e(f"s_add_u32 s{sMB}, s{sMB}, s{sC}")
        e(f"s_lshl_b32 s{sMB}, s{sMB}, 12")
        e("v_bfe_u32 v1, v0, 2, 1")
        e("v_and_b32 v2, 3, v0")
        e("v_lshlrev_b32 v1, 13, v1")
        e(f"v_lshl_add_u32 v{vOA}, v2, 8, v1")
        e("v_bfe_u32 v1, v0, 4, 1")
        e(f"v_lshl_add_u32 v{vOA}, v1, 2, v{vOA}")
        e("v_bfe_u32 v1, v0, 5, 1")
        e(f"v_lshl_add_u32 v{vOA}, v1, 1, v{vOA}")
        sXM = 40
        e(f"s_mov_b32 s{sXM}, 0x00ff00ff")
        e(f"s_mov_b32 s{sXM+1}, 0x00ff00ff")
        e(f"s_lshl_b32 s{sOO}, s{sKVH}, 10")
        e(f"s_lshl_b32 s{sT}, s{sC}, 3")
        e(f"s_add_u32 s{sOO}, s{sOO}, s{sT}")
        e("s_waitcnt lgkmcnt(0)")
        e(f"s_add_u32 s{sTag}, s{sTag}, 1")
        e(f"s_waitcnt vmcnt({NF0-8})")
        e("s_barrier")
        nrd = 6
        e(f"ds_read_b128 v[{vD}:{vD+3}], v{vL_}")
        e(f"ds_read_b64 v[{vD+4}:{vD+5}], v{vL_} offset:16")
        e(f"v_add_u32 v{vL_}, {4*nrd}, v{vL_}")
        e("s_waitcnt lgkmcnt(0)")
        for k in range(nrd):
            e(f"v_readfirstlane_b32 s{sE[k]}, v{vD+k}")
        for k in range(2 * NSPEC):
            d = sT if k == 0 else sT2
            e(f"s_xor_b32 s{d}, s{sE[k]}, s{sP[k]}")
            e(f"s_sub_u32 s{d}, s{d}, 1")
            if k:
                e(f"s_max_u32 s{sT}, s{sT}, s{sT2}")

        def setround(ea, eb):
            e(f"s_and_b32 s{sA}, s{ea}, 0xffff8000")
            e(f"s_and_b32 s{sB}, s{eb}, 0xffff8000")
            e(f"s_and_b32 s{sT2}, s{ea}, 0x3ff")
            e(f"s_cselect_b32 s{SKA+2}, s{sFull}, 0")
            e(f"s_cselect_b32 s{SVA+2}, s{sFull}, 0")
            e(f"s_and_b32 s{sT2}, s{eb}, 0x3ff")
            e(f"s_cselect_b32 s{SKB+2}, s{sFull}, 0")
            e(f"s_cselect_b32 s{SVB+2}, s{sFull}, 0")
        e(f"s_cmp_lt_u32 s{sT}, 0x3ff")
        e("s_cbranch_scc1 L_spec_ok")
        e("s_waitcnt vmcnt(0)")
        for p in range(NF0):
            r = p // 16
            if p % 16 == 0:
                setround(sE[2*r], sE[2*r+1])
            issue(p % 16, sA, sB, 16384 * r)
        e(f"s_waitcnt vmcnt({NF0-8})")
        e("s_barrier")
        lab("L_spec_ok")
        self.stamp(1)
        if self.trace:
            e("v_mov_b32 v121, 0")
            e("s_mov_b32 s81, 1")
        if self.probe:
            e("s_memrealtime s[84:85]")
            e("s_mov_b32 s81, 2")
            e("s_mov_b32 s96, 0")
        p0 = NF0
        while p0 < 32:
            if p0 == NF0:
                setround(sE[2], sE[3])
                self.force_m0 = True
            e(f"s_waitcnt vmcnt({NF-1})")
            issue(p0 % 16, sA, sB, 16384)
            p0 += 1
        setround(sE[4], sE[5])
        e(f"s_mov_b32 s{sBuf}, {16384*2}")
        pe = p0 % 16
        assert pe <= ib
        if pe % 4:
            e(f"s_add_u32 m0, s{sBuf}, {4096*(pe//4)}")
        if pe:
            e("s_branch L_enter")
        lab("L_round")
        for p in range(16):
            if p == pe and pe:
                lab("L_enter")
            e(f"s_waitcnt vmcnt({NF-1})")
            if p == ib:
                if self.trace == 2:
                    e("s_memrealtime s[88:89]")
                e("s_barrier")
                if self.trace in (1, 3):
                    e("s_memrealtime s[88:89]")
                e(f"ds_read_b64 v[{vD}:{vD+1}], v{vL_}")
                e(f"v_add_u32 v{vL_}, 8, v{vL_}")
            issue(p, sA, sB)
        lab("L_next")
        e(f"s_add_u32 s{sBuf}, s{sBuf}, 16384")
        e(f"s_and_b32 s{sBuf}, s{sBuf}, 0xffff")
        e("s_waitcnt lgkmcnt(0)")
        if self.pr:
            e("s_add_u32 s81, s81, 1")
            e(f"s_cmp_lg_u32 s81, {self.pr}")
            e("s_cbranch_scc1 L_nopr")
            e("s_memrealtime s[96:97]")
            lab("L_nopr")
        if self.trace:
            e("s_lshl_b64 exec, 1, s81")
            e("v_mov_b32 v121, s88")
            e("s_mov_b64 exec, -1")
            e("s_add_u32 s81, s81, 1")
        e(f"v_readfirstlane_b32 s{sE[0]}, v{vD}")
        e(f"v_readfirstlane_b32 s{sE[1]}, v{vD+1}")
        setround(sE[0], sE[1])
        if NF2:
            e(f"s_bitcmp1_b32 s{sE[0]}, 11")
            e("s_cbranch_scc1 L_fast")
        e(f"s_cmp_lg_u32 s{sE[0]}, 0")
        e("s_cbranch_scc1 L_round")
        if NF2:
            e("s_branch L_drain")
            lab("L_fast")
            for p in range(16):
                if NF2 < 40:
                    e(f"s_waitcnt vmcnt({NF2-1})")
                issue(p, sA, sB)
            e("s_waitcnt vmcnt(24)")
            e("s_barrier")
            e(f"ds_read_b64 v[{vD}:{vD+1}], v{vL_}")
            e(f"v_add_u32 v{vL_}, 8, v{vL_}")
            e("s_branch L_next")
            lab("L_drain")
        if not self.st2:
            self.stamp(2)
        for k in range(kk - 1, -1, -1):
            e(f"s_waitcnt vmcnt({8+16*k})")
            e("s_barrier")
        e("s_waitcnt vmcnt(0)")
        e("s_barrier")
        if not self.st2:
            self.stamp(3)
        if self.trace:
            e("v_lshlrev_b32 v122, 2, v0")
            e("s_lshl_b32 s88, s2, 9")
            e(f"s_add_u32 s88, s88, {STAMP_OFF + 0x10000}")
            e(f"buffer_store_dword v121, v122, s[{SWS}:{SWS+3}], s88 offen")
            e("s_waitcnt vmcnt(0)")
        if self.probe:
            e("s_memrealtime s[86:87]")
        RS = [24 + 16 * k for k in range(NS)]
        sM = [[52 + 8 * k + 2 * i for i in range(4)] for k in range(2)] + [[72, 74, 76, 78]]
        sN = 80
        if self.nopoll:
            self.flush_stamps()
            e("s_endpgm")

        ap = self.apoll

        def poll(k, masked):
            for i in range(4):
                if masked:
                    e(f"s_mov_b64 exec, s[{sM[k][i]}:{sM[k][i]+1}]")
                r = RS[k] + 4 * i
                if ap == 2 or (ap and masked):
                    for q in range(4):
                        e(f"v_mov_b32 v{r+q}, 0")
                    e(f"buffer_atomic_add_x2 v[{r+2}:{r+3}], v{vPA}, s[{SWS}:{SWS+3}], s{sMB} offen offset:{1024*i+8} sc0 sc1")
                    e(f"buffer_atomic_add_x2 v[{r}:{r+1}], v{vPA}, s[{SWS}:{SWS+3}], s{sMB} offen offset:{1024*i} sc0 sc1")
                else:
                    e(f"buffer_load_dwordx4 v[{r}:{r+3}], v{vPA}, s[{SWS}:{SWS+3}], s{sMB} offen offset:{1024*i} {FL[self.pollf]}")
            if masked:
                e("s_mov_b64 exec, -1")
        e(f"s_mov_b32 s{sN}, {POLL_MAX}")
        if self.pd:
            e(f"s_sleep {self.pd}")
        assert not ap or NS == 1
        for k in range(NS):
            if k:
                e(f"s_sleep {self.stag}")
            poll(k, False)
        lab("L_poll")
        for k in range(NS):
            e(f"s_waitcnt vmcnt({4*(NS-1)})")
            for i in range(4):
                e(f"v_cmp_ne_u32 s[{sM[k][i]}:{sM[k][i]+1}], s{sTag}, v{RS[k]+4*i+3}")
            e(f"s_or_b64 vcc, s[{sM[k][0]}:{sM[k][0]+1}], s[{sM[k][1]}:{sM[k][1]+1}]")
            e(f"s_or_b64 vcc, vcc, s[{sM[k][2]}:{sM[k][2]+1}]")
            e(f"s_or_b64 vcc, vcc, s[{sM[k][3]}:{sM[k][3]+1}]")
            e(f"s_cbranch_scc0 L_ready{k}")
            if self.slp:
                e(f"s_sleep {self.slp}")
            poll(k, True)
        e(f"s_sub_u32 s{sN}, s{sN}, 1")
        e(f"s_cmp_lg_u32 s{sN}, 0")
        e("s_cbranch_scc1 L_poll")
        mx, tm, den, t5 = 72, 73, 74, 76
        U, acc = 80, 96
        for k in range(NS):
            R = RS[k]
            lab(f"L_ready{k}")
            if self.probe == 20:
                e("s_memrealtime s[90:91]")
            if not self.st2:
                self.stamp(4)

            def unp(j):
                src = R + 4 * (j // 4) + (j // 2) % 2
                if j % 2:
                    e(f"v_and_b32 v{U+j}, 0xffff0000, v{src}")
                else:
                    e(f"v_lshlrev_b32 v{U+j}, 16, v{src}")
            e(f"v_max3_f32 v{mx}, v{R+2}, v{R+6}, v{R+10}")
            e(f"v_max_f32 v{mx}, v{mx}, v{R+14}")
            unp(0); unp(1)
            e(f"v_max_f32_dpp v{mx}, v{mx}, v{mx} row_ror:8 row_mask:0xf bank_mask:0xf")
            e(f"v_mov_b32 v{tm}, v{mx}")
            unp(2); unp(3)
            e(f"v_permlane16_swap_b32 v{mx}, v{tm}")
            unp(4)
            e(f"v_max_f32 v{mx}, v{mx}, v{tm}")
            e(f"v_mov_b32 v{tm}, v{mx}")
            unp(5); unp(6)
            e(f"v_permlane32_swap_b32 v{mx}, v{tm}")
            unp(7)
            e(f"v_max_f32 v{mx}, v{mx}, v{tm}")
            for i in range(4):
                e(f"v_sub_f32 v{R+4*i+2}, v{R+4*i+2}, v{mx}")
            for i in range(4):
                e(f"v_exp_f32 v{R+4*i+2}, v{R+4*i+2}")
                unp(8 + 2 * i); unp(9 + 2 * i)

            def pk(i, h):
                w = R + 4 * i + 2
                a = acc + 2 * h
                if i == 0:
                    e(f"v_pk_mul_f32 v[{a}:{a+1}], v[{U+2*h}:{U+2*h+1}], v[{w}:{w+1}] op_sel_hi:[1,0]")
                else:
                    e(f"v_pk_fma_f32 v[{a}:{a+1}], v[{U+4*i+2*h}:{U+4*i+2*h+1}], v[{w}:{w+1}], v[{a}:{a+1}] op_sel_hi:[1,0,1]")
            e(f"v_add_f32 v{den}, v{R+2}, v{R+6}")
            e(f"v_add_f32 v{tm}, v{R+10}, v{R+14}")
            pk(0, 0)
            e(f"v_add_f32 v{den}, v{den}, v{tm}")
            pk(0, 1); pk(1, 0)
            e(f"v_add_f32_dpp v{den}, v{den}, v{den} row_ror:8 row_mask:0xf bank_mask:0xf")
            e(f"v_mov_b32 v{tm}, v{den}")
            pk(1, 1); pk(2, 0)
            e(f"v_permlane16_swap_b32 v{den}, v{tm}")
            pk(2, 1)
            e(f"v_add_f32 v{den}, v{den}, v{tm}")
            e(f"v_mov_b32 v{tm}, v{den}")
            pk(3, 0); pk(3, 1)
            e(f"v_permlane32_swap_b32 v{den}, v{tm}")
            e(f"v_permlane32_swap_b32 v{acc}, v{acc+1}")
            e(f"v_permlane32_swap_b32 v{acc+2}, v{acc+3}")
            e(f"v_add_f32 v{den}, v{den}, v{tm}")
            e(f"v_add_f32 v{acc}, v{acc}, v{acc+1}")
            e(f"v_add_f32 v{acc+2}, v{acc+2}, v{acc+3}")
            e(f"v_rcp_f32 v{den}, v{den}")
            e("s_nop 0")
            e(f"v_permlane16_swap_b32 v{acc}, v{acc+2}")
            e(f"v_mov_b32 v{t5+2}, s{sTag}")
            e(f"v_add_f32 v{acc}, v{acc}, v{acc+2}")
            e(f"v_mov_b32 v{t5+3}, 0")
            e("s_nop 0")
            e(f"v_add_f32_dpp v{acc}, v{acc}, v{acc} row_ror:8 row_mask:0xf bank_mask:0xf")
            e(f"v_mul_f32 v{acc}, v{acc}, v{den}")
            if k < NS - 1:
                e("s_branch L_out")
        lab("L_out")
        e(f"v_cvt_pk_bf16_f32 v{t5}, v{acc}, v{acc}")
        e(f"s_mov_b64 exec, s[{sXM}:{sXM+1}]")
        e(f"buffer_store_short v{t5}, v{vOA}, s[{SO}:{SO+3}], s{sOO} offen {FL[self.outf]}")
        e(f"s_cmp_lg_u32 s{sC}, 0")
        e("s_cbranch_scc1 L_noep")
        e("s_mov_b64 exec, 1")
        e(f"buffer_store_dword v{t5+2}, v{t5+3}, s[{SWS}:{SWS+3}], s{sEP} offen")
        lab("L_noep")
        if self.probe == 20:
            e("s_mov_b64 exec, -1")
            e("s_waitcnt vmcnt(0)")
            e("s_memrealtime s[88:89]")
            e("s_waitcnt lgkmcnt(0)")
            e(f"s_sub_u32 s93, s{self.pa}, s{self.pb}")
            e(f"s_lshl_b32 s93, s93, {self.psh}")
            e("s_min_u32 s93, s93, 20000")
            if self.pc:
                e(f"s_mov_b32 s93, {self.pc}")
            if self.pw >= 0:
                e(f"s_cmp_eq_u32 s2, {self.pw}")
                e("s_cselect_b32 s93, s93, 0")
            lab("L_spin")
            e("s_memrealtime s[94:95]")
            e("s_waitcnt lgkmcnt(0)")
            e("s_sub_u32 s94, s94, s88")
            e("s_cmp_lt_u32 s94, s93")
            e("s_cbranch_scc1 L_spin")
        elif self.probe:
            e("s_mov_b64 exec, -1")
            e("s_waitcnt vmcnt(0)")
            e("s_memrealtime s[88:89]")
            srd(48, 20, 256)
            e("v_mov_b32 v1, 0")
            e("buffer_load_dword v2, v1, s[48:51], 0 offen sc0 sc1")
            e("s_waitcnt vmcnt(0) lgkmcnt(0)")
            e("v_readfirstlane_b32 s92, v2")
            e("s_not_b32 s92, s92")
            a, b, sh = {1: (88, 92, 0), 2: (84, 92, 2), 3: (88, 86, 2), 5: (82, 92, 3), 6: (88, 88, 0), 7: (84, 82, 2)}[self.probe]
            e(f"s_sub_u32 s93, s{a}, s{b}")
            e(f"s_lshl_b32 s93, s93, {sh}")
            e("s_min_u32 s93, s93, 20000")
            lab("L_spin")
            e("s_memrealtime s[94:95]")
            e("s_waitcnt lgkmcnt(0)")
            e("s_sub_u32 s94, s94, s88")
            e("s_cmp_lt_u32 s94, s93")
            e("s_cbranch_scc1 L_spin")
        if self.stamps:
            e("s_mov_b64 exec, -1")
            self.stamp(5)
            e("s_waitcnt vmcnt(0)")
            self.stamp(6)
        self.flush_stamps()
        lab("L_exit")
        e("s_endpgm")

        lab("L_consumer")
        self.nv = 1
        vLane = self.valloc()
        vT0 = self.valloc(); vT1 = self.valloc(); vT2 = self.valloc(); vT3 = self.valloc()
        vM = self.valloc(); vL = self.valloc(); vNm = self.valloc()
        vShift = self.valloc(); v4g = self.valloc(); vNeg = self.valloc()
        vA = self.valloc(); vList = self.valloc(); vTail = self.valloc(); vZero = self.valloc()
        vPool = self.valloc(2, 2)
        vE = [self.valloc(2, 2), self.valloc(2, 2)]
        vTk = self.valloc(8, 2)
        vCS = vTk + 4
        vLK = self.valloc(4); vLV = self.valloc(2)
        vS = self.valloc(8, 4)
        vP = self.valloc(4, 4)
        vQ = self.valloc(16, 4)
        vKf = self.valloc(32, 4)
        vVf = self.valloc(8, 4)
        vO = self.valloc(8, 4)
        assert self.nv <= 112
        SQ, SB = 24, 28
        sCtx0, sCtx1 = 40, 41
        sW, sCs, sR, sFirst, sFirstD, sNp, sCt, sX = 52, 53, 54, 55, 56, 57, 58, 59
        sMk = [60, 62, 64, 66, 68, 70, 72, 74]
        sZ = 76
        sMsg = 78
        sK8 = 79
        sSp = [32, 33, 34, 35, 36, 37]
        sTg24, sTk = 80, 81

        e(f"v_and_b32 v{vLane}, 63, v0")
        e(f"s_sub_u32 s{sW}, s3, 1")
        e(f"v_lshrrev_b32 v{vT0}, 4, v{vLane}")
        e(f"v_and_b32 v{vT1}, 15, v{vLane}")
        e(f"s_lshl_b32 s{sT}, s{sC}, 2")
        e(f"v_lshlrev_b32 v{vA}, 7, v{vLane}")
        e(f"v_add_u32 v{vA}, s{sT}, v{vA}")
        e(f"s_and_b32 s{sT2}, s{sC}, {dom-1}")
        e(f"s_lshl_b32 s{sT}, s{sT2}, 2")
        e(f"s_add_u32 s{sT}, s{sT}, {4*J0}")
        e(f"v_mul_u32_u24 v{vTail}, {8*dom}, v{vLane}")
        e(f"v_add_u32 v{vTail}, s{sT}, v{vTail}")
        e(f"s_mul_i32 s{sCt}, s{sKVH}, {dom}")
        e(f"s_add_u32 s{sCt}, s{sCt}, s{sT2}")
        e(f"s_lshl_b32 s{sCt}, s{sCt}, 8")
        e(f"s_add_u32 s{sCt}, s{sCt}, {CT_OFF}")
        e(f"v_bfe_u32 v{vT2}, v{vLane}, 2, 1")
        e(f"v_mul_u32_u24 v{vShift}, 5, v{vT2}")
        e(f"v_lshlrev_b32 v{vT2}, 1, v{vT0}")
        e(f"v_xor_b32 v{vT2}, v{vT2}, v{vT1}")
        e(f"v_lshlrev_b32 v{vT2}, 4, v{vT2}")
        e(f"v_lshl_add_u32 v{vT2}, v{vT0}, 8, v{vT2}")
        e(f"s_lshl_b32 s{sT}, s{sKVH}, 10")
        e(f"v_add_u32 v{vNm}, s{sT}, v{vT2}")
        e(f"v_xor_b32 v{vM}, 128, v{vNm}")
        e(f"s_mov_b32 m0, {QL}")
        e(f"s_mov_b32 s{sK8}, 8192")
        e(f"s_lshl_b32 s{sT}, s{sKVH}, 8")
        e(f"s_add_u32 s{sT}, s{sT}, {EP_OFF}")
        e(f"v_mov_b32 v{vZero}, 0")
        e("s_waitcnt lgkmcnt(0)")
        e(f"s_load_dwordx2 s[{sCtx0}:{sCtx1}], s[16:17], 0")
        e(f"s_load_dword s{sTag}, s[22:23], s{sT}")
        srd(SB, 14, 16384)
        srd(SQ, 8, 16384)
        srd(SWS, 22, WS_REC)
        tb = vKf
        e(f"s_cmp_lg_u32 s{sW}, 0")
        e("s_cbranch_scc1 L_notab")
        e(f"buffer_load_dword v{tb}, v{vA}, s[{SB}:{SB+3}], 0 offen")
        e(f"buffer_load_dword v{tb+1}, v{vA}, s[{SB}:{SB+3}], s{sK8} offen")
        if K:
            e(f"buffer_load_dword v{tb+2}, v{vTail}, s[{SB}:{SB+3}], 0 offen")
            e(f"buffer_load_dword v{tb+3}, v{vTail}, s[{SB}:{SB+3}], 0 offen offset:{4*dom}")
            e(f"buffer_load_dword v{tb+4}, v{vTail}, s[{SB}:{SB+3}], s{sK8} offen")
            e(f"buffer_load_dword v{tb+5}, v{vTail}, s[{SB}:{SB+3}], s{sK8} offen offset:{4*dom}")
        lab("L_notab")
        e(f"s_cmp_lg_u32 s{sW}, {self.qw}")
        e("s_cbranch_scc1 L_noq")
        e(f"s_mov_b32 s{sT}, {8192-1024}")
        e(f"buffer_load_dwordx4 v{vNm}, s[{SQ}:{SQ+3}], 0 offen lds")
        e(f"buffer_load_dwordx4 v{vM}, s[{SQ}:{SQ+3}], s{sT} offen offset:1024 lds")
        lab("L_noq")
        if self.eb:
            e("s_barrier")
        vQA = vS + 4
        e(f"v_and_b32 v{vT3}, 7, v{vT1}")
        e(f"v_lshlrev_b32 v{vT2}, 1, v{vT3}")
        e(f"v_xor_b32 v{vT2}, v{vT2}, v{vT0}")
        e(f"v_lshlrev_b32 v{vT2}, 4, v{vT2}")
        e(f"v_lshl_add_u32 v{vQA}, v{vT3}, 8, v{vT2}")
        for c in range(1, 4):
            e(f"v_xor_b32 v{vQA+c}, {64*c}, v{vQA}")
        for k in range(2 * NSPEC):
            e(f"s_add_u32 s{sSp[k]}, s{sC}, {32*k}")
            e(f"s_lshl_b32 s{sSp[k]}, s{sSp[k]}, 15")
        e(f"v_xor_b32 v{vT2}, v{vT0}, v{vT1}")
        e(f"v_lshlrev_b32 v{vT2}, 4, v{vT2}")
        e(f"v_lshl_add_u32 v{vLK}, v{vT1}, 8, v{vT2}")
        for c in range(1, 4):
            e(f"v_xor_b32 v{vLK+c}, {64*c}, v{vLK}")
        e(f"v_lshlrev_b32 v{v4g}, 2, v{vT0}")
        e(f"v_lshrrev_b32 v{vT2}, 2, v{vLane}")
        e(f"v_and_b32 v{vT3}, 3, v{vLane}")
        e(f"v_lshlrev_b32 v{vT3}, 3, v{vT3}")
        e(f"v_lshl_add_u32 v{vT3}, v{vT2}, 8, v{vT3}")
        e(f"v_and_b32 v{vT2}, 7, v{vT2}")
        e(f"s_lshl_b32 s{sT}, s{sW}, 1")
        e(f"v_xor_b32 v{vT2}, s{sT}, v{vT2}")
        e(f"v_lshl_add_u32 v{vLV}, v{vT2}, 5, v{vT3}")
        e(f"v_xor_b32 v{vLV+1}, 32, v{vLV}")
        e(f"v_mov_b32 v{vNeg}, {hex(f2u(-2e30))}")
        e(f"v_mov_b32 v{vM}, {hex(f2u(-1e30))}")
        e(f"s_mov_b32 s{sCs}, {hex(f2u(CSCALE))}")
        e(f"v_mov_b32 v{vL}, 0")
        for k in range(8):
            e(f"v_mov_b32 v{vO+k}, 0")
        e(f"v_mov_b32 v{vList}, {LIST}")
        e(f"s_mov_b32 s{sR}, 0")
        if self.trace:
            e("v_mov_b32 v121, -1")
            e(f"v_lshlrev_b32 v122, 2, v{vLane}")
        e(f"s_mov_b32 s{sFirst}, {BIG}")
        e(f"s_mov_b32 s{sFirstD}, {BIG}")
        vMA = vLane
        e(f"s_lshl_b32 s{sMsg}, s{sKVH}, 17")
        e(f"s_lshl_b32 s{sT}, s{sC}, 7")
        e(f"s_add_u32 s{sMsg}, s{sMsg}, s{sT}")
        e(f"s_lshl_b32 s{sT}, s{sW}, 15")
        e(f"s_add_u32 s{sMsg}, s{sMsg}, s{sT}")
        e("s_waitcnt lgkmcnt(0)")
        e(f"s_add_u32 s{sTag}, s{sTag}, 1")
        e(f"s_cmp_gt_i32 s{sCtx0}, 0")
        e(f"s_cselect_b32 s{sZ}, 0, 0x0f0f0f0f")
        e(f"s_cselect_b32 s{sCtx0}, s{sCtx0}, 32768")
        e(f"s_cmp_gt_i32 s{sCtx1}, 0")
        e(f"s_cselect_b32 s{sZ+1}, 0, 0xf0f0f0f0")
        e(f"s_cselect_b32 s{sCtx1}, s{sCtx1}, 32768")
        e(f"s_or_b32 s{sZ}, s{sZ}, s{sZ+1}")
        e(f"s_mov_b32 s{sZ+1}, s{sZ}")
        e(f"s_min_i32 s{sCtx0}, s{sCtx0}, 32768")
        e(f"s_min_i32 s{sCtx1}, s{sCtx1}, 32768")
        e(f"s_cmp_lg_u32 s{sW}, 0")
        e("s_cbranch_scc1 L_nobuild")
        f0 = vS
        l0, l1, dp, ds_, px = vVf, vVf + 1, vVf + 2, vVf + 3, vVf + 4
        if K and not self.tkx:
            e("s_mov_b64 exec, 1")
            e(f"buffer_load_dwordx2 v[{vCS+2}:{vCS+3}], v{vZero}, s[{SWS}:{SWS+3}], s{sCt} offen sc1")
            e("s_mov_b64 exec, -1")
        if K and self.tkx:
            if self.sat:
                e(f"s_and_b32 s{sTg24}, s{sTag}, 0xffffff")
                e(f"v_mov_b32 v{vCS}, s{sTg24}")
            else:
                e(f"v_mov_b32 v{vCS}, s{sTag}")
                e(f"v_mov_b32 v{vCS+1}, 0")
            e(f"s_cmp_lt_u32 s{sC}, {dom}")
            e(f"s_cselect_b32 s{SWS+2}, s{SWS+2}, 0")
            e("s_mov_b64 exec, 1")
            if self.sat:
                e(f"buffer_atomic_swap v{vCS}, v{vZero}, s[{SWS}:{SWS+3}], s{sCt} offen sc0 sc1")
            else:
                e(f"buffer_atomic_swap_x2 v[{vCS}:{vCS+1}], v{vZero}, s[{SWS}:{SWS+3}], s{sCt} offen sc1")
            e("s_mov_b64 exec, -1")
            e(f"s_mov_b32 s{SWS+2}, {WS_REC}")
        e(f"v_cmp_gt_u32 vcc, {NMIN2//4}, v{vLane}")
        e(f"v_mov_b32 v{f0+1}, 0x400")
        e(f"v_lshlrev_b32 v{vT2}, 4, v{vLane}")
        e(f"v_cndmask_b32 v{f0}, 0, v{f0+1}, vcc")
        e(f"v_lshlrev_b32 v{vT3}, 2, v{vLane}")
        e(f"v_add_u32 v{vT2}, v{vList}, v{vT2}")
        e(f"v_add_u32 v{vT3}, v{vList}, v{vT3}")
        for k in range(1, 4):
            e(f"v_mov_b32 v{f0+k}, v{f0}")
        e(f"ds_write_b128 v{vT2}, v[{f0}:{f0+3}]")
        e(f"ds_write_b32 v{vT3}, v{vZero} offset:1024")
        e(f"v_lshlrev_b32 v{vT2}, 2, v{vA}")
        e(f"v_sub_u32 v{l0}, s{sCtx0}, v{vT2}")
        e(f"v_sub_u32 v{l1}, s{sCtx1}, v{vT2}")
        e(f"v_med3_i32 v{l0}, v{l0}, 0, 16")
        e(f"v_med3_i32 v{l1}, v{l1}, 0, 16")
        e(f"v_cmp_lt_u32 s[{sMk[0]}:{sMk[0]+1}], 0, v{l0}")
        e(f"v_cmp_lt_u32 s[{sMk[1]}:{sMk[1]+1}], 0, v{l1}")
        e(f"v_lshlrev_b32 v{l1}, 5, v{l1}")
        pm = 0
        for i in range(J0 // 32, (J0 + dom * K) // 32):
            pm |= 1 << i
        pm = ~pm & ((1 << 64) - 1)
        e(f"s_mov_b32 s{sMk[2]}, {hex(pm & 0xffffffff)}")
        e(f"s_mov_b32 s{sMk[2]+1}, {hex(pm >> 32)}")
        e(f"s_and_b64 s[{sMk[2]}:{sMk[2]+1}], s[{sMk[2]}:{sMk[2]+1}], s[{sMk[0]}:{sMk[0]+1}]")
        e(f"s_bcnt1_i32_b64 s{sT}, s[{sMk[2]}:{sMk[2]+1}]")
        e(f"v_mbcnt_lo_u32_b32 v{vT2}, s{sMk[2]}, 0")
        e(f"v_mbcnt_hi_u32_b32 v{vT2}, s{sMk[2]+1}, v{vT2}")
        e(f"v_lshl_add_u32 v{vT2}, v{vT2}, 2, v{vList}")
        nq = 2 if self.qw == 0 else 0
        e(f"s_waitcnt vmcnt({(5 if K else 0) + nq})")
        e(f"v_cmp_eq_u32 vcc, v{tb}, v{tb+1}")
        e(f"v_lshl_or_b32 v{dp}, v{tb}, 15, v{l0}")
        e(f"v_lshl_or_b32 v{ds_}, v{tb+1}, 15, v{l1}")
        e(f"s_and_b64 vcc, vcc, s[{sMk[0]}:{sMk[0]+1}]")
        e(f"s_andn2_b64 s[{sMk[3]}:{sMk[3]+1}], s[{sMk[1]}:{sMk[1]+1}], vcc")
        e(f"v_cndmask_b32 v{px}, 0, v{l1}, vcc")
        e(f"v_mov_b32 v{vT3}, s{sT}")
        e(f"v_or_b32 v{dp}, v{dp}, v{px}")
        e(f"v_mbcnt_lo_u32_b32 v{vT3}, s{sMk[3]}, v{vT3}")
        e(f"v_mbcnt_hi_u32_b32 v{vT3}, s{sMk[3]+1}, v{vT3}")
        e(f"v_lshl_add_u32 v{vT3}, v{vT3}, 2, v{vList}")
        e(f"s_mov_b64 exec, s[{sMk[2]}:{sMk[2]+1}]")
        e(f"ds_write_b32 v{vT2}, v{dp}")
        e(f"s_mov_b64 exec, s[{sMk[3]}:{sMk[3]+1}]")
        e(f"ds_write_b32 v{vT3}, v{ds_}")
        e("s_mov_b64 exec, -1")
        e(f"s_bcnt1_i32_b64 s{sT2}, s[{sMk[3]}:{sMk[3]+1}]")
        e(f"s_add_u32 s{sX}, s{sT}, s{sT2}")
        e(f"s_max_u32 s{sX}, s{sX}, {NMIN2}")
        if K:
            e(f"v_lshlrev_b32 v{vT2}, 2, v{vTail}")
            e(f"v_cmp_gt_u32 s[{sMk[2]}:{sMk[2]+1}], {K//2}, v{vLane}")
            e(f"s_mov_b32 s{sNp}, 0")
            e(f"s_waitcnt vmcnt({1 + nq})")
            for h in range(2):
                e(f"v_sub_u32 v{l0}, s{sCtx0}, v{vT2}")
                e(f"v_sub_u32 v{l1}, s{sCtx1}, v{vT2}")
                e(f"v_med3_i32 v{l0}, v{l0}, 0, 16")
                e(f"v_med3_i32 v{l1}, v{l1}, 0, 16")
                e(f"v_cmp_lt_u32 s[{sMk[0]}:{sMk[0]+1}], 0, v{l0}")
                e(f"v_cmp_eq_u32 vcc, v{tb+2+h}, v{tb+4+h}")
                e(f"v_lshl_or_b32 v{dp}, v{tb+2+h}, 15, v{l0}")
                e(f"s_and_b64 s[{sMk[0]}:{sMk[0]+1}], s[{sMk[0]}:{sMk[0]+1}], s[{sMk[2]}:{sMk[2]+1}]")
                e(f"v_cndmask_b32 v{l1}, 0, v{l1}, vcc")
                e(f"s_bcnt1_i32_b64 s{sT}, s[{sMk[0]}:{sMk[0]+1}]")
                e(f"v_lshl_or_b32 v{dp}, v{l1}, 5, v{dp}")
                e(f"s_add_u32 s{sNp}, s{sNp}, s{sT}")
                e(f"v_cndmask_b32 v{vPool+h}, 0, v{dp}, s[{sMk[0]}:{sMk[0]+1}]")
                if h == 0:
                    e(f"v_add_u32 v{vT2}, {16*dom}, v{vT2}")
            if NF2:
                e(f"s_sub_i32 s{sT}, s{sNp}, {self.FT}")
                e(f"v_lshlrev_b32 v{l0}, 1, v{vLane}")
                e(f"v_cmp_le_i32 vcc, s{sT}, v{l0}")
                e(f"v_mov_b32 v{l1}, 0x800")
                e(f"v_cmp_ne_u32 s[{sMk[0]}:{sMk[0]+1}], 0, v{vPool+1}")
                e(f"v_cndmask_b32 v{l1}, 0, v{l1}, vcc")
                e(f"v_or_b32 v{vPool}, v{vPool}, v{l1}")
                e(f"v_cndmask_b32 v{l1}, 0, v{l1}, s[{sMk[0]}:{sMk[0]+1}]")
                e(f"v_or_b32 v{vPool+1}, v{vPool+1}, v{l1}")
            e(f"s_lshl_b32 s{sT}, s{sX}, 2")
            e(f"v_add_u32 v{vTail}, s{sT}, v{vList}")
            e(f"s_lshr_b32 s{sT}, s{sX}, 1")
            e(f"s_sub_u32 s{sT}, s{sT}, {D+LA}")
            e(f"s_add_u32 s{sT2}, s{sT}, {D}")
            e(f"s_cmp_lg_u32 s{sNp}, 0")
            e(f"s_cselect_b32 s{sFirst}, s{sT}, s{sFirst}")
            e(f"s_cselect_b32 s{sFirstD}, s{sT2}, s{sFirstD}")
            if not self.tkx:
                e(f"v_mov_b32 v{vCS}, 0")
                e(f"v_mov_b32 v{vCS+1}, s{sTag}")
        if nq:
            e(f"s_waitcnt vmcnt({1 if K else 0})")
        e("s_branch L_built")
        lab("L_nobuild")
        e("s_waitcnt vmcnt(0)")
        lab("L_built")
        e(f"v_lshrrev_b32 v{vT2}, 3, v{vT1}")
        e(f"v_lshl_add_u32 v{vT2}, v{vT2}, 2, v{vT0}")
        e(f"v_and_b32 v{vT3}, 7, v{vT1}")
        e(f"v_lshlrev_b32 v{vT3}, 4, v{vT3}")
        e(f"v_lshl_add_u32 v{vMA}, v{vT2}, 12, v{vT3}")
        e(f"v_mul_f32 v{vNm}, s{sCs}, v{vM}")
        if self.probe and self.probe != 20:
            e(f"s_cmp_lg_u32 s{sW}, 3")
            e("s_cbranch_scc1 L_nopost")
            srd(48, 20, 256)
            e("s_not_b32 s82, s82")
            e(f"v_mov_b32 v{vT3}, s82")
            e("s_mov_b64 exec, 1")
            e(f"buffer_atomic_umax v{vT3}, v{vZero}, s[48:51], 0 offen sc1")
            e("s_mov_b64 exec, -1")
            lab("L_nopost")
        e("s_waitcnt lgkmcnt(0)")
        self.stamp(0)

        def pv_reads(buf, extra=0):
            o = buf * 16384 + 8192
            for jj in range(2):
                e(f"ds_read_b64_tr_b16 v[{vVf+4*jj}:{vVf+4*jj+1}], v{vLV+jj} offset:{o}")
                e(f"ds_read_b64_tr_b16 v[{vVf+4*jj+2}:{vVf+4*jj+3}], v{vLV+jj} offset:{o+4096}")

        def pv_mfma(jj):
            e(f"v_mfma_f32_16x16x32_bf16 v[{vO+4*jj}:{vO+4*jj+3}], v[{vVf+4*jj}:{vVf+4*jj+3}], v[{vP}:{vP+3}], v[{vO+4*jj}:{vO+4*jj+3}]")

        def round_(r, first, tag):
            cur, nxt = vE[r & 1], vE[(r + 1) & 1]
            so = r * 16384
            def masks(cur):
                for u in range(2):
                    e(f"v_bfe_u32 v{vT0+u}, v{cur+u}, v{vShift}, 5")
                    e(f"v_sub_u32 v{vT0+u}, v{vT0+u}, v{v4g}")
                for u in range(2):
                    for k in range(4):
                        e(f"v_cmp_lt_i32 s[{sMk[4*u+k]}:{sMk[4*u+k]+1}], {k}, v{vT0+u}")
                for k in range(8):
                    e(f"v_cndmask_b32 v{vS+k}, v{vNeg}, 0, s[{sMk[k]}:{sMk[k]+1}]")

            def k_reads():
                for c in range(4):
                    e(f"ds_read_b128 v[{vKf+4*c}:{vKf+4*c+3}], v{vLK+c} offset:{so}")
                    e(f"ds_read_b128 v[{vKf+16+4*c}:{vKf+16+4*c+3}], v{vLK+c} offset:{so+4096}")

            def request():
                e(f"s_cmp_lt_u32 s{sR}, s{sFirst}")
                e(f"s_cbranch_scc1 L_noreq{tag}")
                e("s_mov_b64 exec, 1")
                e(f"v_mov_b32 v{vTk+2*r+1}, 1")
                if self.tkx:
                    e(f"v_mov_b32 v{vTk+2*r}, 0")
                    e(f"buffer_atomic_add_x2 v[{vTk+2*r}:{vTk+2*r+1}], v{vZero}, s[{SWS}:{SWS+3}], s{sCt} offen sc0 sc1")
                else:
                    e(f"buffer_atomic_add v{vTk+2*r+1}, v{vZero}, s[{SWS}:{SWS+3}], s{sCt} offen sc0 sc1")
                e("s_mov_b64 exec, -1")
                lab(f"L_noreq{tag}")
            if not self.nocompute and not first:
                masks(cur)
            e("s_barrier")
            if first:
                self.stamp(1)
                e(f"ds_read_b128 v[{vP}:{vP+3}], v{vList}")
                if NSPEC == 3:
                    e(f"ds_read_b64 v[{vVf}:{vVf+1}], v{vList} offset:16")
                for c in range(4):
                    e(f"ds_read_b128 v[{vQ+4*c}:{vQ+4*c+3}], v{vQA+c} offset:{QL}")
                k_reads()
                e("s_waitcnt lgkmcnt(12)")
                ent = [vP, vP + 1, vP + 2, vP + 3, vVf, vVf + 1]
                x = vVf + 2
                for k in range(2 * NSPEC):
                    e(f"v_xor_b32 v{x+k}, s{sSp[k]}, v{ent[k]}")
                    e(f"v_subrev_u32 v{x+k}, 1, v{x+k}")
                e(f"v_max3_u32 v{x}, v{x}, v{x+1}, v{x+2}")
                if NSPEC == 3:
                    e(f"v_max3_u32 v{x}, v{x}, v{x+4}, v{x+5}")
                e(f"v_max_u32 v{x}, v{x}, v{x+3}")
                e(f"v_mov_b32 v{nxt}, v{vP+2}")
                e(f"v_mov_b32 v{nxt+1}, v{vP+3}")
                e(f"v_cmp_gt_u32 vcc, 0x3ff, v{x}")
                e("s_cbranch_vccnz L_cspec_ok")
                e("s_waitcnt lgkmcnt(0)")
                e("s_barrier")
                k_reads()
                e("s_waitcnt lgkmcnt(0)")
                lab("L_cspec_ok")
                masks(vP)
                e(f"s_cmp_eq_u32 s{sZ}, 0")
                e("s_cbranch_scc1 L_q_ok")
                e("s_waitcnt lgkmcnt(8)")
                for k in range(16):
                    e(f"v_cndmask_b32 v{vQ+k}, v{vQ+k}, 0, s[{sZ}:{sZ+1}]")
                e("s_nop 1")
                lab("L_q_ok")
            else:
                if not self.nocompute:
                    pv_reads((r + 3) % 4)
                    k_reads()
                e(f"ds_read_b64 v[{nxt}:{nxt+1}], v{vList} offset:{8*(r+1)}")
                if K and not self.sat:
                    request()
            if not self.nocompute:
                if not first:
                    e("s_waitcnt lgkmcnt(11)")
                    pv_mfma(0)
                    e("s_waitcnt lgkmcnt(9)")
                    pv_mfma(1)
                for c in range(4):
                    for u in range(2):
                        e(f"s_waitcnt lgkmcnt({(7 if first else 8)-2*c-u})")
                        e(f"v_mfma_f32_16x16x32_bf16 v[{vS+4*u}:{vS+4*u+3}], v[{vKf+16*u+4*c}:{vKf+16*u+4*c+3}], v[{vQ+4*c}:{vQ+4*c+3}], v[{vS+4*u}:{vS+4*u+3}]")
                e("s_nop 7")
                e(f"v_max3_f32 v{vT0}, v{vS}, v{vS+1}, v{vS+2}")
                e(f"v_max3_f32 v{vT1}, v{vS+4}, v{vS+5}, v{vS+6}")
                e(f"v_max3_f32 v{vT0}, v{vT0}, v{vS+3}, v{vM}")
                e(f"v_max3_f32 v{vT0}, v{vT0}, v{vT1}, v{vS+7}")
                e(f"v_cmp_gt_f32 vcc, v{vT0}, v{vM}")
                e(f"s_cbranch_vccz L_skip{tag}")
                e(f"v_mov_b32 v{vT1}, v{vT0}")
                e("s_nop 1")
                e(f"v_permlane32_swap_b32 v{vT0}, v{vT1}")
                e("s_nop 0")
                e(f"v_max_f32 v{vT0}, v{vT0}, v{vT1}")
                e(f"v_mov_b32 v{vT1}, v{vT0}")
                e("s_nop 1")
                e(f"v_permlane16_swap_b32 v{vT0}, v{vT1}")
                e("s_nop 0")
                e(f"v_max_f32 v{vT0}, v{vT0}, v{vT1}")
                e(f"v_sub_f32 v{vA}, v{vM}, v{vT0}")
                e(f"v_mul_f32 v{vA}, s{sCs}, v{vA}")
                e(f"v_exp_f32 v{vA}, v{vA}")
                e(f"v_mov_b32 v{vM}, v{vT0}")
                e(f"v_mul_f32 v{vNm}, s{sCs}, v{vT0}")
                e(f"v_mul_f32 v{vL}, v{vL}, v{vA}")
                for k in range(8):
                    e(f"v_mul_f32 v{vO+k}, v{vO+k}, v{vA}")
                lab(f"L_skip{tag}")
                for k in range(8):
                    e(f"v_fma_f32 v{vS+k}, v{vS+k}, s{sCs}, -v{vNm}")
                for k in range(8):
                    e(f"v_exp_f32 v{vS+k}, v{vS+k}")
                e("s_nop 0")
                for k in range(4):
                    e(f"v_cvt_pk_bf16_f32 v{vP+k}, v{vS+2*k}, v{vS+2*k+1}")
                e(f"v_pk_add_f32 v[{vS}:{vS+1}], v[{vS}:{vS+1}], v[{vS+2}:{vS+3}]")
                e(f"v_pk_add_f32 v[{vS+4}:{vS+5}], v[{vS+4}:{vS+5}], v[{vS+6}:{vS+7}]")
                e(f"v_pk_add_f32 v[{vS}:{vS+1}], v[{vS}:{vS+1}], v[{vS+4}:{vS+5}]")
                e(f"v_add_f32 v{vL}, v{vL}, v{vS}")
                e(f"v_add_f32 v{vL}, v{vL}, v{vS+1}")
            if K and first and self.tkx and not self.sat:
                request()
            if K and first and not self.tkx:
                e(f"s_cmp_lg_u32 s{sW}, 0")
                e("s_cbranch_scc1 L_claimed")
                e("s_waitcnt vmcnt(0)")
                e(f"v_readfirstlane_b32 s{sT}, v{vCS+3}")
                e(f"s_cmp_eq_u32 s{sT}, s{sTag}")
                e("s_cbranch_scc1 L_claimed")
                e("s_mov_b64 exec, 1")
                e(f"buffer_atomic_cmpswap_x2 v[{vCS}:{vCS+3}], v{vZero}, s[{SWS}:{SWS+3}], s{sCt} offen sc1")
                e("s_mov_b64 exec, -1")
                lab("L_claimed")
                request()
            if K and self.sat:
                e(f"s_cmp_lt_u32 s{sR}, s{sFirst}")
                e("s_waitcnt lgkmcnt(0)")
                e(f"s_cbranch_scc1 L_noproc{tag}")
                e(f"s_cmp_lt_u32 s{sR}, s{sFirstD}")
                e(f"s_cbranch_scc1 L_req{tag}")
                e(f"s_xor_b32 s{sX}, s{sTk}, s{sTg24}")
                e(f"s_and_b32 s{sT}, s{sX}, 0xffffff")
                e(f"s_cbranch_scc1 L_done{tag}")
                e(f"s_lshr_b32 s{sX}, s{sX}, 24")
                if self.trace in (1, 2):
                    e(f"s_lshl_b64 exec, 1, s{sR}")
                    e(f"v_mov_b32 v121, s{sX}")
                    e("s_mov_b64 exec, -1")
                e(f"s_lshl_b32 s{sT}, s{sX}, 1")
                e(f"s_cmp_ge_u32 s{sT}, s{sNp}")
                e(f"s_cbranch_scc1 L_done{tag}")
                e(f"s_lshl_b64 exec, 1, s{sX}")
                e(f"ds_write2_b32 v{vTail}, v{vPool}, v{vPool+1} offset0:0 offset1:1")
                e("s_mov_b64 exec, -1")
                e(f"v_add_u32 v{vTail}, 8, v{vTail}")
                e(f"s_add_u32 s{sT}, s{sT}, 2")
                e(f"s_cmp_lt_u32 s{sT}, s{sNp}")
                e("s_waitcnt lgkmcnt(0)")
                e(f"s_cbranch_scc0 L_done{tag}")
                lab(f"L_req{tag}")
                e(f"s_mov_b32 s{sTk}, 0x1000000")
                e("s_waitcnt vmcnt(0)")
                if self.trace == 3:
                    e("s_memrealtime s[84:85]")
                    e("s_waitcnt lgkmcnt(0)")
                e(f"s_atomic_add s{sTk}, s[22:23], s{sCt} glc")
                if self.trace == 3:
                    e("s_waitcnt lgkmcnt(0)")
                    e("s_memrealtime s[86:87]")
                    e("s_waitcnt lgkmcnt(0)")
                    e("s_sub_u32 s86, s86, s84")
                    e("s_lshl_b32 s84, s84, 8")
                    e("s_and_b32 s84, s84, 0x7fffff00")
                    e("s_min_u32 s86, s86, 255")
                    e("s_or_b32 s86, s86, s84")
                    e(f"s_lshl_b64 exec, 1, s{sR}")
                    e(f"v_mov_b32 v121, s86")
                    e("s_mov_b64 exec, -1")
                e(f"s_branch L_noproc{tag}")
                lab(f"L_done{tag}")
                e(f"s_mov_b32 s{sFirst}, {BIG}")
                lab(f"L_noproc{tag}")
            if K and not self.sat:
                e(f"s_cmp_lt_u32 s{sR}, s{sFirstD}")
                e(f"s_cbranch_scc1 L_noproc{tag}")
                e(f"s_waitcnt vmcnt({D})")
                e(f"v_readfirstlane_b32 s{sX}, v{vTk+2*((r-D)%4)+1}")
                if self.tkx:
                    e(f"v_readfirstlane_b32 s{sT}, v{vTk+2*((r-D)%4)}")
                    e(f"s_cmp_lg_u32 s{sT}, s{sTag}")
                    e(f"s_cbranch_scc1 L_done{tag}")
                if self.trace:
                    e(f"s_lshl_b64 exec, 1, s{sR}")
                    e(f"v_mov_b32 v121, s{sX}")
                    e("s_mov_b64 exec, -1")
                e(f"s_lshl_b32 s{sT}, s{sX}, 1")
                e(f"s_cmp_ge_u32 s{sT}, s{sNp}")
                e(f"s_cbranch_scc1 L_done{tag}")
                e(f"s_lshl_b64 exec, 1, s{sX}")
                e(f"ds_write2_b32 v{vTail}, v{vPool}, v{vPool+1} offset0:0 offset1:1")
                e("s_mov_b64 exec, -1")
                e(f"v_add_u32 v{vTail}, 8, v{vTail}")
                e(f"s_add_u32 s{sT}, s{sT}, 2")
                e(f"s_cmp_lt_u32 s{sT}, s{sNp}")
                e(f"s_cbranch_scc1 L_noproc{tag}")
                lab(f"L_done{tag}")
                e(f"s_mov_b32 s{sFirst}, {BIG}")
                e(f"s_mov_b32 s{sFirstD}, {BIG}")
                lab(f"L_noproc{tag}")
            if not (K and self.sat):
                e("s_waitcnt lgkmcnt(0)")
            e(f"v_readfirstlane_b32 s{sX}, v{nxt}")
            e(f"s_add_u32 s{sR}, s{sR}, 1")
            if r == 3:
                e(f"v_add_u32 v{vList}, 32, v{vList}")
            e(f"s_mov_b32 s{sT2}, {so}")
            e(f"s_cmp_eq_u32 s{sX}, 0")

        round_(0, True, "f")
        e("s_branch L_r1")
        lab("L_r0")
        for r in range(4):
            if r == 1:
                lab("L_r1")
            round_(r, False, str(r))
            if r < 3:
                e("s_cbranch_scc1 L_fin")
            else:
                e("s_cbranch_scc0 L_r0")
        lab("L_fin")
        e(f"v_add_u32 v{vLV}, s{sT2}, v{vLV}")
        e(f"v_add_u32 v{vLV+1}, s{sT2}, v{vLV+1}")
        e(f"v_mov_b32 v{vT1}, v{vL}")
        e(f"s_mov_b32 s{sMk[0]}, 0xff00ff00")
        e(f"s_mov_b32 s{sMk[0]+1}, 0xff00ff00")
        e(f"v_permlane32_swap_b32 v{vL}, v{vT1}")
        e("s_nop 0")
        e(f"v_add_f32 v{vL}, v{vL}, v{vT1}")
        e(f"v_mov_b32 v{vT1}, v{vL}")
        e("s_nop 1")
        e(f"v_permlane16_swap_b32 v{vL}, v{vT1}")
        e("s_nop 0")
        e(f"v_add_f32 v{vL}, v{vL}, v{vT1}")
        e(f"v_max_f32 v{vL}, {hex(f2u(1e-30))}, v{vL}")
        e(f"v_rcp_f32 v{vA}, v{vL}")
        e(f"v_log_f32 v{vL}, v{vL}")
        e(f"v_mov_b32 v{vS+3}, s{sTag}")
        e(f"v_add_f32 v{vS+2}, v{vNm}, v{vL}")
        if self.stamps:
            e(f"v_mov_b32 v{self.vSt[6]}, s{sR}")
        e("s_barrier")
        self.stamp(2)
        pv_reads(0)
        e("s_waitcnt lgkmcnt(2)")
        pv_mfma(0)
        e("s_waitcnt lgkmcnt(0)")
        pv_mfma(1)
        e("s_nop 7")
        for k in range(4):
            e(f"v_cndmask_b32 v{vO+k}, v{vO+k}, v{vO+4+k}, s[{sMk[0]}:{sMk[0]+1}]")
        for k in range(4):
            e(f"v_mul_f32 v{vO+k}, v{vO+k}, v{vA}")
        e(f"v_cvt_pk_bf16_f32 v{vS}, v{vO}, v{vO+1}")
        e(f"v_cvt_pk_bf16_f32 v{vS+1}, v{vO+2}, v{vO+3}")
        e(f"buffer_store_dwordx4 v[{vS}:{vS+3}], v{vMA}, s[{SWS}:{SWS+3}], s{sMsg} offen {FL[self.msgf]}")
        self.stamp(3)
        if self.stamps:
            e("s_waitcnt vmcnt(0)")
            self.stamp(4)
        if self.trace:
            e(f"s_cmp_lg_u32 s{sW}, 0")
            e("s_cbranch_scc1 L_notr")
            e("s_lshl_b32 s88, s2, 9")
            e(f"s_add_u32 s88, s88, {STAMP_OFF + 0x10000 + 256}")
            e(f"buffer_store_dword v121, v122, s[{SWS}:{SWS+3}], s88 offen")
            lab("L_notr")
        self.flush_stamps()
        e("s_endpgm")

        nvg = 128 if self.stamps else (max(self.nv, 100) + 7) // 8 * 8
        out = HEADER
        out += f"; @launch grid=(256,1,1) block=(320,1,1) lds={lds}\n"
        out += '.amdgcn_target "amdgcn-amd-amdhsa--gfx950"\n.text\n'
        out += f".globl {NAME}_kernel\n.p2align 8\n.type {NAME}_kernel,@function\n{NAME}_kernel:\n"
        out += "\n".join(self.lines) + "\n"
        out += f""".section .rodata,"a"
.p2align 6
.amdhsa_kernel {NAME}_kernel
  .amdhsa_next_free_vgpr {nvg}
  .amdhsa_next_free_sgpr {100 if self.probe else 96}
  .amdhsa_accum_offset {nvg}
  .amdhsa_group_segment_fixed_size 0
  .amdhsa_kernarg_size 64
  .amdhsa_user_sgpr_count 2
  .amdhsa_user_sgpr_kernarg_segment_ptr 1
  .amdhsa_system_sgpr_workgroup_id_x 1
.end_amdhsa_kernel
"""
        return out


if __name__ == "__main__":
    path = sys.argv[1]
    kw = {}
    for a in sys.argv[2:]:
        k, v = a.split("=")
        kw[k] = int(v)
    open(path, "w").write(Gen(**kw).build())
```

```python
import sys, subprocess, re
from gen import NAME, HEADER, f2u, KVBYTES, CSCALE

EP_OFF = 0x100000
CT_OFF = 0x101000
STAMP_OFF = 0x400000
WS_REC = 0x800000
POLL_MAX = 200000
LIST = 65536
FL = ['', 'sc1', 'sc0 sc1', 'sc1 nt', 'sc0 sc1 nt', 'nt', 'sc0', 'sc0 nt']
CLANG = "clang"
OBJDUMP = "llvm-objdump"


class Gen:
    def __init__(self, NF=20, J0=192, K=96, dom=2, stamps=0, prio=3, pd=16, slp=0, clr=1, clrf=1, touch=1, al=1, st=17,
                 msgf=1, pollf=1, outf=0, trace=0, pb=0, verbose=0, eb=1, tlb=0, tl2=0, tlf=0,
                 fake=0, pr1=0, pr2=0, pbase=0, kv=0, kve=34, wq=0, cts=0, vt=0, vtf=2, probe=0, pa=88, pz=88, psh=0, pneg=0):
        self.__dict__.update(locals())
        assert 16 <= NF <= 24
        assert 0 < K <= 128 and K % 2 == 0 and J0 % 32 == 0 and (dom * K) % 32 == 0 and J0 >= 128
        assert dom in (1, 2, 4)
        self.hot, self.cold, self.post = [], [], []
        self.cur = self.hot
        self.nv = 0

    def e(self, s):
        self.cur.append("    " + s)

    def lab(self, s):
        self.cur.append(s + ":")

    def valloc(self, n=1, align=1):
        self.nv = (self.nv + align - 1) // align * align
        r = self.nv
        self.nv += n
        return r

    def stamp(self, idx):
        if not self.stamps:
            return
        e = self.e
        e("s_memrealtime s[90:91]")
        e("s_waitcnt lgkmcnt(0)")
        e(f"v_mov_b32 v{self.vSt[idx]}, s90")

    def finish(self):
        if self.stamps:
            self.e("s_branch L_flush")
        else:
            self.e("s_endpgm")

    def body(self):
        NF, J0, K, dom = self.NF, self.J0, self.K, self.dom
        e, lab = self.e, self.lab
        D = max(1, self.vt)
        INC = "0x6b43a9b5" if self.wq else "1"
        ib = (7 + NF) % 16
        assert (7 + NF) // 16 == 1
        LA = 3
        NF0 = 16 + ib
        QL = 49152
        NMIN2 = (2 * (D + LA) + 3) // 4 * 4
        self.lds = LIST + 1280
        sKVH, sC, sT, sT2, sTag = 4, 5, 6, 7, 42
        SWS = 44
        if self.stamps:
            self.vSt = list(range(112, 120))
            self.vStT = 120

        self.nv = 1
        vLane = self.valloc()
        vT0 = self.valloc(); vT1 = self.valloc(); vT2 = self.valloc(); vT3 = self.valloc()
        vM = self.valloc(); vL = self.valloc(); vNm = self.valloc()
        vShift = self.valloc(); v4g = self.valloc(); vNeg = self.valloc()
        vA = self.valloc(); vList = self.valloc(); vTail = self.valloc(); vZero = self.valloc()
        vPool = self.valloc(2, 2)
        vE = self.valloc(2, 2)
        vMA = self.valloc(); vCS = self.valloc()
        vTk = self.valloc() if self.vt else None
        vLK = self.valloc(4); vLV = self.valloc(2)
        vKa = self.valloc(4); vVa = self.valloc(2)
        vS = self.valloc(8, 4)
        vP = self.valloc(4, 4)
        vVf = self.valloc(8, 4)
        vO = self.valloc(8, 4)
        vQ = self.valloc(16, 4)
        vKf = self.valloc(32, 4)
        assert vVf == vP + 4 and vO == vVf + 8
        assert self.nv <= 112
        SQ, SB = 8, 12
        sC16 = 24
        sCtx0, sCtx1 = 40, 41
        sW, sCs, sR, sFirst, sSlot, sNp, sCt, sX = 52, 53, 54, 55, 56, 57, 58, 59
        sMk = [60, 62, 64, 66]
        sZ = 68
        sMsg, sK8, sTg24, sTk, sEPc = 70, 71, 72, 73, 74
        tb = vKf

        e(f"s_lshr_b32 s{sT}, s2, 8")
        e("s_cbranch_scc1 L_exit")
        if self.stamps:
            for i in range(8):
                e(f"v_mov_b32 v{self.vSt[i]}, 0")
            self.stamp(7)
        if self.probe:
            e("s_memrealtime s[82:83]")
        e("s_load_dwordx16 s[8:23], s[0:1], 0")
        e("v_lshrrev_b32 v1, 6, v0")
        e(f"s_lshr_b32 s{sT}, s2, 5")
        e(f"s_xor_b32 s{sT}, s{sT}, s2")
        e("v_readfirstlane_b32 s3, v1")
        e(f"s_and_b32 s{sKVH}, s{sT}, 7")
        e(f"s_lshr_b32 s{sC}, s2, 3")
        e(f"s_lshl_b32 s{sEPc}, s{sKVH}, 8")
        e(f"v_and_b32 v{vLane}, 63, v0")
        e(f"s_movk_i32 s{sC16}, 0x4000")
        e(f"s_mov_b32 s{sC16+1}, 0x00020000")
        e(f"v_lshrrev_b32 v{vT0}, 4, v{vLane}")
        e(f"v_and_b32 v{vT1}, 15, v{vLane}")
        e("s_cmp_eq_u32 s3, 0")
        e("s_cbranch_scc1 L_loader")
        e(f"s_bitset1_b32 s{sEPc}, 20")
        assert EP_OFF == 1 << 20
        if self.touch == 1:
            for w in (2, 3, 4):
                e(f"s_cmp_eq_u32 s3, {w}")
                e(f"s_cbranch_scc1 L_touch{w-1}")
        else:
            e("s_cmp_lg_u32 s3, 1")
            e("s_cbranch_scc1 L_eb")
        e(f"s_lshl_b32 s{sT}, s{sC}, 2")
        e(f"v_lshl_add_u32 v{vA}, v{vLane}, 7, s{sT}")
        e(f"s_and_b32 s{sT}, s{sT}, {4*(dom-1)}")
        e(f"s_addk_i32 s{sT}, {4*J0}")
        e(f"v_lshl_add_u32 v{vTail}, v{vLane}, {(8*dom).bit_length()-1}, s{sT}")
        e(f"v_lshlrev_b32 v{vT2}, 1, v{vT0}")
        e(f"v_xor_b32 v{vT2}, v{vT2}, v{vT1}")
        e(f"s_lshl_b32 s{sT}, s{sKVH}, 10")
        e(f"v_lshl_add_u32 v{vT3}, v{vT0}, 8, s{sT}")
        e(f"v_lshl_add_u32 v{vT2}, v{vT2}, 4, v{vT3}")
        e(f"v_xor_b32 v{vT3}, 128, v{vT2}")
        e(f"s_mov_b32 m0, {QL}")
        e(f"s_movk_i32 s{sK8}, 8192")
        e(f"s_movk_i32 s{sT}, {8192-1024}")
        e("s_waitcnt lgkmcnt(0)")
        e(f"s_mov_b64 s[{SB}:{SB+1}], s[14:15]")
        e(f"s_mov_b64 s[{SB+2}:{SB+3}], s[{sC16}:{sC16+1}]")
        e(f"s_load_dwordx2 s[{sCtx0}:{sCtx1}], s[16:17], 0")
        e(f"s_load_dword s{sTag}, s[22:23], s{sEPc}")
        e(f"buffer_load_dword v{tb}, v{vA}, s[{SB}:{SB+3}], 0 offen")
        e(f"buffer_load_dword v{tb+1}, v{vA}, s[{SB}:{SB+3}], s{sK8} offen")
        e(f"s_mov_b64 s[{SQ+2}:{SQ+3}], s[{sC16}:{sC16+1}]")
        e(f"buffer_load_dword v{tb+2}, v{vTail}, s[{SB}:{SB+3}], 0 offen")
        e(f"buffer_load_dword v{tb+3}, v{vTail}, s[{SB}:{SB+3}], 0 offen offset:{4*dom}")
        e(f"buffer_load_dword v{tb+4}, v{vTail}, s[{SB}:{SB+3}], s{sK8} offen")
        e(f"buffer_load_dword v{tb+5}, v{vTail}, s[{SB}:{SB+3}], s{sK8} offen offset:{4*dom}")
        e(f"buffer_load_dwordx4 v{vT2}, s[{SQ}:{SQ+3}], 0 offen lds")
        e(f"buffer_load_dwordx4 v{vT3}, s[{SQ}:{SQ+3}], s{sT} offen offset:1024 lds")
        if self.eb:
            e("s_barrier")
        e("s_branch L_cons")
        lab("L_eb")
        if self.eb:
            e("s_barrier")
        if self.touch == 2:
            for w in (2, 3):
                e(f"s_cmp_eq_u32 s3, {w}")
                e(f"s_cbranch_scc1 L_touch{w-1}")
            e("s_branch L_touch3")
            lab("L_eb2")
        if self.tlb:
            e(f"s_mul_i32 s28, s{sC}, 3")
            e("s_add_u32 s28, s28, s3")
            e("s_sub_u32 s28, s28, 2")
            e("s_lshl_b32 s28, s28, 20")
            if self.tlb >= 3:
                e("s_bitcmp1_b32 s28, 20")
                e("s_bitset0_b32 s28, 20")
            assert KVBYTES == 96 << 20
        e("s_waitcnt lgkmcnt(0)")
        if self.tlb >= 3:
            e("s_cselect_b64 s[10:11], s[12:13], s[10:11]")
        e(f"s_load_dwordx2 s[{sCtx0}:{sCtx1}], s[16:17], 0")
        e(f"s_load_dword s{sTag}, s[22:23], s{sEPc}")
        if self.tlb in (1, 4):
            e("s_load_dword s29, s[10:11], s28")
        if self.tlb == 1:
            e("s_load_dword s30, s[12:13], s28")
        e("s_branch L_cons")

        lab("L_loader")
        vOffK, vOffV = 8, 12
        vL_, vD = 16, 20
        vPA, vOA = 17, 18
        SKA, SKB, SVA, SVB, SO = 28, 32, 36, 48, 16
        sA, sB, sFull, sM1, sM2 = 52, 53, 54, 55, 56
        sE = [58, 59, 60, 61]
        sP = [62, 63, sA, sB]
        sMB, sOO, sXM = 68, 69, 40
        g, i16 = vT0, vT1
        if self.prio:
            e(f"s_setprio {self.prio}")
        e(f"v_lshl_add_u32 v4, v{g}, 11, s{sEPc}")
        e(f"v_xor_b32 v{vOffK}, v{g}, v{i16}")
        e(f"v_lshl_add_u32 v{vOffK}, v{vOffK}, 4, v4")
        e(f"v_lshlrev_b32 v5, 1, v{g}")
        e(f"v_xor_b32 v{vOffV}, v5, v{i16}")
        e(f"v_lshl_add_u32 v{vOffV}, v{vOffV}, 4, v4")
        e(f"s_movk_i32 s{sT}, 7168")
        e(f"s_movk_i32 s{sT2}, {2*7168}")
        e(f"v_xad_u32 v{vOffK+1}, v{vOffK}, 64, s{sT}")
        e(f"v_xor_b32 v{vOffK+2}, 128, v{vOffK}")
        e(f"v_add_u32 v{vOffK+2}, s{sT2}, v{vOffK+2}")
        e(f"v_xad_u32 v{vOffK+3}, v{vOffK+2}, 64, s{sT}")
        e(f"v_xor_b32 v{vOffV+1}, 128, v{vOffV}")
        e(f"v_add_u32 v{vOffV+2}, s{sT2}, v{vOffV}")
        e(f"v_add_u32 v{vOffV+1}, s{sT}, v{vOffV+1}")
        e(f"v_add_u32 v{vOffV+3}, s{sT2}, v{vOffV+1}")
        e(f"s_lshl_b32 s{sP[0]}, s{sC}, 15")
        e(f"s_bitset1_b32 s{sEPc}, 20")
        for k in range(1, 4):
            e(f"s_add_u32 s{sP[k]}, s{sP[0]}, {32*k << 15}")
        e(f"s_mov_b32 s{sFull}, {KVBYTES}")
        e(f"s_mov_b32 s{SKA+2}, s{sFull}")
        e(f"s_mov_b32 s{SKA+3}, s{sC16+1}")
        for S in (SKB, SVA, SVB):
            e(f"s_mov_b64 s[{S+2}:{S+3}], s[{SKA+2}:{SKA+3}]")
        e("s_mov_b32 m0, 0")
        e("s_waitcnt lgkmcnt(0)")
        e(f"s_mov_b64 s[{SKA}:{SKA+1}], s[10:11]")
        e(f"s_mov_b64 s[{SKB}:{SKB+1}], s[10:11]")
        e(f"s_mov_b64 s[{SVA}:{SVA+1}], s[12:13]")
        e(f"s_mov_b64 s[{SVB}:{SVB+1}], s[12:13]")
        if self.kv:
            e("s_add_u32 s64, s10, 0x10000000"); e("s_addc_u32 s65, s11, 0")
            e("s_add_u32 s66, s12, 0x10000000"); e("s_addc_u32 s67, s13, 0")
            e(f"s_mov_b64 s[{SVA}:{SVA+1}], s[64:65]")
            e(f"s_mov_b64 s[{SVB}:{SVB+1}], s[64:65]")
            e("s_mov_b32 s70, 2"); e("s_mov_b32 s71, 2"); e("s_mov_b32 s72, 0")
        if self.eb:
            e("s_barrier")

        def load(p, sa, sb):
            grp, i = p // 4, p % 4
            S = (SKA, SKB, SVA, SVB)[grp]
            so = (sa, sb)[grp & 1]
            vo = (vOffK if grp < 2 else vOffV) + i
            e(f"buffer_load_dwordx4 v{vo}, s[{S}:{S+3}], s{so} offen offset:{1024*i} nt lds")

        fill = [f"s_load_dword s{sTag}, s[22:23], s{sEPc}",
                f"s_mov_b64 s[{SWS}:{SWS+1}], s[22:23]",
                f"s_mov_b32 s{SWS+2}, {WS_REC}",
                f"s_mov_b32 s{SWS+3}, s{sC16+1}",
                f"s_mov_b64 s[{SO}:{SO+1}], s[18:19]",
                f"s_mov_b64 s[{SO+2}:{SO+3}], s[{sC16}:{sC16+1}]",
                f"s_movk_i32 s{sM1}, 0x8000",
                f"s_movk_i32 s{sM2}, 0x3ff"]
        for p in range(NF0):
            if p and p % 4 == 0:
                e("s_addk_i32 m0, 4096")
                e(fill.pop(0))
            load(p % 16, sP[2 * (p // 16)], sP[2 * (p // 16) + 1])
        self.stamp(0)
        if self.probe:
            e("s_memrealtime s[84:85]")
            e("s_mov_b32 s70, 0")
        for s in fill:
            e(s)
        e(f"v_mov_b32 v{vL_}, {LIST}")
        e(f"v_lshlrev_b32 v{vPA}, 4, v0")
        e(f"s_lshl_b32 s{sMB}, s{sKVH}, 5")
        e(f"s_add_u32 s{sMB}, s{sMB}, s{sC}")
        e(f"s_lshl_b32 s{sMB}, s{sMB}, 12")
        e("v_and_b32 v4, 4, v0")
        e("v_and_b32 v5, 3, v0")
        e("v_lshlrev_b32 v4, 11, v4")
        e(f"v_lshl_add_u32 v{vOA}, v5, 8, v4")
        e(f"v_and_b32 v4, 1, v{g}")
        e(f"v_and_b32 v5, 2, v{g}")
        e(f"v_lshl_add_u32 v{vOA}, v4, 2, v{vOA}")
        e(f"v_add_u32 v{vOA}, v5, v{vOA}")
        e(f"s_mov_b32 s{sXM}, 0x00ff00ff")
        e(f"s_mov_b32 s{sXM+1}, s{sXM}")
        e(f"s_lshl_b32 s{sOO}, s{sKVH}, 10")
        e(f"s_lshl3_add_u32 s{sOO}, s{sC}, s{sOO}")
        e(f"s_waitcnt vmcnt({NF0-8}) lgkmcnt(0)")
        e(f"s_add_u32 s{sTag}, s{sTag}, {INC}")
        e("s_barrier")
        if self.probe:
            e("s_memrealtime s[86:87]")
        e(f"ds_read_b128 v[{vD}:{vD+3}], v{vL_}")
        e(f"v_add_u32 v{vL_}, 16, v{vL_}")
        e("s_waitcnt lgkmcnt(0)")
        e(f"v_readfirstlane_b32 s{sE[0]}, v{vD}")
        self.stamp(1)
        if self.trace:
            e("v_mov_b32 v121, 0")
            e("s_mov_b32 s81, 0")
            e("s_memrealtime s[88:89]")
        e(f"s_bitcmp1_b32 s{sE[0]}, 11")
        e("s_cbranch_scc1 L_enter")
        e("s_branch L_misspec")

        def setround(ea, eb):
            e(f"s_and_b32 s{sA}, s{ea}, s{sM1}")
            e(f"s_and_b32 s{sB}, s{eb}, s{sM1}")
            e(f"s_and_b32 s{sT2}, s{eb}, s{sM2}")
            e(f"s_cselect_b32 s{SKB+2}, s{sFull}, 0")
            e(f"s_cselect_b32 s{SVB+2}, s{sFull}, 0")
            e(f"s_and_b32 s{sT2}, s{ea}, s{sM2}")
            e(f"s_cselect_b32 s{SKA+2}, s{sFull}, 0")
            e(f"s_cselect_b32 s{SVA+2}, s{sFull}, 0")
        self.cur = self.cold
        lab("L_misspec")
        for k in range(1, 4):
            e(f"v_readfirstlane_b32 s{sE[k]}, v{vD+k}")
        e("s_waitcnt vmcnt(0)")
        e("s_mov_b32 m0, 0")
        for p in range(NF0):
            if p and p % 4 == 0:
                e("s_addk_i32 m0, 4096")
                e("s_nop 0")
            if p % 16 == 0:
                setround(sE[2 * (p // 16)], sE[2 * (p // 16) + 1])
            load(p % 16, sA, sB)
        e(f"s_waitcnt vmcnt({NF0-8})")
        e("s_barrier")
        e("s_branch L_enter")
        self.cur = self.hot

        lab("L_round")
        for p in range(16):
            if p % 4 == 0 and p and p != ib:
                e("s_addk_i32 m0, 4096")
            e(f"s_waitcnt vmcnt({NF-1})")
            if p == ib:
                e("s_barrier")
                if self.trace:
                    e("s_memrealtime s[88:89]")
                lab("L_enter")
                if p % 4 == 0:
                    e("s_addk_i32 m0, 4096")
                e(f"ds_read_b64 v[{vD}:{vD+1}], v{vL_}")
                e(f"v_add_u32 v{vL_}, 8, v{vL_}")
            load(p, sA, sB)
        e("s_addk_i32 m0, 4096")
        e("s_waitcnt lgkmcnt(0)")
        if self.trace:
            e("s_lshl_b64 exec, 1, s81")
            e("v_mov_b32 v121, s88")
            e("s_mov_b64 exec, -1")
            e("s_add_u32 s81, s81, 1")
        e(f"v_readfirstlane_b32 s{sE[0]}, v{vD}")
        e(f"v_readfirstlane_b32 s{sE[1]}, v{vD+1}")
        e("s_bitset0_b32 m0, 16")
        setround(sE[0], sE[1])
        if self.pr2:
            e("s_add_u32 s70, s70, 1")
            e(f"s_cmp_lg_u32 s70, {self.pr1}")
            e("s_cbranch_scc1 L_pr1")
            e("s_memrealtime s[78:79]")
            lab("L_pr1")
            e(f"s_cmp_lg_u32 s70, {self.pr2}")
            e("s_cbranch_scc1 L_pr2")
            e("s_memrealtime s[80:81]")
            lab("L_pr2")
        if self.kv:
            e(f"s_cmp_ge_u32 s71, {self.kv}")
            e("s_cselect_b32 s71, 0, s71")
            e("s_cselect_b32 s73, 1, 0")
            e("s_xor_b32 s72, s72, s73")
            e("s_add_u32 s71, s71, 1")
            e("s_cmp_eq_u32 s72, 0")
            e(f"s_cselect_b64 s[{SKA}:{SKA+1}], s[10:11], s[66:67]")
            e(f"s_cselect_b64 s[{SVA}:{SVA+1}], s[64:65], s[12:13]")
            e(f"s_cmp_ge_u32 s70, {self.kve}")
            e(f"s_cselect_b64 s[{SKA}:{SKA+1}], s[10:11], s[{SKA}:{SKA+1}]")
            e(f"s_cselect_b64 s[{SVA}:{SVA+1}], s[12:13], s[{SVA}:{SVA+1}]")
            e(f"s_mov_b64 s[{SKB}:{SKB+1}], s[{SKA}:{SKA+1}]")
            e(f"s_mov_b64 s[{SVB}:{SVB+1}], s[{SVA}:{SVA+1}]")
            e("s_add_u32 s70, s70, 1")
        e(f"s_cmp_lg_u32 s{sE[0]}, 0")
        e("s_cbranch_scc1 L_round")
        self.stamp(2)
        x = 0
        if self.tl2 & 4:
            e("v_and_b32 v22, 31, v0")
            e("v_lshrrev_b32 v23, 5, v0")
            e("v_lshlrev_b32 v22, 12, v22")
            e("v_lshl_add_u32 v22, v23, 6, v22")
            e(f"s_lshl_b32 s{sT}, s{sKVH}, 10")
            e(f"s_add_u32 s{sT}, s{sT}, s{sC}")
            e(f"s_lshl_b32 s{sT}, s{sT}, 7")
            e(f"buffer_load_dword v21, v22, s[{SWS}:{SWS+3}], s{sT} offen {FL[self.tlf]}")
            x += 1
        if self.tl2 & 3:
            e("s_mov_b64 exec, 1")
            if self.tl2 & 1:
                e(f"buffer_load_dword v22, v{vPA}, s[{SWS}:{SWS+3}], s{sEPc} offen")
                x += 1
            if self.tl2 & 2:
                e(f"buffer_load_dword v23, v{vPA}, s[{SO}:{SO+3}], s{sOO} offen")
                x += 1
        e(f"s_waitcnt vmcnt({8+x})")
        e("s_barrier")
        e(f"s_waitcnt vmcnt({x})")
        e("s_barrier")
        if self.tl2 and self.stamps:
            e("s_mov_b64 exec, -1")
        if self.probe:
            e("s_memrealtime s[76:77]")
        self.stamp(3)
        if self.trace:
            e("v_lshlrev_b32 v122, 2, v0")
            e("s_lshl_b32 s88, s2, 9")
            e(f"s_add_u32 s88, s88, {STAMP_OFF + 0x10000}")
            e(f"buffer_store_dword v121, v122, s[{SWS}:{SWS+3}], s88 offen")
            e("s_waitcnt vmcnt(0)")
        R = 24
        sM = [52, 54, 56, 58]
        sN = 60
        e(f"s_mov_b32 s{sN}, {POLL_MAX}")
        for i in range(4):
            e(f"s_mov_b64 s[{sM[i]}:{sM[i]+1}], -1")
        if self.pb:
            e("s_barrier")
        if self.pd:
            e(f"s_sleep {self.pd}")
        lab("L_poll")
        for i in range(4):
            e(f"{'s_wqm_b64' if self.wq else 's_mov_b64'} exec, s[{sM[i]}:{sM[i]+1}]")
            e(f"buffer_load_dwordx4 v[{R+4*i}:{R+4*i+3}], v{vPA}, s[{SWS}:{SWS+3}], s{sMB} offen offset:{1024*i} {FL[self.pollf]}")
        e("s_mov_b64 exec, -1")
        e(f"s_sub_u32 s{sN}, s{sN}, 1")
        e("s_cbranch_scc1 L_ready")
        if self.slp:
            e(f"s_sleep {self.slp}")
        e("s_waitcnt vmcnt(0)")
        for i in range(4):
            e(f"v_cmp_ne_u32 s[{sM[i]}:{sM[i]+1}], s{sTag}, v{R+4*i+3}")
        e(f"s_or_b64 vcc, s[{sM[0]}:{sM[0]+1}], s[{sM[1]}:{sM[1]+1}]")
        e(f"s_or_b64 vcc, vcc, s[{sM[2]}:{sM[2]+1}]")
        e(f"s_or_b64 vcc, vcc, s[{sM[3]}:{sM[3]+1}]")
        e("s_cbranch_scc1 L_poll")
        mx, tm, den, t5 = 72, 73, 74, 76
        U, acc = 80, 96
        lab("L_ready")
        self.stamp(4)
        if self.probe:
            e("s_memrealtime s[90:91]")

        def unp(j):
            src = R + 4 * (j // 4) + (j // 2) % 2
            if j % 2:
                e(f"v_and_b32 v{U+j}, s{sN}, v{src}")
            else:
                e(f"v_lshlrev_b32 v{U+j}, 16, v{src}")
        e(f"v_max3_f32 v{mx}, v{R+2}, v{R+6}, v{R+10}")
        e(f"s_mov_b32 s{sN}, 0xffff0000")
        e(f"v_max_f32 v{mx}, v{mx}, v{R+14}")
        unp(0); unp(1)
        e(f"v_max_f32_dpp v{mx}, v{mx}, v{mx} row_ror:8 row_mask:0xf bank_mask:0xf")
        e(f"v_mov_b32 v{tm}, v{mx}")
        unp(2); unp(3)
        e(f"v_permlane16_swap_b32 v{mx}, v{tm}")
        unp(4)
        e(f"v_max_f32 v{mx}, v{mx}, v{tm}")
        e(f"v_mov_b32 v{tm}, v{mx}")
        unp(5); unp(6)
        e(f"v_permlane32_swap_b32 v{mx}, v{tm}")
        unp(7)
        e(f"v_max_f32 v{mx}, v{mx}, v{tm}")
        for i in range(4):
            e(f"v_sub_f32 v{R+4*i+2}, v{R+4*i+2}, v{mx}")
        for i in range(4):
            e(f"v_exp_f32 v{R+4*i+2}, v{R+4*i+2}")
            unp(8 + 2 * i); unp(9 + 2 * i)

        def pk(i, h):
            w = R + 4 * i + 2
            a = acc + 2 * h
            if i == 0:
                e(f"v_pk_mul_f32 v[{a}:{a+1}], v[{U+2*h}:{U+2*h+1}], v[{w}:{w+1}] op_sel_hi:[1,0]")
            else:
                e(f"v_pk_fma_f32 v[{a}:{a+1}], v[{U+4*i+2*h}:{U+4*i+2*h+1}], v[{w}:{w+1}], v[{a}:{a+1}] op_sel_hi:[1,0,1]")
        e(f"v_add_f32 v{den}, v{R+2}, v{R+6}")
        e(f"v_add_f32 v{tm}, v{R+10}, v{R+14}")
        pk(0, 0)
        e(f"v_add_f32 v{den}, v{den}, v{tm}")
        pk(0, 1); pk(1, 0)
        e(f"v_add_f32_dpp v{den}, v{den}, v{den} row_ror:8 row_mask:0xf bank_mask:0xf")
        e(f"v_mov_b32 v{tm}, v{den}")
        pk(1, 1); pk(2, 0)
        e(f"v_permlane16_swap_b32 v{den}, v{tm}")
        pk(2, 1)
        e(f"v_add_f32 v{den}, v{den}, v{tm}")
        e(f"v_mov_b32 v{tm}, v{den}")
        pk(3, 0); pk(3, 1)
        e(f"v_permlane32_swap_b32 v{den}, v{tm}")
        e(f"v_permlane32_swap_b32 v{acc}, v{acc+1}")
        e(f"v_permlane32_swap_b32 v{acc+2}, v{acc+3}")
        e(f"v_add_f32 v{den}, v{den}, v{tm}")
        e(f"v_add_f32 v{acc}, v{acc}, v{acc+1}")
        e(f"v_add_f32 v{acc+2}, v{acc+2}, v{acc+3}")
        e(f"v_rcp_f32 v{den}, v{den}")
        e("s_nop 0")
        e(f"v_permlane16_swap_b32 v{acc}, v{acc+2}")
        e(f"v_mov_b32 v{t5+2}, s{sTag}")
        e(f"v_add_f32 v{acc}, v{acc}, v{acc+2}")
        e(f"v_mov_b32 v{t5+3}, 0")
        e(f"s_cmp_lg_u32 s{sC}, 0")
        e(f"v_add_f32_dpp v{acc}, v{acc}, v{acc} row_ror:8 row_mask:0xf bank_mask:0xf")
        e(f"v_mul_f32 v{acc}, v{acc}, v{den}")
        e(f"v_cvt_pk_bf16_f32 v{t5}, v{acc}, v{acc}")
        e(f"s_mov_b64 exec, s[{sXM}:{sXM+1}]")
        e(f"buffer_store_short v{t5}, v{vOA}, s[{SO}:{SO+3}], s{sOO} offen {FL[self.outf]}")
        e("s_cbranch_scc1 L_noep")
        e("s_mov_b64 exec, 1")
        e(f"buffer_store_dword v{t5+2}, v{t5+3}, s[{SWS}:{SWS+3}], s{sEPc} offen")
        lab("L_noep")
        if self.probe:
            if self.probe == 1:
                e("s_branch L_probe")
                self.cur = self.cold
            lab("L_probe")
            e("s_mov_b64 exec, -1")
            e("s_waitcnt vmcnt(0)")
            e("s_memrealtime s[88:89]")
            e("s_mov_b64 s[48:49], s[20:21]")
            e("s_mov_b32 s50, 256")
            e("s_mov_b32 s51, 0x00020000")
            e("v_mov_b32 v1, 0")
            if self.probe == 1:
                e("buffer_load_dword v2, v1, s[48:51], 0 offen sc0 sc1")
            e("s_waitcnt vmcnt(0) lgkmcnt(0)")
            e("v_readfirstlane_b32 s92, v2")
            e("s_not_b32 s92, s92")
            e(f"s_sub_u32 s93, s{self.pa}, s{self.pz}")
            if self.pneg:
                e(f"s_sub_u32 s93, {self.pneg}, s93")
            if self.pbase:
                e(f"s_sub_u32 s93, s93, {self.pbase}")
                e("s_cmp_lt_u32 s2, 8")
                e("s_cselect_b32 s93, s93, 0")
            e("s_max_i32 s93, s93, 0")
            e(f"s_lshl_b32 s93, s93, {self.psh}")
            e("s_min_u32 s93, s93, 20000")
            lab("L_spin")
            e("s_memrealtime s[94:95]")
            e("s_waitcnt lgkmcnt(0)")
            e("s_sub_u32 s94, s94, s88")
            e("s_cmp_lt_u32 s94, s93")
            e("s_cbranch_scc1 L_spin")
            e("s_endpgm")
            self.cur = self.hot
        if self.stamps:
            e("s_mov_b64 exec, -1")
            self.stamp(5)
            e("s_waitcnt vmcnt(0)")
            self.stamp(6)
            e("s_branch L_flush")
        lab("L_exit")
        e("s_endpgm")

        lab("L_cons")
        e(f"s_sub_u32 s{sW}, s3, 1")
        e(f"s_mov_b64 s[{SWS}:{SWS+1}], s[22:23]")
        e(f"s_mov_b32 s{SWS+2}, {WS_REC}")
        e(f"s_mov_b32 s{SWS+3}, s{sC16+1}")
        e(f"v_mov_b32 v{vZero}, 0")
        e(f"v_mov_b32 v{vList}, {LIST}")
        e(f"s_brev_b32 s{sFirst}, -2")
        e(f"s_cmp_lg_u32 s{sW}, 0")
        e("s_cbranch_scc1 L_nobuild")
        f0 = vS
        l0, l1, dp, ds_, px = vQ, vQ + 1, vQ + 2, vQ + 3, vQ + 4
        e(f"v_cmp_gt_u32 vcc, {NMIN2//4}, v{vLane}")
        e(f"v_mov_b32 v{f0+1}, 0x400")
        e(f"v_lshl_add_u32 v{vT2}, v{vLane}, 4, v{vList}")
        e(f"v_cndmask_b32 v{f0}, 0, v{f0+1}, vcc")
        e(f"v_lshl_add_u32 v{vT3}, v{vLane}, 2, v{vList}")
        for k in range(1, 4):
            e(f"v_mov_b32 v{f0+k}, v{f0}")
        e(f"s_and_b32 s{sT2}, s{sC}, {dom-1}")
        e(f"s_lshl_b32 s{sCt}, s{sKVH}, {dom.bit_length()-1}")
        e(f"s_add_u32 s{sCt}, s{sCt}, s{sT2}")
        if self.cts:
            e(f"s_mul_i32 s{sCt}, s{sCt}, {self.cts}")
            assert CT_OFF + 32 * self.cts < STAMP_OFF
        else:
            e(f"s_lshl_b32 s{sCt}, s{sCt}, 8")
        e(f"s_add_u32 s{sCt}, s{sCt}, {CT_OFF}")
        pm = 0
        for i in range(J0 // 32, (J0 + dom * K) // 32):
            pm |= 1 << i
        assert pm < 1 << 32
        e(f"v_lshrrev_b32 v{px}, 2, v{vA}")
        e(f"v_lshlrev_b32 v{vCS}, 2, v{vA}")
        e("s_waitcnt lgkmcnt(0)")
        e(f"ds_write_b128 v{vT2}, v[{f0}:{f0+3}]")
        e(f"ds_write_b32 v{vT3}, v{vZero} offset:1024")
        e(f"s_add_u32 s{sT}, s{sCtx0}, -1")
        e(f"s_add_u32 s{sT2}, s{sCtx1}, -1")
        e(f"s_movk_i32 s{sX}, 0x7fff")
        e(f"s_min_u32 s{sT}, s{sT}, s{sX}")
        e(f"s_min_u32 s{sT2}, s{sT2}, s{sX}")
        cx0, cx1 = sMk[3], sMk[3] + 1
        e(f"s_add_u32 s{cx0}, s{sT}, 1")
        e(f"s_add_u32 s{cx1}, s{sT2}, 1")
        e(f"v_sub_u32 v{l0}, s{cx0}, v{vCS}")
        e(f"v_sub_u32 v{l1}, s{cx1}, v{vCS}")
        e(f"s_add_u32 s{sTg24}, s{sTag}, {INC}")
        e(f"s_and_b32 s{sTg24}, s{sTg24}, 0xffffff")
        e(f"v_mov_b32 v{vCS}, s{sTg24}")
        e(f"s_cmp_lt_u32 s{sC}, {dom}")
        e(f"s_cselect_b32 s{SWS+2}, s{SWS+2}, 0")
        e("s_mov_b64 exec, 1")
        e(f"buffer_atomic_swap v{vCS}, v{vZero}, s[{SWS}:{SWS+3}], s{sCt} offen sc0 sc1")
        e("s_mov_b64 exec, -1")
        e(f"s_bitset1_b32 s{SWS+2}, 23")
        assert WS_REC == 1 << 23
        e(f"v_med3_i32 v{l0}, v{l0}, 0, 16")
        e(f"v_med3_i32 v{l1}, v{l1}, 0, 16")
        e(f"v_cmp_lt_u32 s[{sMk[0]}:{sMk[0]+1}], 0, v{l0}")
        e(f"v_cmp_lt_u32 s[{sMk[1]}:{sMk[1]+1}], 0, v{l1}")
        e(f"v_lshlrev_b32 v{l1}, 5, v{l1}")
        e(f"s_andn2_b32 s{sMk[2]}, s{sMk[0]}, {hex(pm)}")
        e(f"s_mov_b32 s{sMk[2]+1}, s{sMk[0]+1}")
        e(f"s_bcnt1_i32_b64 s{sX}, s[{sMk[2]}:{sMk[2]+1}]")
        e(f"v_mbcnt_lo_u32_b32 v{vT2}, s{sMk[2]}, 0")
        e(f"v_mbcnt_hi_u32_b32 v{vT2}, s{sMk[2]+1}, v{vT2}")
        e(f"v_mov_b32 v{vT3}, s{sX}")
        e(f"v_lshl_add_u32 v{vT2}, v{vT2}, 2, v{vList}")
        e("s_waitcnt vmcnt(%d)" % self.vw[0])
        e(f"v_cmp_eq_u32 vcc, v{tb}, v{px}")
        e(f"v_lshl_or_b32 v{dp}, v{tb}, 15, v{l0}")
        e(f"s_nand_b32 s{sT}, vcc_lo, s{sMk[2]}")
        e(f"v_cmp_eq_u32 vcc, v{tb}, v{tb+1}")
        e(f"s_and_b32 s{sT}, s{sT}, 15")
        e(f"s_cselect_b32 s{sT}, 0, 0x800")
        e(f"v_lshl_or_b32 v{ds_}, v{tb+1}, 15, v{l1}")
        e(f"s_and_b64 vcc, vcc, s[{sMk[0]}:{sMk[0]+1}]")
        e(f"s_andn2_b64 s[{sMk[1]}:{sMk[1]+1}], s[{sMk[1]}:{sMk[1]+1}], vcc")
        e(f"v_cndmask_b32 v{px}, 0, v{l1}, vcc")
        e(f"v_mbcnt_lo_u32_b32 v{vT3}, s{sMk[1]}, v{vT3}")
        e(f"v_or3_b32 v{dp}, v{dp}, v{px}, s{sT}")
        e(f"v_mbcnt_hi_u32_b32 v{vT3}, s{sMk[1]+1}, v{vT3}")
        e(f"v_lshl_add_u32 v{vT3}, v{vT3}, 2, v{vList}")
        e(f"s_mov_b64 exec, s[{sMk[2]}:{sMk[2]+1}]")
        e(f"ds_write_b32 v{vT2}, v{dp}")
        e(f"s_mov_b64 exec, s[{sMk[1]}:{sMk[1]+1}]")
        e(f"ds_write_b32 v{vT3}, v{ds_}")
        e("s_mov_b64 exec, -1")
        e(f"s_bcnt1_i32_b64 s{sT2}, s[{sMk[1]}:{sMk[1]+1}]")
        e(f"s_add_u32 s{sX}, s{sX}, s{sT2}")
        e(f"s_max_u32 s{sX}, s{sX}, {NMIN2}")
        e(f"v_lshlrev_b32 v{vT2}, 2, v{vTail}")
        e(f"s_lshl_b32 s{sT}, s{sX}, 2")
        e(f"v_add_u32 v{vTail}, s{sT}, v{vList}")
        e(f"s_mov_b32 s{sNp}, 0")
        e(f"s_bfm_b64 exec, {K//2 if K < 128 else 63}, 0" if K < 128 else "s_nop 0")
        e("s_waitcnt vmcnt(%d)" % self.vw[1])
        for h in range(2):
            e(f"v_sub_u32 v{l0}, s{cx0}, v{vT2}")
            e(f"v_sub_u32 v{l1}, s{cx1}, v{vT2}")
            e(f"v_cmp_eq_u32 vcc, v{tb+2+h}, v{tb+4+h}")
            e(f"v_med3_i32 v{l0}, v{l0}, 0, 16")
            e(f"v_med3_i32 v{l1}, v{l1}, 0, 16")
            e(f"v_lshl_or_b32 v{dp}, v{tb+2+h}, 15, v{l0}")
            e(f"v_cndmask_b32 v{l1}, 0, v{l1}, vcc")
            e(f"v_cmp_lt_u32 vcc, 0, v{l0}")
            e(f"v_lshl_or_b32 v{dp}, v{l1}, 5, v{dp}")
            e(f"s_bcnt1_i32_b64 s{sT}, vcc")
            e(f"v_cndmask_b32 v{vPool+h}, 0, v{dp}, vcc")
            e(f"s_add_u32 s{sNp}, s{sNp}, s{sT}")
            if h == 0:
                e(f"v_add_u32 v{vT2}, {16*dom}, v{vT2}")
        e("s_mov_b64 exec, -1")
        e(f"s_lshr_b32 s{sT}, s{sX}, 1")
        e(f"s_sub_u32 s{sT}, s{sT}, {D+LA}")
        e(f"s_cmp_lg_u32 s{sNp}, 0")
        e(f"s_cselect_b32 s{sFirst}, s{sT}, s{sFirst}")
        lab("L_nobuild")
        vQA = vS + 4
        e(f"v_and_b32 v{vT3}, 7, v{vT1}")
        e(f"v_lshlrev_b32 v{vT2}, 1, v{vT3}")
        e(f"v_xor_b32 v{vT2}, v{vT2}, v{vT0}")
        e(f"v_lshlrev_b32 v{vMA}, 4, v{vT3}")
        e(f"v_add_lshl_u32 v{vQA}, v{vMA}, v{vT2}, 4")
        e(f"v_xor_b32 v{vT2}, v{vT0}, v{vT1}")
        e(f"v_lshlrev_b32 v{vT2}, 4, v{vT2}")
        e(f"v_lshl_add_u32 v{vLK}, v{vT1}, 8, v{vT2}")
        e(f"s_movk_i32 s{sT}, 128")
        for b in (vQA, vLK):
            e(f"v_xor_b32 v{b+1}, 64, v{b}")
            e(f"v_xor_b32 v{b+2}, s{sT}, v{b}")
            e(f"v_xor_b32 v{b+3}, s{sT}, v{b+1}")
        e(f"v_lshlrev_b32 v{v4g}, 2, v{vT0}")
        e(f"v_lshrrev_b32 v{vT2}, 3, v{vT1}")
        e(f"v_lshl_add_u32 v{vT2}, v{vT2}, 2, v{vT0}")
        e(f"v_lshl_add_u32 v{vMA}, v{vT2}, 12, v{vMA}")
        e(f"v_lshrrev_b32 v{vT2}, 2, v{vLane}")
        e(f"v_and_b32 v{vT3}, 3, v{vLane}")
        e(f"v_lshlrev_b32 v{vT3}, 3, v{vT3}")
        e(f"v_lshl_add_u32 v{vT3}, v{vT2}, 8, v{vT3}")
        e(f"v_and_b32 v{vShift}, 1, v{vT2}")
        e(f"v_and_b32 v{vT2}, 7, v{vT2}")
        e(f"s_lshl_b32 s{sT}, s{sW}, 1")
        e(f"v_xor_b32 v{vT2}, s{sT}, v{vT2}")
        e(f"v_lshl_add_u32 v{vLV}, v{vT2}, 5, v{vT3}")
        e(f"v_xor_b32 v{vLV+1}, 32, v{vLV}")
        e(f"v_mul_u32_u24 v{vShift}, 5, v{vShift}")
        e(f"v_mov_b32 v{vM}, {hex(f2u(-2.0**90))}")
        e(f"s_mov_b32 s{sCs}, {hex(f2u(CSCALE))}")
        e(f"v_mov_b32 v{vL}, 0")
        for k in range(0, 20, 2):
            e(f"v_mov_b64 v[{vP+k}:{vP+k+1}], 0")
        for c in range(4):
            e(f"v_mov_b32 v{vKa+c}, v{vLK+c}")
        e(f"s_mov_b32 s{sR}, 0")
        e(f"s_mov_b32 s{sSlot}, 0")
        if self.trace:
            e("v_mov_b32 v121, -1")
            e(f"v_lshlrev_b32 v122, 2, v{vLane}")
        e(f"s_lshl2_add_u32 s{sMsg}, s{sKVH}, s{sW}")
        e(f"s_lshl_b32 s{sMsg}, s{sMsg}, 8")
        e(f"s_add_u32 s{sMsg}, s{sMsg}, s{sC}")
        e(f"s_lshl_b32 s{sMsg}, s{sMsg}, 7")
        e(f"v_mul_f32 v{vNm}, s{sCs}, v{vM}")
        e("s_waitcnt vmcnt(1) lgkmcnt(0)")
        if self.clr:
            e(f"v_mov_b32 v{vS+3}, s{sTag}")
        e(f"s_min_i32 s{sT}, s{sCtx0}, s{sCtx1}")
        self.stamp(0)
        if self.tlb in (2, 3):
            e(f"s_cmp_eq_u32 s{sW}, 0")
            e("s_cbranch_scc1 L_notl")
            e("s_load_dword s29, s[10:11], s28")
            if self.tlb == 2:
                e("s_load_dword s30, s[12:13], s28")
            lab("L_notl")
        e("s_barrier")
        self.stamp(1)
        e(f"ds_read_b64 v[{vE}:{vE+1}], v{vList}")
        for c in range(4):
            e(f"ds_read_b128 v[{vQ+4*c}:{vQ+4*c+3}], v{vQA+c} offset:{QL}")
        if self.clr == 1:
            e(f"buffer_store_dwordx4 v[{vS}:{vS+3}], v{vMA}, s[{SWS}:{SWS+3}], s{sMsg} offen {FL[self.clrf]}")
        if self.clr == 2:
            e(f"buffer_load_dword v{vNeg}, v{vMA}, s[{SWS}:{SWS+3}], s{sMsg} offen {FL[self.clrf]}")
        if self.probe == 1:
            e("s_mov_b64 s[48:49], s[20:21]")
            e("s_mov_b32 s50, 256")
            e("s_mov_b32 s51, 0x00020000")
            e("s_not_b32 s82, s82")
            e(f"v_mov_b32 v{vNeg}, s82")
            e(f"s_cmp_eq_u32 s{sW}, 1")
            e("s_cselect_b64 exec, 1, 0")
            e(f"buffer_atomic_umax v{vNeg}, v{vZero}, s[48:51], 0 offen sc1")
            e("s_mov_b64 exec, -1")
        e("s_waitcnt lgkmcnt(4)")
        e(f"v_readfirstlane_b32 s{sX}, v{vE}")
        e(f"s_cmp_gt_i32 s{sT}, 0")
        e("s_cbranch_scc0 L_qzero")
        lab("L_q_ok")
        e(f"s_bitcmp1_b32 s{sX}, 11")
        e("s_cbranch_scc1 L_k")
        e("s_barrier")
        e("s_branch L_k")
        self.cur = self.cold
        lab("L_qzero")
        e(f"s_cmp_gt_i32 s{sCtx0}, 0")
        e(f"s_cselect_b32 s{sZ}, 0, 0x0f0f0f0f")
        e(f"s_cmp_gt_i32 s{sCtx1}, 0")
        e(f"s_cselect_b32 s{sZ+1}, 0, 0xf0f0f0f0")
        e(f"s_or_b32 s{sZ}, s{sZ}, s{sZ+1}")
        e(f"s_mov_b32 s{sZ+1}, s{sZ}")
        e("s_waitcnt lgkmcnt(0)")
        for k in range(16):
            e(f"v_cndmask_b32 v{vQ+k}, v{vQ+k}, 0, s[{sZ}:{sZ+1}]")
        e("s_branch L_q_ok")
        self.cur = self.hot

        def pv_reads():
            for jj in range(2):
                e(f"ds_read_b64_tr_b16 v[{vVf+4*jj}:{vVf+4*jj+1}], v{vVa+jj} offset:8192")
                e(f"ds_read_b64_tr_b16 v[{vVf+4*jj+2}:{vVf+4*jj+3}], v{vVa+jj} offset:{8192+4096}")

        def pv_mfma(jj):
            e(f"v_mfma_f32_16x16x32_bf16 v[{vO+4*jj}:{vO+4*jj+3}], v[{vVf+4*jj}:{vVf+4*jj+3}], v[{vP}:{vP+3}], v[{vO+4*jj}:{vO+4*jj+3}]")

        lab("L_r")
        e("s_barrier")
        pv_reads()
        lab("L_k")
        for c in range(4):
            e(f"ds_read_b128 v[{vKf+4*c}:{vKf+4*c+3}], v{vKa+c}")
            e(f"ds_read_b128 v[{vKf+16+4*c}:{vKf+16+4*c+3}], v{vKa+c} offset:4096")
        for u in range(2):
            e(f"v_bfe_u32 v{vT0+u}, v{vE+u}, v{vShift}, 5")
            e(f"v_sub_u32 v{vT0+u}, v{vT0+u}, v{v4g}")
        e(f"ds_read_b64 v[{vE}:{vE+1}], v{vList} offset:8")
        for u in range(2):
            for k in range(4):
                e(f"v_add_u32_sdwa v{vS+4*u+k}, {-(k+1)}, v{vT0+u} dst_sel:BYTE_3 dst_unused:UNUSED_PAD src0_sel:DWORD src1_sel:DWORD")
        e(f"v_add_u32 v{vList}, 8, v{vList}")
        for j in range(2):
            e(f"v_add_u32 v{vVa+j}, s{sSlot}, v{vLV+j}")
        e(f"s_addk_i32 s{sSlot}, 0x4000")
        e(f"s_bitset0_b32 s{sSlot}, 16")
        e("s_waitcnt lgkmcnt(11)")
        pv_mfma(0)
        e("s_waitcnt lgkmcnt(9)")
        pv_mfma(1)
        for c in range(4):
            for u in range(2):
                e(f"s_waitcnt lgkmcnt({8-2*c-u})")
                e(f"v_mfma_f32_16x16x32_bf16 v[{vS+4*u}:{vS+4*u+3}], v[{vKf+16*u+4*c}:{vKf+16*u+4*c+3}], v[{vQ+4*c}:{vQ+4*c+3}], v[{vS+4*u}:{vS+4*u+3}]")
        for c in range(4):
            e(f"v_add_u32 v{vKa+c}, s{sSlot}, v{vLK+c}")
        e("s_nop 3")
        e(f"v_max3_f32 v{vT0}, v{vS}, v{vS+1}, v{vS+2}")
        e(f"v_max3_f32 v{vT1}, v{vS+4}, v{vS+5}, v{vS+6}")
        e(f"v_max3_f32 v{vT0}, v{vT0}, v{vS+3}, v{vM}")
        e(f"v_max3_f32 v{vT0}, v{vT0}, v{vT1}, v{vS+7}")
        e(f"v_cmp_gt_f32 vcc, v{vT0}, v{vM}")
        e("s_cbranch_vccz L_skip")
        e(f"v_mov_b32 v{vT1}, v{vT0}")
        e("s_nop 1")
        e(f"v_permlane32_swap_b32 v{vT0}, v{vT1}")
        e("s_nop 0")
        e(f"v_max_f32 v{vT0}, v{vT0}, v{vT1}")
        e(f"v_mov_b32 v{vT1}, v{vT0}")
        e("s_nop 1")
        e(f"v_permlane16_swap_b32 v{vT0}, v{vT1}")
        e("s_nop 0")
        e(f"v_max_f32 v{vT0}, v{vT0}, v{vT1}")
        e(f"v_sub_f32 v{vA}, v{vM}, v{vT0}")
        e(f"v_mul_f32 v{vA}, s{sCs}, v{vA}")
        e(f"v_exp_f32 v{vA}, v{vA}")
        e(f"v_mov_b32 v{vM}, v{vT0}")
        e(f"v_mul_f32 v{vNm}, s{sCs}, v{vT0}")
        e(f"v_mul_f32 v{vL}, v{vL}, v{vA}")
        for k in range(8):
            e(f"v_mul_f32 v{vO+k}, v{vO+k}, v{vA}")
        lab("L_skip")
        for k in range(8):
            e(f"v_fma_f32 v{vS+k}, v{vS+k}, s{sCs}, -v{vNm}")
        for k in range(8):
            e(f"v_exp_f32 v{vS+k}, v{vS+k}")
        e(f"s_cmp_lt_u32 s{sR}, s{sFirst}")
        for k in range(4):
            e(f"v_cvt_pk_bf16_f32 v{vP+k}, v{vS+2*k}, v{vS+2*k+1}")
        e(f"v_pk_add_f32 v[{vS}:{vS+1}], v[{vS}:{vS+1}], v[{vS+2}:{vS+3}]")
        e(f"v_pk_add_f32 v[{vS+4}:{vS+5}], v[{vS+4}:{vS+5}], v[{vS+6}:{vS+7}]")
        e(f"v_pk_add_f32 v[{vS}:{vS+1}], v[{vS}:{vS+1}], v[{vS+4}:{vS+5}]")
        e(f"v_add_f32 v{vL}, v{vL}, v{vS}")
        e(f"v_add_f32 v{vL}, v{vL}, v{vS+1}")
        e("s_waitcnt lgkmcnt(0)")
        e("s_cbranch_scc1 L_noproc")

        def take(fail, stale=None):
            e(f"s_xor_b32 s{sX}, s{sTk}, s{sTg24}")
            e(f"s_lshl_b32 s{sT}, s{sX}, 8")
            e(f"s_cbranch_scc1 {stale or fail}")
            e(f"s_lshr_b32 s{sT}, s{sX}, 23")
            e(f"s_lshr_b32 s{sX}, s{sX}, 24")
            if self.trace:
                e(f"s_lshl_b64 exec, 1, s{sR}")
                e(f"v_mov_b32 v121, s{sX}")
                e("s_mov_b64 exec, -1")
            e(f"s_cmp_ge_u32 s{sT}, s{sNp}")
            e(f"s_cbranch_scc1 {fail}")
            e(f"s_lshl_b64 exec, 1, s{sX}")
            e(f"ds_write2_b32 v{vTail}, v{vPool}, v{vPool+1} offset0:0 offset1:1")
            e("s_mov_b64 exec, -1")
            e(f"v_add_u32 v{vTail}, 8, v{vTail}")
        if self.vt:
            e(f"s_sub_u32 s{sX}, s{sR}, {D}")
            e(f"s_cmp_lt_i32 s{sX}, s{sFirst}")
            e("s_cbranch_scc1 L_req0")
            e(f"s_waitcnt vmcnt({D-1})")
            e(f"v_readlane_b32 s{sTk}, v{vTk}, s{sX}")
            take("L_done", "L_stale" if D > 1 else None)
            e("s_waitcnt lgkmcnt(0)")
            lab("L_req")
            e(f"s_lshl_b64 exec, 1, s{sR}")
            e(f"v_mov_b32 v{vTk}, 0x1000000")
            e(f"buffer_atomic_add v{vTk}, v{vZero}, s[{SWS}:{SWS+3}], s{sCt} offen {FL[self.vtf]}")
            e("s_mov_b64 exec, -1")
            e("s_branch L_noproc")
            lab("L_req0")
            e(f"s_cmp_lg_u32 s{sR}, s{sFirst}")
            e("s_cbranch_scc1 L_req")
            e("s_waitcnt vmcnt(0)")
            e("s_branch L_req")
            lab("L_done")
            e(f"s_brev_b32 s{sFirst}, -2")
            if D > 1:
                self.cur = self.cold
                lab("L_stale")
                for d in range(D - 1, 0, -1):
                    e(f"s_sub_u32 s{sX}, s{sR}, {d}")
                    e(f"s_waitcnt vmcnt({d-1})")
                    e(f"v_readlane_b32 s{sTk}, v{vTk}, s{sX}")
                    take(f"L_dn{d}")
                    e("s_waitcnt lgkmcnt(0)")
                    lab(f"L_dn{d}")
                e("s_branch L_done")
                self.cur = self.hot
        else:
            e(f"s_cmp_eq_u32 s{sR}, s{sFirst}")
            e("s_cbranch_scc1 L_req")
            take("L_done")
            e(f"s_add_u32 s{sT}, s{sT}, 2")
            e(f"s_cmp_lt_u32 s{sT}, s{sNp}")
            e("s_waitcnt lgkmcnt(0)")
            e("s_cbranch_scc0 L_done")
            lab("L_req")
            e(f"s_lshl_b32 s{sTk}, 1, 24")
            e("s_waitcnt vmcnt(0)")
            e(f"s_atomic_add s{sTk}, s[22:23], s{sCt} glc")
            e("s_branch L_noproc")
            lab("L_done")
            e(f"s_brev_b32 s{sFirst}, -2")
        lab("L_noproc")
        if self.fake:
            e(f"s_sub_u32 s{sT}, s{sR}, 10")
            e(f"s_cmp_lt_u32 s{sT}, 10")
            e("s_cbranch_scc0 L_nofake")
            e(f"s_cmp_eq_u32 s{sW}, 0")
            e("s_cbranch_scc0 L_nofake")
            e(f"s_add_u32 s{sT}, s{sCt}, 0x4000")
            e("s_mov_b32 s75, 1")
            e(f"s_atomic_add s75, s[22:23], s{sT} glc")
            lab("L_nofake")
        e(f"v_readfirstlane_b32 s{sX}, v{vE}")
        e(f"s_add_u32 s{sR}, s{sR}, 1")
        e(f"s_cmp_lg_u32 s{sX}, 0")
        e("s_cbranch_scc1 L_r")
        e(f"v_mov_b32 v{vT1}, v{vL}")
        e(f"s_mov_b32 vcc_lo, 0xff00ff00")
        e(f"s_mov_b32 vcc_hi, vcc_lo")
        e(f"v_permlane32_swap_b32 v{vL}, v{vT1}")
        e(f"s_add_u32 s{sTag}, s{sTag}, {INC}")
        e(f"v_add_f32 v{vL}, v{vL}, v{vT1}")
        e(f"v_mov_b32 v{vT1}, v{vL}")
        e("s_nop 1")
        e(f"v_permlane16_swap_b32 v{vL}, v{vT1}")
        e(f"v_mov_b32 v{vS+3}, s{sTag}")
        e(f"v_add_f32 v{vL}, v{vL}, v{vT1}")
        e(f"v_max_f32 v{vL}, {hex(f2u(1e-30))}, v{vL}")
        e(f"v_rcp_f32 v{vA}, v{vL}")
        e(f"v_log_f32 v{vL}, v{vL}")
        e("s_waitcnt vmcnt(0)")
        e(f"v_add_f32 v{vS+2}, v{vNm}, v{vL}")
        if self.stamps:
            e(f"v_mov_b32 v{self.vSt[6]}, s{sR}")
        e("s_barrier")
        self.stamp(2)
        pv_reads()
        e("s_waitcnt lgkmcnt(2)")
        pv_mfma(0)
        e("s_waitcnt lgkmcnt(0)")
        pv_mfma(1)
        e("s_nop 7")
        for k in range(4):
            e(f"v_cndmask_b32 v{vO+k}, v{vO+k}, v{vO+4+k}, vcc")
        for k in range(4):
            e(f"v_mul_f32 v{vO+k}, v{vO+k}, v{vA}")
        e(f"v_cvt_pk_bf16_f32 v{vS}, v{vO}, v{vO+1}")
        e(f"v_cvt_pk_bf16_f32 v{vS+1}, v{vO+2}, v{vO+3}")
        e(f"buffer_store_dwordx4 v[{vS}:{vS+3}], v{vMA}, s[{SWS}:{SWS+3}], s{sMsg} offen {FL[self.msgf]}")
        self.stamp(3)
        if self.pb == 1:
            e("s_barrier")
        if self.stamps or self.pb == 2:
            e("s_waitcnt vmcnt(0)")
        self.stamp(4)
        if self.pb == 2:
            e("s_barrier")
        if self.trace:
            e(f"s_cmp_lg_u32 s{sW}, 0")
            e("s_cbranch_scc1 L_notr")
            e("s_lshl_b32 s88, s2, 9")
            e(f"s_add_u32 s88, s88, {STAMP_OFF + 0x10000 + 256}")
            e(f"buffer_store_dword v121, v122, s[{SWS}:{SWS+3}], s88 offen")
            lab("L_notr")
        self.finish()
        if self.stamps:
            self.cur = self.cold
            lab("L_flush")
            e("s_mov_b64 exec, 1")
            e("s_lshl_b32 s90, s2, 3")
            e("s_add_u32 s90, s90, s3")
            e("s_lshl_b32 s90, s90, 5")
            e(f"s_add_u32 s90, s90, {STAMP_OFF}")
            e(f"v_mov_b32 v{self.vStT}, 0")
            for i in range(8):
                e(f"buffer_store_dword v{self.vSt[i]}, v{self.vStT}, s[{SWS}:{SWS+3}], s90 offen offset:{4*i}")
            e("s_endpgm")

    vw = (7, 3)

    def offsets(self, lines):
        src = '.amdgcn_target "amdgcn-amd-amdhsa--gfx950"\n.text\n'
        for i, l in enumerate(lines):
            src += f"X_{i}:\n{l}\n"
        src += f"X_{len(lines)}:\n"
        defined = {l[:-1] for l in lines if l.endswith(":")}
        for n in set(re.findall(r"\bL_\w+", src)) - defined:
            src += f"{n}:\n"
        open("off.s", "w").write(src)
        r = subprocess.run([CLANG, "-c", "-target", "amdgcn-amd-amdhsa", "-mcpu=gfx950", "off.s", "-o", "off.o"], capture_output=True, text=True)
        assert r.returncode == 0, r.stderr
        t = subprocess.run([OBJDUMP, "-t", "off.o"], capture_output=True, text=True).stdout
        off = [0] * (len(lines) + 1)
        for m in re.finditer(r"^([0-9a-f]+) .* X_(\d+)$", t, re.M):
            off[int(m.group(2))] = int(m.group(1), 16)
        return off

    def build(self):
        self.body()
        hot = self.hot
        if self.touch:
            for k in (1, 2, 3):
                off = self.offsets(hot)
                lo = 64 * self.st * k
                best = None
                for i in range(1, len(hot) + 1):
                    gap = hot[i - 1].split()[0] in ("s_branch", "s_endpgm")
                    a = off[i] + (0 if gap else 4)
                    if lo <= a < lo + 64 and (best is None or (gap and not best[1])):
                        best = (i, gap)
                if best is None:
                    best = (len(hot), True)
                i, gap = best
                stub = [f"L_touch{k}:", "    s_branch " + ("L_eb2" if self.touch == 2 else "L_eb")]
                if not gap:
                    stub = [f"    s_branch L_over{k}"] + stub + [f"L_over{k}:"]
                hot[i:i] = stub
        off = self.offsets(hot)
        coff = self.offsets(self.cold)
        if self.verbose:
            for i, l in enumerate(hot):
                if l.endswith(":"):
                    print(f"{off[i]:5d} {l}", file=sys.stderr)
        print(f"hot {off[-1]} B, cold {coff[-1]} B", file=sys.stderr)
        nvg = 128 if self.stamps else (max(self.nv, 100) + 7) // 8 * 8
        out = HEADER
        out += f"; @launch grid=(256,1,1) block=(320,1,1) lds={self.lds}\n"
        out += '.amdgcn_target "amdgcn-amd-amdhsa--gfx950"\n.text\n'
        if self.al:
            out += ".p2align 12\n"
        out += "\n".join(self.cold) + "\n"
        if self.al:
            assert coff[-1] <= 0xd00
            out += f".fill {(0xd00 - coff[-1]) // 4}, 4, 0xbf810000\n"
        out += f".globl {NAME}_kernel\n.p2align 8\n.type {NAME}_kernel,@function\n{NAME}_kernel:\n"
        out += "\n".join(hot) + "\n"
        out += f""".section .rodata,"a"
.p2align 6
.amdhsa_kernel {NAME}_kernel
  .amdhsa_next_free_vgpr {nvg}
  .amdhsa_next_free_sgpr {100 if self.probe else 96}
  .amdhsa_accum_offset {nvg}
  .amdhsa_group_segment_fixed_size 0
  .amdhsa_kernarg_size 64
  .amdhsa_user_sgpr_count 2
  .amdhsa_user_sgpr_kernarg_segment_ptr 1
  .amdhsa_system_sgpr_workgroup_id_x 1
.end_amdhsa_kernel
"""
        return out


if __name__ == "__main__":
    path = sys.argv[1]
    kw = {}
    for a in sys.argv[2:]:
        k, v = a.split("=")
        kw[k] = int(v)
    open(path, "w").write(Gen(**kw).build())
```
